```python
import torch

def _softmax(x, axis=-1):
    return torch.softmax(x, dim=axis)
def _gelu(x):
    return torch.nn.functional.gelu(x, approximate="tanh")
def _silu(x):
    return torch.nn.functional.silu(x)
def _sigmoid(x):
    return torch.sigmoid(x)
def _layernorm(x, axis=-1, eps=1e-5):
    m = x.mean(dim=axis, keepdim=True)
    v = x.var(dim=axis, keepdim=True, unbiased=False)
    return (x - m) / torch.sqrt(v + eps)
def _scatter_add(tgt, idx, src, axis=0):
    return tgt.clone().index_add_(axis, idx, src)
def _segment_sum(src, seg, n):
    out = torch.zeros((n,) + src.shape[1:], dtype=src.dtype)
    return out.index_add_(0, seg, src)
def _pad(x, pw):
    flat = tuple(v for pair in reversed(pw) for v in pair)
    return torch.nn.functional.pad(x, flat)

kernel_name = 'gated_mix__linear_kernel_hedgehog__sliding_local_dilated__prompt'

def setup_inputs():

    _w = (lambda a: (lambda t: t.to(torch.bfloat16) if t.is_floating_point() else t)(torch.as_tensor(a)))
    def _A_setup():
        B, S, D, H = 1, 2048, 512, 32
        Dh = D // H
        return {
            "x": _w((lambda *s: torch.randn(*s, dtype=torch.bfloat16) * 0.05)(B, S, D)),
            "wqkv": _w((lambda *s: torch.randn(*s, dtype=torch.bfloat16) * 1.6)(D, 3 * D)),
            "w_phi": _w((lambda *s: torch.randn(*s, dtype=torch.bfloat16) * 1.6)(H, Dh, Dh) * (Dh ** -0.5)),
            "wo": _w((lambda *s: torch.randn(*s, dtype=torch.bfloat16) * 0.1)(D, D)),
        }
    _A_in = _A_setup()

    def _B_setup():
        B, S, D = 1, 2048, 512
        return {
            "x": _w((lambda *s: torch.randn(*s, dtype=torch.bfloat16) * 0.05)(B, S, D)),
            "wqkv": _w((lambda *s: torch.randn(*s, dtype=torch.bfloat16) * 0.8)(D, 3 * D)),
            "wo": _w((lambda *s: torch.randn(*s, dtype=torch.bfloat16) * 0.05)(D, D)),
        }
    _B_in = _B_setup()

    return {
        "A_x": _A_in["x"],
        "A_wqkv": _A_in["wqkv"],
        "A_w_phi": _A_in["w_phi"],
        "A_wo": _A_in["wo"],
        "B_x": _B_in["x"],
        "B_wqkv": _B_in["wqkv"],
        "B_wo": _B_in["wo"],
        "gate_w": _w((lambda *s: torch.randn(*s, dtype=torch.bfloat16) * 0.05)(512) * 16.0),
    }

def reference(A_x, A_wqkv, A_w_phi, A_wo, B_x, B_wqkv, B_wo, gate_w):
    def _A_ref(x, wqkv, w_phi, wo):
        B, S, D = x.shape
        H = 32; Dh = D // H
        qkv = (lambda x, *d: x.permute(*d))((x @ wqkv).reshape(B, S, 3, H, Dh), 2, 0, 3, 1, 4)
        q, k, v = qkv[0], qkv[1], qkv[2]
        pq = torch.einsum("bhsd,hdf->bhsf", q, w_phi)
        pk = torch.einsum("bhsd,hdf->bhsf", k, w_phi)
        phi_q = torch.concatenate([_softmax(pq, axis=-1), _softmax(-pq, axis=-1)], axis=-1)
        phi_k = torch.concatenate([_softmax(pk, axis=-1), _softmax(-pk, axis=-1)], axis=-1)
        kv = torch.einsum("bhsf,bhsd->bhfd", phi_k, v)
        z  = torch.einsum("bhsf->bhf", phi_k)
        num = torch.einsum("bhqf,bhfd->bhqd", phi_q, kv)
        den = torch.einsum("bhqf,bhf->bhq", phi_q, z)[..., None] + 1e-6
        o = num / den
        return (lambda x, *d: x.permute(*d))(o, 0, 2, 1, 3).reshape(B, S, D) @ wo

    def _B_ref(x, wqkv, wo):
        B, S, D = x.shape
        H = 32; Dh = D // H
        W, dil = 8, 2
        qkv = (lambda x, *d: x.permute(*d))((x @ wqkv).reshape(B, S, 3, H, Dh), 2, 0, 3, 1, 4)
        q, k, v = qkv[0], qkv[1], qkv[2]
        scale = Dh ** -0.5
        pos = torch.arange(S)
        off = torch.arange(W) * dil
        idx = pos[:, None] - off[None, :]
        mask = idx >= 0
        idx_c = torch.where(mask, idx, 0).reshape(-1)
        kg = k[:, :, idx_c, :].reshape(B, H, S, W, Dh)
        vg = v[:, :, idx_c, :].reshape(B, H, S, W, Dh)
        logits = torch.einsum("bhsd,bhswd->bhsw", q, kg) * scale
        logits = torch.where(mask[None, None, :, :], logits, -1e9)
        attn = _softmax(logits, axis=-1)
        o = torch.einsum("bhsw,bhswd->bhsd", attn, vg)
        return (lambda x, *d: x.permute(*d))(o, 0, 2, 1, 3).reshape(B, S, D) @ wo

    x = A_x
    g = _sigmoid((x * gate_w).sum(-1, keepdims=True))
    a = _A_ref(x, A_wqkv, A_w_phi, A_wo)
    b = _B_ref(x, B_wqkv, B_wo)
    return g * a + (1 - g) * b
```

```python
import re

def vr(a, n=1):
    return "v%d" % a if n == 1 else "v[%d:%d]" % (a, a + n - 1)
def sr(a, n=1):
    return "s%d" % a if n == 1 else "s[%d:%d]" % (a, a + n - 1)

class Asm:
    def __init__(self):
        self.lines = []
        self.vm = []
        self.lg = []
    def e(self, s):
        for l in s.split("\n"):
            l = l.strip()
            if l: self.lines.append(l)
    def label(self, name):
        self.lines.append(name + ":")
    def vmem(self, s, tag=None):
        self.e(s); self.vm.append(tag)
    def lds(self, s, tag=None):
        self.e(s); self.lg.append(tag)
    def _n(self, q, tags):
        idx = -1
        for t in tags:
            hits = [i for i, x in enumerate(q) if x == t]
            if hits: idx = max(idx, hits[-1])
        return None if idx < 0 else len(q) - 1 - idx
    def wait(self, vm=None, lg=None):
        parts = []
        if vm is not None:
            n = 0 if vm == 0 else self._n(self.vm, vm if isinstance(vm, list) else [vm])
            if n is not None:
                assert n <= 63
                parts.append("vmcnt(%d)" % n); self.vm = self.vm[len(self.vm) - n:] if n else []
        if lg is not None:
            n = 0 if lg == 0 else self._n(self.lg, lg if isinstance(lg, list) else [lg])
            if n is not None:
                n = min(n, 15)
                parts.append("lgkmcnt(%d)" % n); self.lg = self.lg[len(self.lg) - n:] if n else []
        if parts: self.e("s_waitcnt " + " ".join(parts))
    def state(self): return (list(self.vm), list(self.lg))
    def restore(self, st): self.vm, self.lg = list(st[0]), list(st[1])

_REG = re.compile(r"^(-|abs\()?([vs])(?:(\d+)|\[(\d+):(\d+)\])\)?$")
def regs(op):
    op = op.strip()
    if op in ("vcc",): return {"vcc"}
    if op in ("exec",): return {"exec"}
    if op == "m0": return {"m0"}
    m = _REG.match(op)
    if not m: return set()
    k = m.group(2)
    lo, hi = (int(m.group(3)),) * 2 if m.group(3) else (int(m.group(4)), int(m.group(5)))
    return {"%s%d" % (k, i) for i in range(lo, hi + 1)}

TRANS = ("v_exp_f32", "v_rcp_f32", "v_log_f32", "v_rsq_f32", "v_sqrt_f32")
def decode(line):
    line = line.split(";")[0].strip()
    if not line or line.endswith(":") or line.startswith("."): return None
    p = line.split(None, 1)
    op = p[0]; rest = p[1] if len(p) > 1 else ""
    rest = re.sub(r"\b(op_sel_hi|op_sel|neg_lo|neg_hi|quad_perm):\[[^\]]*\]", lambda m: "quad_perm" if m.group(1) == "quad_perm" else "", rest)
    ops = [o.strip() for o in rest.split(",")]
    if ops: ops[-1:] = ops[-1].split()
    base = re.sub(r"_e(32|64)$", "", op)
    d = dict(op=base, kind="other", w=set(), r=set(), c=set(), ab=set(), passes=0, dpp=("dpp" in op or "row_" in rest or "quad_perm" in rest))
    R = lambda xs: set().union(*[regs(x) for x in xs]) if xs else set()
    if base.startswith("v_mfma"):
        d.update(kind="mfma", w=regs(ops[0]), ab=R(ops[1:3]), c=regs(ops[3]), passes=8 if "32x32" in base else 4)
        d["r"] = d["ab"] | d["c"]
    elif base.startswith("v_permlane"):
        d.update(kind="valu", w=R(ops[:2]), r=R(ops[:2]), perm=True)
    elif base.startswith("v_cmp"):
        d.update(kind="valu", w=regs(ops[0]), r=R(ops[1:]))
    elif base in ("v_readfirstlane_b32", "v_readlane_b32"):
        d.update(kind="valu", w=regs(ops[0]), r=R(ops[1:]), rl=True)
    elif base.startswith("v_"):
        d.update(kind="valu", w=regs(ops[0]), r=R(ops[1:]))
        if base in ("v_fmac_f32", "v_dot2c_f32_bf16"): d["r"] |= d["w"]
        if base == "v_cndmask_b32" and len(ops) == 3: d["r"] |= {"vcc"}
        if base in TRANS: d["trans"] = True
    elif base.startswith("ds_read"):
        d.update(kind="ds", w=regs(ops[0]), r=regs(ops[1]))
    elif base.startswith("ds_write"):
        d.update(kind="ds", r=R(ops))
    elif base.startswith("buffer_load") or base.startswith("global_load"):
        if "lds" in ops:
            d.update(kind="vmem", r=R(ops) | {"m0"}, dma=True)
        else:
            d.update(kind="vmem", w=regs(ops[0]), r=R(ops[1:]))
    elif base.startswith("buffer_store") or base.startswith("global_store"):
        d.update(kind="vmem", r=R(ops))
        if base.endswith("x4") or base.endswith("x3"):
            d["wide"] = regs(ops[0]) if base.startswith("buffer") else regs(ops[1])
    elif base == "s_nop":
        d.update(kind="nop", n=int(ops[0]) + 1)
    elif base.startswith("s_"):
        d.update(kind="salu", w=regs(ops[0]) if ops else set(), r=R(ops[1:]))
    return d

def need(p, c):
    n = 0
    isv = lambda s: {x for x in s if x[0] == "v" and x != "vcc"}
    iss = lambda s: {x for x in s if x[0] == "s" or x == "vcc"}
    if p["kind"] == "valu":
        if c["kind"] == "mfma" and isv(p["w"]) & c["r"]: n = max(n, 2)
        if c["kind"] == "valu":
            if c.get("perm") and isv(p["w"]) & c["r"]: n = max(n, 2)
            if c["dpp"] and isv(p["w"]) & c["r"]: n = max(n, 2)
            if c.get("rl") and isv(p["w"]) & c["r"]: n = max(n, 1)
            if p.get("trans") and p["w"] & c["r"]: n = max(n, 1)
            if iss(p["w"]) & c["r"]: n = max(n, 2)
        if c["kind"] == "vmem" and iss(p["w"]) & c["r"]: n = max(n, 5)
        if c["kind"] == "salu" and iss(p["w"]) & (c["r"] | ({"vcc"} if "vcc" in c["op"] else set())): n = max(n, 4)
    if p["kind"] == "mfma":
        big = {4: 8, 8: 12}[p["passes"]]
        if c["kind"] == "mfma":
            if p["w"] & c["ab"]: n = max(n, big)
            if p["w"] & c["c"] and not (p["w"] == c["c"] and p["passes"] == c["passes"]): n = max(n, big - 2)
            if p["w"] & c["w"] and not (p["w"] == c["c"]): n = max(n, big)
        elif c["kind"] in ("valu", "ds", "vmem"):
            if p["w"] & (c["r"] | c["w"]): n = max(n, big)
            if c["kind"] == "valu" and p["c"] & c["w"]: n = max(n, {4: 3, 8: 7}[p["passes"]])
    if p["kind"] == "vmem" and p.get("wide") and p["wide"] & c["w"]: n = max(n, 2)
    if p["kind"] == "salu" and "m0" in p["w"] and c.get("dma"): n = max(n, 1)
    return n

def fix_hazards(lines):
    out = []; hist = []
    added = 0
    for l in lines:
        d = decode(l)
        if d is None:
            out.append(l); continue
        req = 0
        for (p, dist) in hist:
            req = max(req, need(p, d) - dist)
        if req > 0:
            k = req
            while k > 0:
                t = min(k, 16); out.append("s_nop %d" % (t - 1)); k -= t
            added += req
            hist = [(p, dist + req) for (p, dist) in hist]
        out.append(l)
        step = d.get("n", 1)
        hist = [(p, dist + step) for (p, dist) in hist if dist + step < 20]
        hist.append((d, 0))
    return out, added
```

```python
import sys
from asmlib import *

KNAME = "gated_mix__linear_kernel_hedgehog__sliding_local_dilated__prompt"
SLOT = 8192
MISC = 19 * SLOT
WPHI = MISC
GATE = MISC
GEX = MISC + 2048
KVOP = MISC + 3072
OF_OFF = 0
KVP_OFF = 4 << 20
ZP_OFF = 5 << 20
GP_OFF = (5 << 20) + (128 << 10)
F1_OFF = (5 << 20) + (256 << 10)
F2B_OFF = F1_OFF + 4096
F2A_OFF = F1_OFF + 8192
STAMP_OFF = 192 << 20
LOG2E = 0x3FB8AA3B
NEG = 0xF149F2CA
TAGC = 0x9E3779B9

SX, SW, SWS, SWOA, SWOB, SOUT, SMISC, SDBG = 8, 12, 16, 20, 24, 28, 32, 36
sW, sRB, sGRP, sTYPE, sROT, sRT, sCT, sTAG, sWL, sOFF, sT0, sT1 = 40, 41, 42, 43, 44, 45, 46, 47, 48, 49, 50, 51
sL = 52
sT2, sT3 = 54, 55
sKX, sKW = 64, 72
sWOO = 80
sR, sC = 84, 85
STAMPS = [86, 88, 90, 92, 94, 96, 98, 100, 56, 58, 60, 62]

vL, vX0, vX1, vW, vWO = 0, 1, 2, 3, 4
vXA, vWA, vH0, vH1, vH2, vL16, vTG = 5, 9, 10, 11, 12, 13, 14
ACK, ACV, RING, XR = 16, 32, 48, 128

WV_SLOTS = [12, 16, 17, 18, 0, 1, 2, 3]
WQ_A = [13, 4, 5, 6, 7, 16, 17, 18]
WQ_B = [13, 4, 5, 6, 7, 8, 9, 10]

class Addr:
    def __init__(self, a, regs, base=0):
        self.a, self.regs, self.base = a, regs, base
    def rebase(self, nb):
        if nb != self.base:
            for r in self.regs:
                self.a.e("v_add_u32 v%d, 0x%x, v%d" % (r, (nb - self.base) & 0xffffffff, r))
            self.base = nb
    def at(self, off, i=0):
        if not (0 <= off - self.base <= 65535 - 15):
            self.rebase(off // 49152 * 49152)
        return "v%d offset:%d" % (self.regs[i], off - self.base)

class Gen:
    def __init__(self, stamps=False):
        self.a = Asm()
        self.stamps = stamps
        self.nl = 0
    def stamp(self, i):
        if self.stamps: self.a.e("s_memrealtime %s" % sr(STAMPS[i], 2))
    def lab(self, p):
        self.nl += 1
        return "L_%s_%d" % (p, self.nl)

    def dma(self, slot, vaddr, srd, sbase, add, tag, ldsadd=0):
        a = self.a
        a.e("s_add_u32 m0, s%d, 0x%x" % (sWL, slot * SLOT + ldsadd))
        if add:
            a.e("s_add_u32 s%d, s%d, 0x%x" % (sOFF, sbase, add)); so = "s%d" % sOFF
        else:
            so = "s%d" % sbase
        a.vmem("buffer_load_dwordx4 v%d, %s, %s offen lds" % (vaddr, sr(srd, 4), so), tag)
    def dma_x(self, s, h): self.dma(3 * (s & 3) + h, vX0 + h, SX, sKX + s, 0, ("c", s))
    def dma_wk(self, s): self.dma(3 * (s & 3) + 2, vW, SW, sKW + s, 1024, ("c", s))
    def dma_wv(self, s): self.dma(WV_SLOTS[s], vW, SW, sKW + s, 2048, ("wv", s))
    def dma_wq(self, s, slots): self.dma(slots[s], vW, SW, sKW + s, 0, ("wq", s))
    def dma_wo(self, g): self.dma(g, vWO, SWOA if g >= 8 else SWOB, sWOO + (g & 3), ((g >> 2) & 1) * 262144, "wo")

    def gemm(self, n, D, reads, mfmas, pre={}, post={}):
        a = self.a
        for i in range(n + D):
            if i < n:
                if i in pre: pre[i]()
                for t in reads(i): a.lds(t, ("r", i))
            k = i - D
            if k >= 0:
                a.wait(lg=("r", k))
                for t in mfmas(k): a.e(t)
            for f in post.get(i, []): f()

    def barrier(self, vm=None):
        self.a.wait(vm=vm, lg=0)
        self.a.e("s_barrier")

    def setup(self):
        a = self.a; e = a.e
        self.stamp(0)
        e("s_cmp_ge_u32 s2, 256\ns_cbranch_scc1 L_end")
        e("s_load_dwordx16 s[64:79], s[0:1], 0")
        e("s_load_dwordx4 s[80:83], s[0:1], 64")
        e("s_load_dwordx2 s[84:85], s[0:1], 80")
        e("v_lshrrev_b32 v1, 6, v0\nv_and_b32 v0, 63, v0")
        e("s_and_b32 s50, s2, 7\ns_lshr_b32 s51, s2, 3")
        e("v_readfirstlane_b32 s%d, v1" % sW)
        e("s_and_b32 s41, s50, 1\ns_lshl_b32 s41, s41, 3\ns_and_b32 s54, s51, 7\ns_add_u32 s41, s41, s54")
        e("s_lshr_b32 s54, s51, 3")
        e("s_and_b32 s43, s54, 1")
        e("s_and_b32 s42, s50, 6\ns_lshr_b32 s55, s54, 1\ns_add_u32 s42, s42, s55")
        e("s_lshl_b32 s44, s54, 1\ns_add_u32 s44, s44, s41\ns_and_b32 s44, s44, 7")
        e("s_lshl_b32 s45, s50, 2\ns_and_b32 s55, s51, 3\ns_add_u32 s45, s45, s55")
        e("s_lshr_b32 s46, s51, 2")
        e("s_lshl_b32 s48, s40, 10")
        e("v_lshrrev_b32 v5, 3, v0\nv_lshrrev_b32 v6, 4, v0\nv_and_b32 v7, 7, v0")
        e("s_and_b32 s54, s40, 1\ns_lshl_b32 s55, s54, 2")
        e("v_add_u32 v8, s55, v6\nv_xor_b32 v8, v8, v7\nv_lshlrev_b32 v8, 4, v8")
        e("s_lshr_b32 s55, s40, 1\ns_lshl_b32 s55, s55, 4\ns_add_u32 s55, s55, s54\ns_lshl_b32 s55, s55, 10")
        e("v_lshl_add_u32 v1, v5, 11, v8\nv_add_u32 v1, s55, v1\nv_add_u32 v2, 0x10000, v1")
        e("v_and_b32 v6, 1, v6\nv_lshlrev_b32 v6, 2, v6\nv_xor_b32 v6, v6, v7\nv_lshlrev_b32 v6, 4, v6")
        e("s_lshl_b32 s55, s40, 3\nv_add_u32 v5, s55, v5")
        e("s_movk_i32 s55, 3072\nv_mad_u32_u24 v3, v5, s55, v6\nv_lshl_add_u32 v4, v5, 10, v6")
        e("v_lshlrev_b32 v13, 4, v0")
        e("s_waitcnt lgkmcnt(0)")
        e("s_cmp_eq_u32 s43, 0")
        e("s_mov_b32 s8, s64\ns_mov_b32 s9, s65\ns_mov_b32 s10, 0x200000\ns_mov_b32 s11, 0x20000")
        e("s_cselect_b32 s12, s66, s74\ns_cselect_b32 s13, s67, s75\ns_mov_b32 s14, 0x180000\ns_mov_b32 s15, 0x20000")
        e("s_cselect_b32 s32, s68, s78\ns_cselect_b32 s33, s69, s79\ns_cselect_b32 s34, 0x4000, 64\ns_mov_b32 s35, 0x20000")
        e("s_max_u32 s34, s34, 0x400")
        e("s_mov_b32 s16, s84\ns_mov_b32 s17, s85\ns_mov_b32 s18, 0x10000000\ns_mov_b32 s19, 0x20000")
        e("s_mov_b32 s20, s70\ns_mov_b32 s21, s71\ns_mov_b32 s22, 0x80000\ns_mov_b32 s23, 0x20000")
        e("s_mov_b32 s24, s76\ns_mov_b32 s25, s77\ns_mov_b32 s26, 0x80000\ns_mov_b32 s27, 0x20000")
        e("s_mov_b32 s28, s80\ns_mov_b32 s29, s81\ns_mov_b32 s30, 0x200000\ns_mov_b32 s31, 0x20000")
        e("s_mov_b32 s36, s82\ns_mov_b32 s37, s83\ns_mov_b32 s38, 0x100\ns_mov_b32 s39, 0x20000")
        e("s_lshl_b32 s54, s41, 17\ns_lshl_b32 s55, s42, 7")
        def kxw(s):
            e("s_add_u32 s50, s44, %d\ns_and_b32 s50, s50, 7" % s)
            e("s_lshl_b32 s%d, s50, 7\ns_add_u32 s%d, s%d, s54" % (sKX + s, sKX + s, sKX + s))
            e("s_mul_i32 s%d, s50, 0x30000\ns_add_u32 s%d, s%d, s55" % (sKW + s, sKW + s, sKW + s))
        kxw(0)
        self.dma_x(0, 0); self.dma_x(0, 1); self.dma_wk(0)
        kxw(1)
        self.dma_x(1, 0); self.dma_x(1, 1)
        for s in range(2, 8): kxw(s)
        l = self.lab("nopre")
        e("s_cmp_eq_u32 s40, 3\ns_cbranch_scc0 %s" % l)
        e("s_getpc_b64 s[4:5]")
        a.label("L_pc")
        e("s_lshl_b32 s50, s51, 10\nv_add_u32 v16, s50, v13\nv_min_u32 v16, L_end-L_pc-16, v16")
        e("global_load_dwordx4 v[124:127], v16, s[4:5]")
        a.label(l)
        l = self.lab("nomisc")
        e("s_sub_u32 s50, 2, s43\ns_cmp_lt_u32 s40, s50\ns_cbranch_scc0 %s" % l)
        e("s_lshl_b32 s50, s44, 7\nv_add_u32 v16, s50, v13\nv_and_b32 v16, 0x3ff, v16")
        e("s_lshl_b32 s50, s42, 11\ns_add_u32 s50, s50, s48\nv_add_u32 v17, s50, v13")
        e("s_cmp_eq_u32 s43, 0\ns_cselect_b64 vcc, -1, 0\nv_cndmask_b32 v16, v16, v17, vcc")
        e("s_add_u32 m0, s48, 0x%x\ns_nop 0\nbuffer_load_dwordx4 v16, s[32:35], 0 offen lds" % MISC)
        a.label(l)
        e("s_and_b32 s%d, s40, 3\ns_lshr_b32 s%d, s40, 2" % (sR, sC))
        e("s_cmp_eq_u32 s43, 0\ns_cbranch_scc0 L_typeB")

    def setup2(self):
        e = self.a.e
        e("s_mov_b32 s52, 0x%x\ns_mov_b32 s53, 0x%x" % (LOG2E, LOG2E))
        for g in range(4):
            e("s_add_u32 s50, s45, %d\ns_and_b32 s50, s50, 3\ns_lshl_b32 s50, s50, 16\ns_lshl_b32 s51, s46, 7\ns_add_u32 s%d, s50, s51" % (g, sWOO + g))
        e("v_and_b32 v16, 31, v0\nv_lshrrev_b32 v17, 5, v0\nv_bfe_u32 v18, v0, 1, 3\nv_xor_b32 v17, v17, v18\nv_lshlrev_b32 v17, 4, v17")
        e("s_lshl_b32 s50, s%d, 12\nv_lshl_add_u32 v5, v16, 7, v17\nv_add_u32 v5, s50, v5" % sR)
        e("v_xor_b32 v6, 32, v5\nv_xor_b32 v7, 64, v5\nv_xor_b32 v8, 0x60, v5")
        e("v_bfe_u32 v16, v0, 2, 2\nv_lshrrev_b32 v17, 5, v0\nv_lshl_add_u32 v16, v17, 3, v16\nv_lshlrev_b32 v16, 7, v16")
        e("v_bfe_u32 v17, v0, 3, 1\nv_xor_b32 v17, s%d, v17\nv_lshl_add_u32 v16, v17, 6, v16" % sC)
        e("v_bfe_u32 v17, v0, 4, 1\nv_lshl_add_u32 v16, v17, 5, v16\nv_and_b32 v17, 3, v0\nv_lshl_add_u32 v9, v17, 3, v16")
        self.xa = Addr(self.a, [5, 6, 7, 8]); self.wa = Addr(self.a, [9])

    def wreads(self, slot, j, t):
        r = RING + 4 * (t % 6)
        return ["ds_read_b64_tr_b16 %s, %s" % (vr(r + 2 * tt, 2), self.wa.at(slot * SLOT + (16 * j + 4 * tt) * 128)) for tt in (0, 1)]

    def kpass(self, wq, extra_r=None, extra_m=None):
        a = self.a
        def reads(i):
            s, j = divmod(i, 4)
            o = ["ds_read_b128 %s, %s" % (vr(XR + 4 * i, 4), self.xa.at(3 * (s & 3) * SLOT, j))]
            o += self.wreads(3 * (s & 3) + 2, j, i)
            if extra_r: o += extra_r(s, j, 3 * (s & 3) + 2)
            return o
        def mf(k):
            o = ["v_mfma_f32_32x32x16_bf16 %s, %s, %s, %s" % (vr(ACK, 16), vr(RING + 4 * (k % 6), 4), vr(XR + 4 * k, 4), vr(ACK, 16) if k else "0")]
            if extra_m: o += extra_m(*divmod(k, 4))
            return o
        pre = {4 * s: (lambda s=s: self.barrier(vm=[("c", s), "halo"])) for s in range(8)}
        post = {}
        for s in range(5):
            post[4 * s] = [lambda s=s: self.dma_x(s + 3, 0)]
            post[4 * s + 1] = [lambda s=s: self.dma_x(s + 3, 1)]
            post[4 * s + 2] = [lambda s=s: self.dma_wk(s + 3)]
        for g in range(3):
            post[20 + g] = [lambda g=g: self.dma_wv(1 + g)]
            post[24 + g] = [lambda g=g: self.dma_wv(4 + g)]
        post[28] = [lambda: self.dma_wv(7)]
        post[29] = [lambda: self.dma_wq(1, wq)]
        post[30] = [lambda: self.dma_wq(2, wq)]
        post[19] = [lambda: a.vmem("buffer_load_dwordx2 v[14:15], off, s[36:39], 0 sc1", "tag")]
        self.gemm(32, 2, reads, mf, pre, post)

    def wpass(self, slots, acc, lo, hi, pre={}, post={}, extra_r=None, extra_m=None, D=5):
        def reads(i):
            t = lo + i; s, j = divmod(t, 4)
            o = self.wreads(slots[s], j, t)
            if extra_r: o += extra_r(s, j, slots[s])
            return o
        def mf(k):
            t = lo + k
            o = ["v_mfma_f32_32x32x16_bf16 %s, %s, %s, %s" % (vr(acc, 16), vr(RING + 4 * (t % 6), 4), vr(XR + 4 * t, 4), vr(acc, 16) if t else "0")]
            if extra_m: o += extra_m(*divmod(t, 4))
            return o
        self.gemm(hi - lo, D, reads, mf, pre, post)

    def get_tag(self):
        a = self.a; e = a.e
        ok, rt = self.lab("tagok"), self.lab("tagrt")
        a.wait(vm="tag")
        e("s_mov_b32 s51, 0")
        a.label(rt)
        e("v_readfirstlane_b32 s50, v15\nv_readfirstlane_b32 s%d, v14" % sTAG)
        e("s_add_u32 s51, s51, 1\ns_cmp_lg_u32 s50, 0\ns_cbranch_scc1 %s" % ok)
        e("s_cmp_gt_u32 s51, 0x4000\ns_cbranch_scc1 %s" % ok)
        e("s_sleep 4\nbuffer_load_dwordx2 v[14:15], off, s[36:39], 0 sc1\ns_waitcnt vmcnt(0)\ns_branch %s" % rt)
        a.label(ok)

    def flag_store(self, soff):
        e = self.a.e
        l = self.lab("nf")
        e("s_cmp_eq_u32 s40, 0\ns_cbranch_scc0 %s" % l)
        e("s_mov_b64 exec, 1\nbuffer_store_dword v14, off, s[16:19], s%d sc1\ns_mov_b64 exec, -1" % soff)
        self.a.label(l)

    def poll_issue(self, vdst, vaddr, soff, tag):
        self.a.vmem("buffer_load_dword v%d, v%d, s[16:19], s%d offen sc1" % (vdst, vaddr, soff), tag)
    def poll_check(self, vdst, vaddr, soff, tag):
        a = self.a; e = a.e
        ok, rt = self.lab("pok"), self.lab("prt")
        a.wait(vm=tag)
        e("s_mov_b32 s51, 0")
        a.label(rt)
        e("v_cmp_ne_u32 vcc, s%d, v%d" % (sTAG, vdst))
        e("s_add_u32 s51, s51, 1\ns_cbranch_vccz %s" % ok)
        e("s_cmp_gt_u32 s51, 0x4000\ns_cbranch_scc1 %s" % ok)
        e("s_sleep 2\nbuffer_load_dword v%d, v%d, s[16:19], s%d offen sc1\ns_waitcnt vmcnt(0)\ns_branch %s" % (vdst, vaddr, soff, rt))
        a.label(ok)

    def phi(self, hooks={}):
        e = self.a.e
        KB, EP, T, P = 80, 88, 104, 112
        H = lambda n: hooks[n]() if n in hooks else None
        for i in range(8): e("v_cvt_pk_bf16_f32 v%d, v%d, v%d" % (KB + i, ACK + 2 * i, ACK + 2 * i + 1))
        e("v_mfma_f32_32x32x16_bf16 %s, v[72:75], %s, 0" % (vr(ACK, 16), vr(KB, 4)))
        e("v_mfma_f32_32x32x16_bf16 %s, v[76:79], %s, %s" % (vr(ACK, 16), vr(KB + 4, 4), vr(ACK, 16)))
        H(0)
        for (op, op2, d) in (("v_max3_f32", "v_max_f32", T), ("v_min3_f32", "v_min_f32", T + 2)):
            e("%s v%d, v%d, v%d, v%d" % (op, d, ACK, ACK + 1, ACK + 2))
            e("%s v%d, v%d, v%d, v%d" % (op, d + 1, ACK + 3, ACK + 4, ACK + 5))
        for i in range(2):
            for (op, d) in (("v_max3_f32", T), ("v_min3_f32", T + 2)):
                e("%s v%d, v%d, v%d, v%d" % (op, d, d, ACK + 6 + 4 * i, ACK + 7 + 4 * i))
                e("%s v%d, v%d, v%d, v%d" % (op, d + 1, d + 1, ACK + 8 + 4 * i, ACK + 9 + 4 * i))
        for (op, d) in (("v_max3_f32", T), ("v_min3_f32", T + 2)):
            e("%s v%d, v%d, v%d, v%d" % (op, d, d, ACK + 14, ACK + 15))
        e("v_max_f32 v%d, v%d, v%d\nv_min_f32 v%d, v%d, v%d" % (T, T, T + 1, T + 2, T + 2, T + 3))
        e("v_mul_f32 v%d, s52, v%d\nv_mul_f32 v%d, s52, v%d" % (T, T, T + 2, T + 2))
        for i in range(8):
            e("v_pk_fma_f32 %s, %s, s[52:53], %s op_sel_hi:[1,1,0] neg_lo:[0,0,1] neg_hi:[0,0,1]" % (vr(EP + 2 * i, 2), vr(ACK + 2 * i, 2), vr(T, 2)))
        for i in range(8):
            e("v_pk_fma_f32 %s, %s, s[52:53], %s op_sel_hi:[1,1,0] neg_lo:[1,0,0] neg_hi:[1,0,0]" % (vr(ACK + 2 * i, 2), vr(ACK + 2 * i, 2), vr(T + 2, 2)))
        H(1)
        for i in range(16): e("v_exp_f32 v%d, v%d" % (EP + i, EP + i))
        H(2)
        for i in range(16): e("v_exp_f32 v%d, v%d" % (ACK + i, ACK + i))
        H(3)
        for (src, d) in ((EP, KB), (ACK, KB + 4)):
            e("v_pk_add_f32 %s, %s, %s" % (vr(d, 2), vr(src, 2), vr(src + 2, 2)))
            e("v_pk_add_f32 %s, %s, %s" % (vr(d + 2, 2), vr(src + 4, 2), vr(src + 6, 2)))
        for i in range(2):
            for (src, d) in ((EP, KB), (ACK, KB + 4)):
                e("v_pk_add_f32 %s, %s, %s" % (vr(d, 2), vr(d, 2), vr(src + 8 + 4 * i, 2)))
                e("v_pk_add_f32 %s, %s, %s" % (vr(d + 2, 2), vr(d + 2, 2), vr(src + 10 + 4 * i, 2)))
        for d in (KB, KB + 4): e("v_pk_add_f32 %s, %s, %s" % (vr(d, 2), vr(d, 2), vr(d + 2, 2)))
        for d in (KB, KB + 4): e("v_add_f32 v%d, v%d, v%d" % (d, d, d + 1))
        for d in (KB, KB + 4): e("v_rcp_f32 v%d, v%d" % (d, d))
        for (src, d, o) in ((EP, KB, P), (ACK, KB + 4, P + 8)):
            for i in range(8):
                e("v_pk_mul_f32 %s, %s, %s op_sel_hi:[1,0]" % (vr(src + 2 * i, 2), vr(src + 2 * i, 2), vr(d, 2)))
            for i in range(8):
                e("v_cvt_pk_bf16_f32 v%d, v%d, v%d" % (o + i, src + 2 * i, src + 2 * i + 1))

    def stage_addr(self, d):
        e = self.a.e
        e("v_and_b32 v%d, 31, v0\nv_lshrrev_b32 v%d, 5, v0\nv_bfe_u32 v%d, v0, 1, 2" % (d, d + 1, d + 2))
        e("v_xor_b32 v%d, v%d, v%d\nv_lshlrev_b32 v%d, 4, v%d" % (d + 1, d + 1, d + 2, d + 1, d + 1))
        e("s_lshl_b32 s50, s%d, 11\nv_lshl_add_u32 v%d, v%d, 6, v%d\nv_add_u32 v%d, s50, v%d" % (sR, d, d, d + 1, d, d))

    def tr_addr(self, d, t, half_sgpr, rowskip):
        e = self.a.e
        e("v_lshrrev_b32 v%d, 2, v0" % d)
        e("v_bfe_u32 v%d, v0, 3, 2\nv_bfe_u32 v%d, v0, 1, 1\nv_xor_b32 v%d, v%d, v%d" % (t, t + 1, t, t, t + 1))
        if half_sgpr is not None:
            e("s_lshl_b32 s50, s%d, 1\nv_xor_b32 v%d, s50, v%d" % (half_sgpr, t, t))
        if rowskip:
            e("v_and_b32 v%d, 8, v%d\nv_add_u32 v%d, v%d, v%d" % (t + 1, d, d, d, t + 1))
        e("v_lshlrev_b32 v%d, 6, v%d\nv_lshl_add_u32 v%d, v%d, 4, v%d" % (d, d, d, t, d))
        e("v_and_b32 v%d, 1, v0\nv_lshl_add_u32 v%d, v%d, 3, v%d" % (t, d, t, d))

    def typeA(self):
        a = self.a; e = a.e
        self.dma_wv(0); self.dma_wq(0, WQ_A); self.dma_wk(1)
        self.dma_x(2, 0); self.dma_x(2, 1); self.dma_wk(2)
        self.setup2()
        self.stage_addr(16)
        e("s_lshl_b32 s50, s%d, 13\ns_add_u32 s50, s50, 0x%x\nv_add_u32 v11, s50, v16" % (sC, 14 * SLOT))
        e("v_lshrrev_b32 v17, 5, v0\nv_lshlrev_b32 v18, 4, v17\nv_xor_b32 v16, v16, v18\nv_lshl_add_u32 v16, v17, 13, v16")
        e("s_lshl_b32 s50, s%d, 14\ns_add_u32 s50, s50, 0x%x\nv_add_u32 v10, s50, v16" % (sC, 8 * SLOT))
        e("v_and_b32 v16, 1, v0\nv_lshlrev_b32 v16, 9, v16")
        e("v_bfe_u32 v17, v0, 2, 2\nv_lshrrev_b32 v18, 5, v0\nv_lshl_add_u32 v17, v18, 2, v17\nv_lshl_add_u32 v16, v17, 5, v16")
        e("v_bfe_u32 v17, v0, 4, 1\nv_lshl_add_u32 v16, v17, 4, v16\nv_bfe_u32 v17, v0, 1, 1\nv_lshl_add_u32 v16, v17, 3, v16")
        e("s_lshl_b32 s50, s%d, 10\ns_add_u32 s50, s50, 0x%x\nv_add_u32 v12, s50, v16" % (sC, WPHI))
        self.stamp(1)
        self.kpass(WQ_A)
        self.stamp(2)
        a.lds("ds_read_b64_tr_b16 v[72:73], v12"); a.lds("ds_read_b64_tr_b16 v[74:75], v12 offset:256")
        self.wa.rebase(2 * 49152)
        self.barrier(vm=("wv", 3))
        e("v_and_b32 v80, 4, v0\nv_cmp_eq_u32 vcc, 0, v80")
        for i in range(4): e("v_cndmask_b32 v%d, v%d, 0, vcc" % (76 + i, 72 + i))
        for i in range(4): e("v_cndmask_b32 v%d, 0, v%d, vcc" % (72 + i, 72 + i))
        e("s_cmp_eq_u32 s%d, 0\ns_cbranch_scc0 L_A1" % sC)
        st = a.state(); wb = self.wa.base
        def phi_write():
            e("v_xor_b32 v104, 16, v10\nv_xor_b32 v105, 32, v10\nv_xor_b32 v106, 48, v10")
            for ch, r in enumerate((10, 104, 105, 106)):
                a.lds("ds_write_b128 v%d, %s" % (r, vr(112 + 4 * ch, 4)))
        def v_write():
            for i in range(8): e("v_cvt_pk_bf16_f32 v%d, v%d, v%d" % (80 + i, ACV + 2 * i, ACV + 2 * i + 1))
            e("v_xor_b32 v107, 32, v11")
            a.lds("ds_write_b128 v11, v[80:83]"); a.lds("ds_write_b128 v107, v[84:87]")
        self.phi({0: lambda: (self.dma_wq(3, WQ_A), self.dma_wq(4, WQ_A)), 3: lambda: self.barrier(vm=("wv", 7))})
        phi_write()
        self.wpass(WV_SLOTS, ACV, 0, 32)
        v_write()
        self.wa.rebase(2 * 49152)
        e("s_branch L_A_tail")
        st0 = a.state()
        a.restore(st); self.wa.base = wb
        a.label("L_A1")
        self.wpass(WV_SLOTS, ACV, 0, 32, pre={16: lambda: self.barrier(vm=("wv", 7))},
                   post={6: [lambda: self.dma_wq(3, WQ_A)], 10: [lambda: self.dma_wq(4, WQ_A)]})
        v_write()
        self.phi()
        phi_write()
        self.wa.rebase(2 * 49152)
        assert a.state()[0] == st0[0], (a.state(), st0)
        a.label("L_A_tail")
        e("s_and_b32 s54, s40, 1\ns_lshr_b32 s55, s40, 1")
        self.tr_addr(104, 106, sT2, False)
        e("s_lshl_b32 s50, s55, 13\ns_add_u32 s50, s50, 0x%x\nv_add_u32 v104, s50, v104" % (8 * SLOT))
        e("s_and_b32 s54, s55, 1")
        self.tr_addr(105, 106, sT2, False)
        e("s_lshl_b32 s50, s%d, 13\ns_add_u32 s50, s50, 0x%x\nv_add_u32 v105, s50, v105" % (sC, 14 * SLOT))
        for i in range(4): e("v_mov_b32 v%d, 0x3f803f80" % (108 + i))
        self.get_tag()
        self.barrier(vm=("wq", 4))
        self.stamp(3)
        for m in range(4):
            for t in range(2): a.lds("ds_read_b64_tr_b16 %s, v104 offset:%d" % (vr(ACK + 8 * m + 2 * t, 2), m * 2048 + t * 1024), ("k", m))
            for t in range(2): a.lds("ds_read_b64_tr_b16 %s, v105 offset:%d" % (vr(ACK + 8 * m + 4 + 2 * t, 2), m * 2048 + t * 1024), ("k", m))
        e("s_lshl_b32 s54, s42, 3\ns_add_u32 s54, s54, s40\ns_lshl_b32 s54, s54, 4")
        e("s_add_u32 s55, s54, s41\ns_lshl_b32 s50, s55, 10\ns_add_u32 s50, s50, 0x%x" % KVP_OFF)
        e("s_lshl_b32 s51, s55, 6\ns_add_u32 s51, s51, 0x%x" % ZP_OFF)
        for m in range(4):
            a.wait(lg=("k", m))
            e("v_mfma_f32_16x16x32_bf16 v[80:83], %s, %s, %s" % (vr(ACK + 8 * m, 4), vr(ACK + 8 * m + 4, 4), "v[80:83]" if m else "0"))
            e("v_mfma_f32_16x16x32_bf16 v[84:87], %s, v[108:111], %s" % (vr(ACK + 8 * m, 4), "v[84:87]" if m else "0"))
        a.vmem("buffer_store_dwordx4 v[80:83], v13, s[16:19], s50 offen sc1", "kvst")
        e("s_mov_b64 exec, 0x10001\ns_mov_b32 exec_hi, 0x10001")
        a.vmem("buffer_store_dwordx4 v[84:87], v0, s[16:19], s51 offen sc1", "kvst")
        e("s_mov_b64 exec, -1")
        self.stamp(4)
        e("s_lshl_b32 s55, s42, 7\ns_add_u32 s55, s55, 0x%x" % F1_OFF)
        def bq2():
            self.barrier(vm=["kvst", ("wq", 7)])
            e("s_lshl_b32 s50, s41, 2\ns_add_u32 s50, s50, s55")
            self.flag_store(50)
        post = {0: [lambda: self.dma_wq(5, WQ_A)], 1: [lambda: self.dma_wq(6, WQ_A)], 2: [lambda: self.dma_wq(7, WQ_A)]}
        for i, g in enumerate((12, 0, 1, 2, 3)): post[6 + 3 * i] = [lambda g=g: self.dma_wo(g)]
        for i, g in enumerate((8, 9, 10, 11, 14, 15)): post[21 + 2 * i] = [lambda g=g: self.dma_wo(g)]
        self.wpass(WQ_A, ACK, 0, 32, pre={20: bq2}, post=post)
        self.stamp(5)
        e("v_and_b32 v104, 15, v0\nv_lshlrev_b32 v108, 2, v104")
        def bulk():
            self.poll_check(109, 108, sT3, "p1")
            self.stamp(6)
            e("s_lshl_b32 s50, s54, 6\ns_add_u32 s50, s50, 0x%x" % ZP_OFF)
            a.vmem("buffer_load_dwordx4 v[32:35], v13, s[16:19], s50 offen sc1", "z")
            e("s_lshl_b32 s54, s54, 10\ns_add_u32 s54, s54, 0x%x" % KVP_OFF)
            for i in range(16):
                if i % 4 == 0 and i: e("s_add_u32 s54, s54, 4096")
                a.vmem("buffer_load_dwordx4 %s, v13, s[16:19], s54 offen offset:%d sc1" % (vr(XR + 4 * i, 4), (i % 4) * 1024), ("kp", i))
        self.phi({0: lambda: (self.poll_issue(109, 108, sT3, "p1"), e("s_barrier")), 3: bulk})
        for g in (13, 4, 5, 6, 7): self.dma_wo(g)
        for b in (112, 120):
            for i in range(4): e("v_permlane32_swap_b32 v%d, v%d" % (b + i, b + 4 + i))
        e("s_mul_i32 s50, s40, 576\ns_add_u32 s50, s50, 0x%x" % KVOP)
        e("v_and_b32 v104, 3, v0\nv_bfe_u32 v105, v0, 2, 1\nv_lshl_add_u32 v104, v105, 3, v104\nv_bfe_u32 v105, v0, 3, 1\nv_lshl_add_u32 v104, v105, 2, v104")
        e("v_lshrrev_b32 v105, 5, v0\nv_lshl_add_u32 v104, v105, 4, v104\nv_lshlrev_b32 v104, 4, v104\nv_bfe_u32 v105, v0, 4, 1\nv_lshl_add_u32 v104, v105, 3, v104")
        e("v_add_u32 v104, s50, v104")
        e("v_and_b32 v105, 3, v0\nv_lshlrev_b32 v105, 2, v105\nv_bfe_u32 v106, v0, 4, 1\nv_lshl_add_u32 v105, v106, 1, v105\nv_lshrrev_b32 v106, 5, v0\nv_add_u32 v105, v105, v106")
        e("v_lshlrev_b32 v105, 1, v105\nv_add_u32 v105, s50, v105")
        e("v_and_b32 v107, 15, v0\nv_lshl_add_u32 v107, v106, 4, v107\nv_lshlrev_b32 v107, 4, v107\nv_lshlrev_b32 v106, 4, v106\nv_add_u32 v106, 0x200, v106")
        e("v_and_b32 v108, 16, v0\nv_cmp_eq_u32 vcc, 0, v108\nv_cndmask_b32 v106, v106, v107, vcc")
        e("s_mul_i32 s50, s%d, %d\ns_add_u32 s50, s50, 0x%x\nv_add_u32 v106, s50, v106" % (sC, 4 * 576, KVOP))
        a.wait(vm="z")
        e("v_permlane32_swap_b32 v32, v33\nv_permlane32_swap_b32 v34, v35\nv_add_f32 v32, v32, v33\nv_add_f32 v34, v34, v35")
        e("v_permlane16_swap_b32 v32, v34\nv_add_f32 v32, v32, v34")
        e("v_add_f32_dpp v32, v32, v32 row_ror:4 row_mask:0xf bank_mask:0xf\nv_add_f32_dpp v32, v32, v32 row_ror:8 row_mask:0xf bank_mask:0xf")
        e("v_cvt_pk_bf16_f32 v32, v32, v32")
        a.lds("ds_write_b16 v105, v32 offset:512")
        for i in range(1, 16):
            a.wait(vm=("kp", i))
            if i == 1 or i == 2: continue
            if i == 3:
                for (d, s) in ((0, 2), (1, 3)):
                    for h in (0, 2): e("v_pk_add_f32 %s, %s, %s" % (vr(XR + 4 * d + h, 2), vr(XR + 4 * d + h, 2), vr(XR + 4 * s + h, 2)))
            else:
                d = i & 1
                for h in (0, 2): e("v_pk_add_f32 %s, %s, %s" % (vr(XR + 4 * d + h, 2), vr(XR + 4 * d + h, 2), vr(XR + 4 * i + h, 2)))
        for h in (0, 2): e("v_pk_add_f32 %s, %s, %s" % (vr(XR + h, 2), vr(XR + h, 2), vr(XR + 4 + h, 2)))
        e("v_cvt_pk_bf16_f32 v%d, v%d, v%d\nv_cvt_pk_bf16_f32 v%d, v%d, v%d" % (XR, XR, XR + 1, XR + 1, XR + 2, XR + 3))
        a.lds("ds_write_b64 v104, %s" % vr(XR, 2))
        self.barrier()
        self.stamp(7)
        for i in range(4): a.lds("ds_read_b128 %s, v106 offset:%d" % (vr(80 + 4 * i, 4), 576 * i), ("o", i))
        e("s_lshl_b32 s50, s41, 2\ns_add_u32 s50, s50, s%d\ns_lshl_b32 s50, s50, 6\ns_lshl_b32 s51, s42, 2\ns_add_u32 s50, s50, s51" % sR)
        e("s_lshl_b32 s51, s%d, 1\ns_add_u32 s50, s50, s51\ns_add_u32 s50, s50, 32\ns_lshl_b32 s50, s50, 10" % sC)
        for hd in range(2):
            D = ACK + 16 * hd
            a.wait(lg=("o", 2 * hd + 1))
            e("v_mfma_f32_32x32x16_bf16 %s, %s, %s, 0" % (vr(D, 16), vr(80 + 8 * hd, 4), vr(112 + 4 * hd, 4)))
            e("v_mfma_f32_32x32x16_bf16 %s, %s, %s, %s" % (vr(D, 16), vr(84 + 8 * hd, 4), vr(120 + 4 * hd, 4), vr(D, 16)))
        for hd in range(2):
            D = ACK + 16 * hd
            e("v_add_f32 v%d, 0x358637bd, v%d\nv_rcp_f32 v%d, v%d" % (D + 8, D + 8, D + 8, D + 8))
            for i in range(4): e("v_pk_mul_f32 %s, %s, %s op_sel_hi:[1,0]" % (vr(D + 2 * i, 2), vr(D + 2 * i, 2), vr(D + 8, 2)))
            for i in range(4): e("v_cvt_pk_bf16_f32 v%d, v%d, v%d" % (D + 12 + i, D + 2 * i, D + 2 * i + 1))
            a.vmem("buffer_store_dwordx4 %s, v13, s[16:19], s50 offen offset:%d sc1" % (vr(D + 12, 4), 1024 * hd), "ost")
        e("s_lshl_b32 s55, s41, 7\ns_lshl_b32 s50, s42, 2\ns_add_u32 s55, s55, s50\ns_add_u32 s55, s55, 0x%x" % F2A_OFF)
        e("s_branch L_phase2")

    def typeB(self, st):
        a = self.a; e = a.e
        a.restore(st)
        a.label("L_typeB")
        e("v_lshrrev_b32 v16, 3, v0\nv_lshrrev_b32 v17, 4, v0\nv_and_b32 v18, 7, v0\nv_xor_b32 v17, v17, v18\nv_lshlrev_b32 v17, 4, v17\nv_lshl_add_u32 v16, v16, 11, v17")
        e("s_add_u32 s50, s44, s40\ns_and_b32 s50, s50, 7\ns_lshl_b32 s50, s50, 7\ns_lshl_b32 s51, s41, 17\ns_add_u32 s50, s50, s51\ns_sub_u32 s50, s50, 0x4000")
        e("v_add_u32 v16, s50, v16\nv_xor_b32 v17, 64, v16\nv_add_u32 v17, 0x400, v17")
        e("s_lshl_b32 s50, s40, 11\ns_add_u32 m0, s50, 0x%x\ns_nop 0" % (14 * SLOT))
        a.vmem("buffer_load_dwordx4 v16, s[8:11], 0 offen lds", "halo")
        e("s_add_u32 m0, s50, 0x%x\ns_nop 0" % (14 * SLOT + 1024))
        a.vmem("buffer_load_dwordx4 v17, s[8:11], 0 offen lds", "halo")
        self.dma_wk(1); self.dma_wv(0); self.dma_wq(0, WQ_B)
        self.dma_x(2, 0); self.dma_x(2, 1); self.dma_wk(2)
        l = self.lab("notag")
        e("s_lshl_b32 s50, s2, 3\ns_add_u32 s50, s50, s40\ns_cmp_eq_u32 s50, %d\ns_cbranch_scc0 %s" % (64 * 8 + 7, l))
        e("s_mov_b32 s50, 0x%x\ns_buffer_load_dword s50, s[16:19], s50\ns_waitcnt lgkmcnt(0)" % F1_OFF)
        e("s_add_u32 s50, s50, 0x%x\nv_mov_b32 v16, s50\nv_mov_b32 v17, 1\ns_mov_b64 exec, 1" % TAGC)
        e("buffer_store_dwordx2 v[16:17], off, s[36:39], 0 sc1\ns_mov_b64 exec, -1")
        a.label(l)
        self.setup2()
        e("v_and_b32 v16, 15, v0\nv_lshrrev_b32 v17, 4, v0\nv_bfe_u32 v18, v0, 1, 3\nv_xor_b32 v18, v17, v18\nv_lshlrev_b32 v18, 4, v18\nv_lshl_add_u32 v16, v16, 7, v18")
        e("v_add_u32 v10, 0x%x, v16\nv_xor_b32 v11, 64, v10" % (14 * SLOT))
        e("s_lshl_b32 s50, s42, 11\nv_add_u32 v110, s50, v16\nv_xor_b32 v111, 64, v110")
        e("v_lshlrev_b32 v112, 4, v17\nv_add_u32 v112, 0x%x, v112" % GATE)
        e("v_bfe_u32 v16, v0, 2, 2\nv_lshl_add_u32 v16, v17, 3, v16\nv_lshlrev_b32 v16, 7, v16")
        e("s_lshr_b32 s50, s%d, 1\nv_bfe_u32 v17, v0, 3, 1\nv_xor_b32 v17, s50, v17\nv_lshl_add_u32 v16, v17, 6, v16" % sR)
        e("s_and_b32 s50, s%d, 1\ns_lshl_b32 s50, s50, 5\nv_and_b32 v17, 3, v0\nv_lshl_add_u32 v16, v17, 3, v16\nv_add_u32 v12, s50, v16" % sR)
        ha = Addr(a, [12]); ga = Addr(a, [110, 111])
        NH = 3
        def halo_r(s, j, slot):
            if j & 1: return []
            kk = j >> 1; u = (2 * s + kk) % NH
            return ["ds_read_b128 %s, v%d offset:%d" % (vr(76 + 8 * u, 4), 10 + kk, s * 2048)] + \
                   ["ds_read_b64_tr_b16 %s, %s" % (vr(80 + 8 * u + 2 * tt, 2), ha.at(slot * SLOT + (32 * kk + 4 * tt) * 128)) for tt in (0, 1)]
        def gate_r(s, j, slot):
            if j & 1: return []
            kk = j >> 1; u = (2 * s + kk) % NH
            return ["ds_read_b128 %s, %s" % (vr(76 + 8 * u, 4), ga.at(3 * (s & 3) * SLOT, kk)),
                    "ds_read_b128 %s, v112 offset:%d" % (vr(80 + 8 * u, 4), s * 128 + kk * 64)]
        def small_m(acc):
            def f(s, j):
                if j & 1: return []
                u = (2 * s + (j >> 1)) % NH
                return ["v_mfma_f32_16x16x32_bf16 %s, %s, %s, %s" % (vr(acc, 4), vr(80 + 8 * u, 4), vr(76 + 8 * u, 4), vr(acc, 4) if (s or j) else "0")]
            return f
        self.stamp(1)
        e("s_cmp_eq_u32 s%d, 0\ns_cbranch_scc0 L_B1" % sC)
        st1 = a.state()
        vpre = {0: lambda: self.barrier(vm=("wv", 3)), 16: lambda: self.barrier(vm=("wv", 7))}
        vpost = {2 + 4 * i: [lambda i=i: self.dma_wq(3 + i, WQ_B)] for i in range(5)}
        vpost[24] = [lambda: self.dma_wo(11)]
        def kcvt():
            for i in range(8): e("v_cvt_pk_bf16_f32 v%d, v%d, v%d" % (100 + i, ACK + 2 * i, ACK + 2 * i + 1))
        vpost.setdefault(8, []).append(kcvt)
        self.kpass(WQ_B, halo_r, small_m(72))
        self.stamp(2)
        self.wpass(WV_SLOTS, ACV, 0, 32, pre=vpre, post=vpost, D=4)
        self.wa.rebase(2 * 49152)
        e("s_branch L_B_tail")
        st0 = a.state()
        a.restore(st1); self.xa.base = 0; self.wa.base = 0; ha.base = 0
        a.label("L_B1")
        self.kpass(WQ_B, gate_r, small_m(116))
        self.stamp(2)
        self.wpass(WV_SLOTS, ACV, 0, 32, pre=vpre, post=vpost, extra_r=halo_r, extra_m=small_m(72), D=4)
        l = self.lab("nog")
        e("s_cmp_eq_u32 s40, 4\ns_cbranch_scc0 %s" % l)
        e("v_mul_f32 v116, s52, v116\nv_exp_f32 v116, -v116\nv_add_f32 v116, 1.0, v116\nv_rcp_f32 v116, v116")
        e("s_lshl_b32 s50, s41, 9\ns_lshl_b32 s51, s42, 6\ns_add_u32 s50, s50, s51\ns_add_u32 s50, s50, 0x%x" % GP_OFF)
        e("v_lshlrev_b32 v117, 2, v0\ns_mov_b64 exec, 0xffff\nbuffer_store_dword v116, v117, s[16:19], s50 offen sc1\ns_mov_b64 exec, -1")
        a.label(l)
        self.wa.rebase(2 * 49152)
        assert a.state()[0] == st0[0]
        a.label("L_B_tail")
        KV = 14 * SLOT
        def after_v():
            self.barrier(vm=("wq", 7))
            self.stamp(3)
        def stage_kv():
            for i in range(8): e("v_cvt_pk_bf16_f32 v%d, v%d, v%d" % (108 + i, ACV + 2 * i, ACV + 2 * i + 1))
            e("v_cvt_pk_bf16_f32 v72, v72, v73\nv_cvt_pk_bf16_f32 v73, v74, v75")
            self.stage_addr(76)
            e("s_lshl_b32 s50, s%d, 13\nv_add_u32 v79, s50, v76" % sC)
            e("s_mul_i32 s50, s%d, 9216\ns_add_u32 s50, s50, 0x%x\nv_add_u32 v76, s50, v76\nv_xor_b32 v77, 32, v76" % (sC, KV + 1024))
            a.lds("ds_write_b128 v76, v[100:103]"); a.lds("ds_write_b128 v77, v[104:107]")
            a.lds("ds_write_b128 v76, v[108:111] offset:18432"); a.lds("ds_write_b128 v77, v[112:115] offset:18432")
            e("v_bfe_u32 v78, v0, 4, 1\nv_bfe_u32 v80, v0, 1, 2\nv_xor_b32 v78, v78, v80\ns_and_b32 s50, s%d, 1\ns_lshl_b32 s50, s50, 1\nv_xor_b32 v78, s50, v78" % sR)
            e("v_lshlrev_b32 v78, 4, v78\nv_and_b32 v80, 15, v0\nv_lshl_add_u32 v78, v80, 6, v78\nv_lshrrev_b32 v80, 5, v0\nv_lshl_add_u32 v78, v80, 3, v78")
            e("s_lshr_b32 s50, s%d, 1\ns_lshl_b32 s51, s%d, 1\ns_add_u32 s50, s50, s51\ns_mul_i32 s50, s50, 9216\ns_add_u32 s50, s50, 0x%x\nv_add_u32 v78, s50, v78" % (sR, sC, KV))
            a.lds("ds_write_b64 v78, v[72:73]")
        def consts():
            e("v_lshrrev_b32 v88, 4, v0\nv_lshlrev_b32 v88, 2, v88\nv_and_b32 v89, 7, v0\nv_sub_u32 v88, v88, v89\nv_mov_b32 v90, 0x%x" % NEG)
            for i in range(4):
                e("v_add_u32 v89, %d, v88\nv_cmp_gt_u32 vcc, 8, v89\nv_cndmask_b32 v%d, v90, 0, vcc" % (i - 1, 80 + i))
            e("s_or_b32 s50, s41, s%d\ns_cmp_eq_u32 s50, 0\ns_cselect_b32 s50, 32, 0\nv_cmp_gt_u32 vcc, s50, v0" % sR)
            for i in range(4): e("v_cndmask_b32 v%d, v%d, v90, vcc" % (84 + i, 80 + i))
            e("s_mul_i32 s54, s%d, 9216\ns_lshl_b32 s50, s%d, 11\ns_add_u32 s54, s54, s50\ns_add_u32 s54, s54, 0x%x" % (sC, sR, KV))
            e("v_and_b32 v88, 15, v0\nv_and_b32 v89, 8, v0\nv_add_u32 v88, v88, v89\nv_lshrrev_b32 v89, 4, v0\nv_bfe_u32 v90, v0, 1, 2\nv_xor_b32 v89, v89, v90\nv_lshlrev_b32 v89, 4, v89")
            e("v_and_b32 v91, 7, v0\nv_lshl_add_u32 v91, v91, 6, v89\nv_lshl_add_u32 v88, v88, 6, v89\nv_add_u32 v88, s54, v88")
            e("s_lshl_b32 s50, s%d, 13\ns_lshl_b32 s51, s%d, 11\ns_add_u32 s50, s50, s51\nv_add_u32 v91, s50, v91" % (sC, sR))
            self.tr_addr(89, 92, None, True)
            e("s_add_u32 s54, s54, 18432\nv_add_u32 v89, s54, v89\nv_xor_b32 v90, 32, v89")
            e("v_bfe_u32 v92, v0, 3, 1\nv_lshlrev_b32 v92, 6, v92\nv_and_b32 v93, 32, v0\nv_add_u32 v92, v92, v93\nv_bfe_u32 v93, v0, 4, 1\nv_lshl_add_u32 v92, v93, 3, v92")
            e("v_and_b32 v93, 7, v0\nv_add_u32 v92, v92, v93\nv_lshlrev_b32 v92, 4, v92")
            for i in range(4): e("v_mov_b32 v%d, 0x3f803f80" % (96 + i))
            for i in range(16): e("v_mov_b32 v%d, 0" % (ACV + i))
        post = {6: [stage_kv], 12: [consts], 20: [self.get_tag]}
        for i, g in enumerate((2, 3, 12)): post[1 + 2 * i + (i == 2) * 4] = [lambda g=g: self.dma_wo(g)]
        self.wpass(WQ_B, ACK, 0, 32, pre={0: after_v}, post=post)
        self.stamp(4)
        for i in range(16): e("v_mov_b32 v%d, 0" % (XR + i))
        for i in range(8): e("v_cvt_pk_bf16_f32 v%d, v%d, v%d" % (100 + i, ACK + 2 * i, ACK + 2 * i + 1))
        e("v_xor_b32 v78, 32, v79")
        a.lds("ds_write_b128 v79, v[100:103]"); a.lds("ds_write_b128 v78, v[104:107]")
        self.barrier()
        QF, KF, VF, S, PO, O = XR, XR + 16, XR + 32, XR + 48, ACV, XR + 64
        e("s_mov_b32 exec_lo, 0x00ff00ff\ns_mov_b32 exec_hi, 0xff00ff00")
        for u in range(4): a.lds("ds_read_b128 %s, v91 offset:%d" % (vr(QF + 4 * u, 4), 512 * u), ("q", u))
        e("s_mov_b64 exec, -1")
        for u in range(4): a.lds("ds_read_b128 %s, v88 offset:%d" % (vr(KF + 4 * u, 4), 512 * u), ("k", u))
        for u in range(4):
            for hd in range(2): a.lds("ds_read_b64_tr_b16 %s, v%d offset:%d" % (vr(VF + 4 * u + 2 * hd, 2), 89 + hd, 512 * u), "v")
        for u in range(4):
            a.wait(lg=("k", u))
            e("v_mfma_f32_16x16x32_bf16 %s, %s, %s, %s" % (vr(S + 4 * u, 4), vr(KF + 4 * u, 4), vr(QF + 4 * u, 4), vr(84 if u < 2 else 80, 4)))
        for g in (13, 4, 5, 6): self.dma_wo(g)
        M = 100
        for u in range(4): e("v_max3_f32 v%d, v%d, v%d, v%d" % (M + u, S + 4 * u, S + 4 * u + 1, S + 4 * u + 2))
        for u in range(4): e("v_max_f32 v%d, v%d, v%d" % (M + u, M + u, S + 4 * u + 3))
        e("v_permlane16_swap_b32 v100, v101\nv_permlane16_swap_b32 v102, v103\nv_max_f32 v100, v100, v101\nv_max_f32 v102, v102, v103")
        e("v_permlane32_swap_b32 v100, v102\nv_max_f32 v100, v100, v102")
        e("s_mov_b32 s52, 0x3EB8AA3B\ns_mov_b32 s53, 0x3EB8AA3B")
        e("v_mul_f32 v100, s52, v100\nv_mov_b32 v104, v100\nv_permlane32_swap_b32 v100, v104")
        e("v_mov_b32 v102, v100\nv_mov_b32 v106, v104\nv_permlane16_swap_b32 v100, v102\nv_permlane16_swap_b32 v104, v106")
        for u in range(4):
            for h in (0, 2):
                e("v_pk_fma_f32 %s, %s, s[52:53], %s op_sel_hi:[1,1,0] neg_lo:[0,0,1] neg_hi:[0,0,1]" % (vr(S + 4 * u + h, 2), vr(S + 4 * u + h, 2), vr(M + 2 * u, 2)))
        for i in range(16): e("v_exp_f32 v%d, v%d" % (S + i, S + i))
        for hd, mk in ((0, 0x00ff00ff), (1, 0xff00ff00)):
            e("s_mov_b32 exec_lo, 0x%x\ns_mov_b32 exec_hi, 0x%x" % (mk, mk))
            for u in range(4):
                for h in (0, 1): e("v_cvt_pk_bf16_f32 v%d, v%d, v%d" % (PO + 4 * u + 2 * hd + h, S + 4 * u + 2 * h, S + 4 * u + 2 * h + 1))
        e("s_mov_b64 exec, -1")
        a.wait(lg=0)
        e("s_barrier")
        for u in range(4):
            e("v_mfma_f32_16x16x32_bf16 %s, v[96:99], %s, 0" % (vr(O + 8 * u + 4, 4), vr(PO + 4 * u, 4)))
            e("v_mfma_f32_16x16x32_bf16 %s, %s, %s, 0" % (vr(O + 8 * u, 4), vr(VF + 4 * u, 4), vr(PO + 4 * u, 4)))
        e("s_lshl_b32 s50, s41, 2\ns_add_u32 s50, s50, s%d\ns_lshl_b32 s50, s50, 6\ns_lshl_b32 s51, s42, 2\ns_add_u32 s50, s50, s51" % sR)
        e("s_lshl_b32 s51, s%d, 1\ns_add_u32 s50, s50, s51\ns_lshl_b32 s54, s50, 10" % sC)
        for u in range(4): e("v_rcp_f32 v%d, v%d" % (O + 8 * u + 4, O + 8 * u + 4))
        for u in range(4):
            for h in (0, 2): e("v_pk_mul_f32 %s, %s, %s op_sel_hi:[1,0]" % (vr(O + 8 * u + h, 2), vr(O + 8 * u + h, 2), vr(O + 8 * u + 4, 2)))
        for u in range(4):
            for h in (0, 1): e("v_cvt_pk_bf16_f32 v%d, v%d, v%d" % (QF + 2 * u + h, O + 8 * u + 2 * h, O + 8 * u + 2 * h + 1))
        for sp in range(2):
            for h in (0, 1): e("v_permlane16_swap_b32 v%d, v%d" % (QF + 4 * sp + h, QF + 4 * sp + 2 + h))
            a.vmem("buffer_store_dwordx4 %s, v92, s[16:19], s54 offen offset:%d sc1" % (vr(QF + 4 * sp, 4), 256 * sp), "ost")
        for g in (7, 8, 9, 10, 0, 1, 14, 15): self.dma_wo(g)
        e("s_lshl_b32 s55, s41, 7\ns_lshl_b32 s50, s42, 2\ns_add_u32 s55, s55, s50\ns_add_u32 s55, s55, 0x%x" % F2B_OFF)
        self.stamp(5)
        a.wait(vm="ost")
        e("s_barrier")
        self.flag_store(55)
        e("s_mov_b32 s55, 0")

    def phase2(self):
        a = self.a; e = a.e
        a.label("L_phase2")
        e("s_and_b32 s84, s40, 1\ns_bfe_u32 s54, s40, 0x10001")
        e("v_bfe_u32 v16, v0, 2, 2\nv_lshrrev_b32 v17, 5, v0\nv_lshl_add_u32 v16, v17, 2, v16\nv_lshlrev_b32 v16, 7, v16")
        e("v_bfe_u32 v17, v0, 3, 1\nv_xor_b32 v17, s54, v17\nv_lshl_add_u32 v16, v17, 6, v16")
        e("v_bfe_u32 v17, v0, 4, 1\nv_lshl_add_u32 v16, v17, 5, v16\nv_and_b32 v17, 3, v0\nv_lshl_add_u32 v9, v17, 3, v16")
        e("s_lshr_b32 s50, s40, 1\ns_lshl_b32 s50, s50, 15\nv_add_u32 v9, s50, v9\nv_xor_b32 v10, 64, v9")
        e("v_and_b32 v11, 7, v0\nv_lshlrev_b32 v11, 2, v11")
        e("s_lshl_b32 s50, s45, 1\ns_add_u32 s50, s50, s84\ns_lshl_b32 s50, s50, 2\ns_lshr_b32 s51, s40, 1\ns_add_u32 s50, s50, s51\ns_lshl_b32 s50, s50, 14")
        for g in range(4):
            e("s_add_u32 s51, s45, %d\ns_and_b32 s51, s51, 3\ns_lshl_b32 s51, s51, 12\ns_add_u32 s%d, s50, s51" % (g, 64 + g))
        e("s_lshr_b32 s68, s45, 1\ns_lshl_b32 s68, s68, 7\ns_lshl_b32 s50, s85, 12\ns_add_u32 s68, s68, s50\ns_add_u32 s68, s68, 0x%x" % F2B_OFF)
        a.wait(vm=0, lg=0)
        e("s_barrier")
        l = self.lab("f2")
        e("s_cmp_eq_u32 s55, 0\ns_cbranch_scc1 %s" % l)
        self.flag_store(55)
        a.label(l)
        self.stamp(8)
        OFR = 48
        EX, BD = 16 * SLOT, 8 * SLOT
        def oloads():
            for i in range(16):
                a.vmem("buffer_load_dwordx4 %s, v13, s[16:19], s%d offen offset:%d sc1" % (vr(OFR + 4 * i, 4), 64 + i // 4, (i % 4) * 1024), ("of", i))
        def preread():
            for i in range(16):
                for t in range(2):
                    for tt in range(2):
                        a.lds("ds_read_b64_tr_b16 %s, v%d offset:%d" % (vr(XR + 8 * i + 4 * t + 2 * tt, 2), 9 + t, (16 * i + 8 * tt) * 128))
        def mfmas():
            for i in range(16):
                a.wait(vm=("of", i))
                for t in range(2):
                    e("v_mfma_f32_32x32x16_bf16 %s, %s, %s, %s" % (vr(ACK + 16 * t, 16), vr(XR + 8 * i + 4 * t, 4), vr(OFR + 4 * i, 4), vr(ACK + 16 * t, 16) if i else "0"))
        e("s_cmp_eq_u32 s85, 0\ns_cbranch_scc0 L_P2A")
        self.poll_issue(12, 11, 68, "p2")
        preread()
        self.poll_check(12, 11, 68, "p2")
        e("v_and_b32 v5, 31, v0\nv_lshlrev_b32 v5, 2, v5\ns_lshl_b32 s50, s45, 8\ns_lshl_b32 s51, s84, 7\ns_add_u32 s50, s50, s51\ns_add_u32 s50, s50, 0x%x" % GP_OFF)
        a.vmem("buffer_load_dword v6, v5, s[16:19], s50 offen sc1", "g")
        oloads()
        self.barrier()
        self.stamp(9)
        mfmas()
        e("v_add_u32 v5, s51, v5\nv_sub_f32 v8, 1.0, v6")
        e("v_add_u32 v5, 0x%x, v5" % GEX)
        a.lds("ds_write_b32 v5, v6")
        e("s_lshl_b32 s50, s54, 1\ns_add_u32 s50, s50, s84\ns_lshl_b32 s50, s50, 1\ns_add_u32 s50, s50, s54\ns_lshl_b32 s50, s50, 12\ns_add_u32 s50, s50, 0x%x" % BD)
        e("v_add_u32 v5, s50, v13\nv_xor_b32 v7, 0x1000, v5")
        for t in range(2):
            for i in range(8): e("v_pk_mul_f32 %s, %s, v[8:9] op_sel_hi:[1,0]" % (vr(ACK + 16 * t + 2 * i, 2), vr(ACK + 16 * t + 2 * i, 2)))
            for i in range(4): a.lds("ds_write_b128 v%d, %s offset:%d" % (5 + 2 * t, vr(ACK + 16 * t + 4 * i, 4), 1024 * i))
        self.barrier()
        self.stamp(10)
        e("s_branch L_fin")
        a.label("L_P2A")
        preread()
        self.barrier()
        self.poll_issue(12, 11, 68, "p2")
        e("s_lshl_b32 s50, s84, 1\ns_add_u32 s50, s50, s54\ns_lshl_b32 s50, s50, 12\nv_add_u32 v5, s50, v13")
        e("v_add_u32 v7, 0x%x, v5\nv_xor_b32 v6, 0x1000, v7\nv_add_u32 v5, 0x%x, v5" % (EX, BD))
        e("v_and_b32 v8, 31, v0\nv_lshlrev_b32 v8, 2, v8\ns_lshl_b32 s50, s84, 7\ns_add_u32 s50, s50, 0x%x\nv_add_u32 v8, s50, v8" % GEX)
        e("v_and_b32 v1, 16, v0\nv_and_b32 v2, 7, v0\nv_lshl_add_u32 v1, v2, 1, v1\nv_bfe_u32 v2, v0, 3, 1\nv_add_u32 v1, v1, v2\nv_lshlrev_b32 v1, 10, v1")
        e("v_lshrrev_b32 v2, 5, v0\nv_lshl_add_u32 v1, v2, 4, v1")
        e("s_lshl_b32 s69, s45, 1\ns_add_u32 s69, s69, s84\ns_lshl_b32 s69, s69, 15\ns_lshl_b32 s50, s46, 7\ns_add_u32 s69, s69, s50\ns_lshl_b32 s50, s54, 6\ns_add_u32 s69, s69, s50")
        self.poll_check(12, 11, 68, "p2")
        self.stamp(9)
        oloads()
        mfmas()
        for i in range(4): a.lds("ds_write_b128 v6, %s offset:%d" % (vr(ACV + 4 * i, 4), 1024 * i))
        self.barrier()
        self.stamp(10)
        a.lds("ds_read_b32 v10, v8", "g")
        for i in range(4):
            a.lds("ds_read_b128 %s, v7 offset:%d" % (vr(48 + 4 * i, 4), 1024 * i), ("x", i))
            a.lds("ds_read_b128 %s, v5 offset:%d" % (vr(64 + 4 * i, 4), 1024 * i), ("x", i))
            a.lds("ds_read_b128 %s, v5 offset:%d" % (vr(80 + 4 * i, 4), 16384 + 1024 * i), ("x", i))
        for i in range(4):
            a.wait(lg=("x", i))
            for h in (0, 2):
                r = 4 * i + h
                e("v_pk_add_f32 %s, %s, %s" % (vr(ACK + r, 2), vr(ACK + r, 2), vr(48 + r, 2)))
                e("v_pk_add_f32 %s, %s, %s" % (vr(64 + r, 2), vr(64 + r, 2), vr(80 + r, 2)))
            for h in (0, 2):
                r = 4 * i + h
                e("v_pk_fma_f32 %s, %s, v[10:11], %s op_sel_hi:[1,0,1]" % (vr(ACK + r, 2), vr(ACK + r, 2), vr(64 + r, 2)))
            for h in (0, 1): e("v_cvt_pk_bf16_f32 v%d, v%d, v%d" % (96 + 2 * i + h, ACK + 4 * i + 2 * h, ACK + 4 * i + 2 * h + 1))
            if i & 1:
                b = 96 + 4 * (i >> 1)
                e("v_permlane32_swap_b32 v%d, v%d\nv_permlane32_swap_b32 v%d, v%d" % (b, b + 2, b + 1, b + 3))
                a.vmem("buffer_store_dwordx4 %s, v1, s[28:31], s69 offen offset:%d" % (vr(b, 4), 32 * (i >> 1)))
        a.label("L_fin")
        if self.stamps:
            e("s_waitcnt vmcnt(0)")
            self.stamp(11)
            e("s_waitcnt lgkmcnt(0)")
            e("s_lshl_b32 s50, s2, 3\ns_add_u32 s50, s50, s40\ns_lshl_b32 s50, s50, 6\ns_add_u32 s50, s50, 0x%x" % STAMP_OFF)
            for i in range(12): e("v_mov_b32 v%d, s%d" % (16 + i, STAMPS[i]))
            e("s_mov_b64 exec, 1")
            for i in range(3): e("buffer_store_dwordx4 %s, off, s[16:19], s50 offset:%d" % (vr(16 + 4 * i, 4), 16 * i))
        a.label("L_end")
        e("s_endpgm")

    def build(self):
        if self.stamps:
            for r in STAMPS: self.a.e("s_mov_b64 %s, 0" % sr(r, 2))
        self.setup()
        st = self.a.state()
        self.typeA()
        self.typeB(st)
        self.phase2()
        lines, added = fix_hazards(self.a.lines)
        hdr = open("cdna_kernels/%s.s.ref" % KNAME).read().split("; Override launch")[0]
        out = hdr + "; @launch grid=(256,1,1) block=(512,1,1) lds=163840\n"
        out += '.amdgcn_target "amdgcn-amd-amdhsa--gfx950"\n.text\n.globl %s_kernel\n.p2align 8\n.type %s_kernel,@function\n%s_kernel:\n' % ((KNAME,) * 3)
        body = "\n".join(("" if l.endswith(":") else "    ") + l for l in lines)
        out += body + "\n"
        out += '.section .rodata,"a"\n.p2align 6\n.amdhsa_kernel %s_kernel\n' % KNAME
        out += "  .amdhsa_next_free_vgpr 256\n  .amdhsa_next_free_sgpr 102\n  .amdhsa_accum_offset 256\n  .amdhsa_group_segment_fixed_size 0\n  .amdhsa_kernarg_size 88\n"
        out += "  .amdhsa_user_sgpr_count 2\n  .amdhsa_user_sgpr_kernarg_segment_ptr 1\n  .amdhsa_system_sgpr_workgroup_id_x 1\n.end_amdhsa_kernel\n"
        return out

if __name__ == "__main__":
    stamps = "--stamps" in sys.argv
    outp = [x for x in sys.argv[1:] if not x.startswith("--")][0]
    open(outp, "w").write(Gen(stamps).build())
```

```python
import sys
from asmlib import *

KNAME = "gated_mix__linear_kernel_hedgehog__sliding_local_dilated__prompt"
SLOT = 8192
MISC = 19 * SLOT
WPHI = MISC
GATE = MISC
GEX = MISC + 2048
KVOP = MISC + 3072
OF_OFF = 0
KVP_OFF = 4 << 20
ZP_OFF = 5 << 20
GP_OFF = (5 << 20) + (128 << 10)
F1_OFF = (5 << 20) + (256 << 10)
F2B_OFF = F1_OFF + 4096
F2A_OFF = F1_OFF + 8192
STAMP_OFF = 192 << 20
LOG2E = 0x3FB8AA3B
NEG = 0xF149F2CA
TAGC = 0x9E3779B9

SX, SW, SWS, SWOA, SWOB, SOUT, SMISC, SDBG = 8, 12, 16, 20, 24, 28, 32, 36
sW, sRB, sGRP, sTYPE, sROT, sRT, sCT, sTAG, sWL, sOFF, sT0, sT1 = 40, 41, 42, 43, 44, 45, 46, 47, 48, 49, 50, 51
sL = 52
sT2, sT3 = 54, 55
sKX, sKW = 64, 72
sWOO = 80
sR, sC = 84, 85
STAMPS = [86, 88, 90, 92, 94, 96, 98, 100, 56, 58, 60, 62]

vL, vX0, vX1, vW, vWO = 0, 1, 2, 3, 4
vXA, vWA, vH0, vH1, vH2, vL16, vTG = 5, 9, 10, 11, 12, 13, 14
ACK, ACV, RING, XR = 16, 32, 48, 128

WV_SLOTS = [12, 16, 17, 18, 0, 1, 2, 3]
WQ_A = [13, 4, 5, 6, 7, 16, 17, 18]
WQ_B = [13, 4, 5, 6, 7, 8, 9, 10]

class Addr:
    def __init__(self, a, regs, base=0):
        self.a, self.regs, self.base = a, regs, base
    def rebase(self, nb):
        if nb != self.base:
            for r in self.regs:
                self.a.e("v_add_u32 v%d, 0x%x, v%d" % (r, (nb - self.base) & 0xffffffff, r))
            self.base = nb
    def at(self, off, i=0):
        if not (0 <= off - self.base <= 65535 - 15):
            self.rebase(off // 49152 * 49152)
        return "v%d offset:%d" % (self.regs[i], off - self.base)

class Gen:
    def __init__(self, stamps=False, sset=None):
        self.a = Asm()
        self.dbgout = "--dbgout" in sys.argv
        self.sset = sset or [str(i) for i in range(12)]
        self.stamps = stamps
        self.nl = 0
    def stamp(self, name):
        name = str(name)
        if name not in self.sset: return
        i = self.sset.index(name)
        if self.stamps: self.a.e("%s %s" % ("s_memtime" if self.stamps == 2 else "s_memrealtime", sr(STAMPS[i], 2)))
    def lab(self, p):
        self.nl += 1
        return "L_%s_%d" % (p, self.nl)

    def dma(self, slot, vaddr, srd, sbase, add, tag, ldsadd=0):
        a = self.a
        a.e("s_add_u32 m0, s%d, 0x%x" % (sWL, slot * SLOT + ldsadd))
        if add:
            a.e("s_add_u32 s%d, s%d, 0x%x" % (sOFF, sbase, add)); so = "s%d" % sOFF
        else:
            so = "s%d" % sbase
        a.vmem("buffer_load_dwordx4 v%d, %s, %s offen lds" % (vaddr, sr(srd, 4), so), tag)
    def dma_x(self, s, h): self.dma(3 * (s & 3) + h, vX0 + h, SX, sKX + s, 0, ("c", s))
    def dma_wk(self, s): self.dma(3 * (s & 3) + 2, vW, SW, sKW + s, 1024, ("c", s))
    def dma_wv(self, s): self.dma(WV_SLOTS[s], vW, SW, sKW + s, 2048, ("wv", s))
    def dma_wq(self, s, slots): self.dma(slots[s], vW, SW, sKW + s, 0, ("wq", s))
    def dma_wo(self, g): self.dma(g, vWO, SWOA if g >= 8 else SWOB, sWOO + (g & 3), ((g >> 2) & 1) * 262144, "wo")

    def gemm(self, n, D, reads, mfmas, pre={}, post={}):
        a = self.a
        for i in range(n + D):
            if i < n:
                if i in pre: pre[i]()
                for t in reads(i): a.lds(t, ("r", i))
            k = i - D
            if k >= 0:
                a.wait(lg=("r", k))
                for t in mfmas(k): a.e(t)
            for f in post.get(i, []): f()

    def barrier(self, vm=None):
        self.a.wait(vm=vm, lg=0)
        self.a.e("s_barrier")

    def setup(self):
        a = self.a; e = a.e
        self.stamp(0)
        e("s_cmp_ge_u32 s2, 256\ns_cbranch_scc1 L_end")
        e("s_load_dwordx16 s[64:79], s[0:1], 0")
        e("s_load_dwordx4 s[80:83], s[0:1], 64")
        e("s_load_dwordx2 s[84:85], s[0:1], 80")
        e("v_lshrrev_b32 v1, 6, v0\nv_and_b32 v0, 63, v0")
        e("s_and_b32 s50, s2, 7\ns_lshr_b32 s51, s2, 3")
        e("v_readfirstlane_b32 s%d, v1" % sW)
        e("s_and_b32 s41, s50, 1\ns_lshl_b32 s41, s41, 3\ns_and_b32 s54, s51, 7\ns_add_u32 s41, s41, s54")
        e("s_lshr_b32 s54, s51, 3")
        e("s_and_b32 s43, s54, 1")
        e("s_and_b32 s42, s50, 6\ns_lshr_b32 s55, s54, 1\ns_add_u32 s42, s42, s55")
        e("s_lshl_b32 s44, s54, 1\ns_add_u32 s44, s44, s41\ns_and_b32 s44, s44, 7")
        e("s_lshl_b32 s45, s50, 2\ns_and_b32 s55, s51, 3\ns_add_u32 s45, s45, s55")
        e("s_lshr_b32 s46, s51, 2")
        e("s_lshl_b32 s48, s40, 10")
        e("v_lshrrev_b32 v5, 3, v0\nv_lshrrev_b32 v6, 4, v0\nv_and_b32 v7, 7, v0")
        e("s_and_b32 s54, s40, 1\ns_lshl_b32 s55, s54, 2")
        e("v_add_u32 v8, s55, v6\nv_xor_b32 v8, v8, v7\nv_lshlrev_b32 v8, 4, v8")
        e("s_lshr_b32 s55, s40, 1\ns_lshl_b32 s55, s55, 4\ns_add_u32 s55, s55, s54\ns_lshl_b32 s55, s55, 10")
        e("v_lshl_add_u32 v1, v5, 11, v8\nv_add_u32 v1, s55, v1\nv_add_u32 v2, 0x10000, v1")
        e("v_and_b32 v6, 1, v6\nv_lshlrev_b32 v6, 2, v6\nv_xor_b32 v6, v6, v7\nv_lshlrev_b32 v6, 4, v6")
        e("s_lshl_b32 s55, s40, 3\nv_add_u32 v5, s55, v5")
        e("s_movk_i32 s55, 3072\nv_mad_u32_u24 v3, v5, s55, v6\nv_lshl_add_u32 v4, v5, 10, v6")
        e("v_lshlrev_b32 v13, 4, v0")
        e("s_waitcnt lgkmcnt(0)")
        e("s_cmp_eq_u32 s43, 0")
        e("s_mov_b32 s8, s64\ns_mov_b32 s9, s65\ns_mov_b32 s10, 0x200000\ns_mov_b32 s11, 0x20000")
        e("s_cselect_b32 s12, s66, s74\ns_cselect_b32 s13, s67, s75\ns_mov_b32 s14, 0x180000\ns_mov_b32 s15, 0x20000")
        e("s_cselect_b32 s32, s68, s78\ns_cselect_b32 s33, s69, s79\ns_cselect_b32 s34, 0x4000, 64\ns_mov_b32 s35, 0x20000")
        e("s_max_u32 s34, s34, 0x400")
        e("s_mov_b32 s16, s84\ns_mov_b32 s17, s85\ns_mov_b32 s18, 0x10000000\ns_mov_b32 s19, 0x20000")
        e("s_mov_b32 s20, s70\ns_mov_b32 s21, s71\ns_mov_b32 s22, 0x80000\ns_mov_b32 s23, 0x20000")
        e("s_mov_b32 s24, s76\ns_mov_b32 s25, s77\ns_mov_b32 s26, 0x80000\ns_mov_b32 s27, 0x20000")
        e("s_mov_b32 s28, s80\ns_mov_b32 s29, s81\ns_mov_b32 s30, 0x200000\ns_mov_b32 s31, 0x20000")
        e("s_mov_b32 s36, s82\ns_mov_b32 s37, s83\ns_mov_b32 s38, 0x100\ns_mov_b32 s39, 0x20000")
        e("s_lshl_b32 s54, s41, 17\ns_lshl_b32 s55, s42, 7")
        def kxw(s):
            e("s_add_u32 s50, s44, %d\ns_and_b32 s50, s50, 7" % s)
            e("s_lshl_b32 s%d, s50, 7\ns_add_u32 s%d, s%d, s54" % (sKX + s, sKX + s, sKX + s))
            e("s_mul_i32 s%d, s50, 0x30000\ns_add_u32 s%d, s%d, s55" % (sKW + s, sKW + s, sKW + s))
        kxw(0)
        self.dma_x(0, 0); self.dma_x(0, 1); self.dma_wk(0)
        kxw(1)
        self.dma_x(1, 0); self.dma_x(1, 1)
        for s in range(2, 8): kxw(s)
        l = self.lab("nopre")
        e("s_cmp_eq_u32 s40, 3\ns_cbranch_scc0 %s" % l)
        e("s_getpc_b64 s[4:5]")
        a.label("L_pc")
        e("s_lshl_b32 s50, s51, 10\nv_add_u32 v16, s50, v13\nv_min_u32 v16, L_end-L_pc-16, v16")
        e("global_load_dwordx4 v[124:127], v16, s[4:5]")
        a.label(l)
        l = self.lab("nomisc")
        e("s_sub_u32 s50, 2, s43\ns_cmp_lt_u32 s40, s50\ns_cbranch_scc0 %s" % l)
        e("s_lshl_b32 s50, s44, 7\nv_add_u32 v16, s50, v13\nv_and_b32 v16, 0x3ff, v16")
        e("s_lshl_b32 s50, s42, 11\ns_add_u32 s50, s50, s48\nv_add_u32 v17, s50, v13")
        e("s_cmp_eq_u32 s43, 0\ns_cselect_b64 vcc, -1, 0\nv_cndmask_b32 v16, v16, v17, vcc")
        e("s_add_u32 m0, s48, 0x%x\ns_nop 0\nbuffer_load_dwordx4 v16, s[32:35], 0 offen lds" % MISC)
        a.label(l)
        e("s_and_b32 s%d, s40, 3\ns_lshr_b32 s%d, s40, 2" % (sR, sC))
        e("s_cmp_eq_u32 s43, 0\ns_cbranch_scc0 L_typeB")

    def setup2(self):
        e = self.a.e
        e("s_mov_b32 s52, 0x%x\ns_mov_b32 s53, 0x%x" % (LOG2E, LOG2E))
        for g in range(4):
            e("s_add_u32 s50, s45, %d\ns_and_b32 s50, s50, 3\ns_lshl_b32 s50, s50, 16\ns_lshl_b32 s51, s46, 7\ns_add_u32 s%d, s50, s51" % (g, sWOO + g))
        e("v_and_b32 v16, 31, v0\nv_lshrrev_b32 v17, 5, v0\nv_bfe_u32 v18, v0, 1, 3\nv_xor_b32 v17, v17, v18\nv_lshlrev_b32 v17, 4, v17")
        e("s_lshl_b32 s50, s%d, 12\nv_lshl_add_u32 v5, v16, 7, v17\nv_add_u32 v5, s50, v5" % sR)
        e("v_xor_b32 v6, 32, v5\nv_xor_b32 v7, 64, v5\nv_xor_b32 v8, 0x60, v5")
        e("v_bfe_u32 v16, v0, 2, 2\nv_lshrrev_b32 v17, 5, v0\nv_lshl_add_u32 v16, v17, 3, v16\nv_lshlrev_b32 v16, 7, v16")
        e("v_bfe_u32 v17, v0, 3, 1\nv_xor_b32 v17, s%d, v17\nv_lshl_add_u32 v16, v17, 6, v16" % sC)
        e("v_bfe_u32 v17, v0, 4, 1\nv_lshl_add_u32 v16, v17, 5, v16\nv_and_b32 v17, 3, v0\nv_lshl_add_u32 v9, v17, 3, v16")
        self.xa = Addr(self.a, [5, 6, 7, 8]); self.wa = Addr(self.a, [9])

    def wreads(self, slot, j, t):
        r = RING + 4 * (t % 6)
        return ["ds_read_b64_tr_b16 %s, %s" % (vr(r + 2 * tt, 2), self.wa.at(slot * SLOT + (16 * j + 4 * tt) * 128)) for tt in (0, 1)]

    def kpass(self, wq, extra_r=None, extra_m=None):
        a = self.a
        def reads(i):
            s, j = divmod(i, 4)
            o = ["ds_read_b128 %s, %s" % (vr(XR + 4 * i, 4), self.xa.at(3 * (s & 3) * SLOT, j))]
            o += self.wreads(3 * (s & 3) + 2, j, i)
            if extra_r: o += extra_r(s, j, 3 * (s & 3) + 2)
            return o
        def mf(k):
            o = ["v_mfma_f32_32x32x16_bf16 %s, %s, %s, %s" % (vr(ACK, 16), vr(RING + 4 * (k % 6), 4), vr(XR + 4 * k, 4), vr(ACK, 16) if k else "0")]
            if extra_m: o += extra_m(*divmod(k, 4))
            return o
        pre = {4 * s: (lambda s=s: self.barrier(vm=[("c", s), "halo"])) for s in range(8)}
        post = {}
        for s in range(5):
            post[4 * s] = [lambda s=s: self.dma_x(s + 3, 0)]
            post[4 * s + 1] = [lambda s=s: self.dma_x(s + 3, 1)]
            post[4 * s + 2] = [lambda s=s: self.dma_wk(s + 3)]
        for g in range(3):
            post[20 + g] = [lambda g=g: self.dma_wv(1 + g)]
            post[24 + g] = [lambda g=g: self.dma_wv(4 + g)]
        post[28] = [lambda: self.dma_wv(7)]
        post[29] = [lambda: self.dma_wq(1, wq)]
        post[30] = [lambda: self.dma_wq(2, wq)]
        post[19] = [lambda: a.vmem("buffer_load_dwordx2 v[14:15], off, s[36:39], 0 sc1", "tag")]
        self.gemm(32, 2, reads, mf, pre, post)

    def wpass(self, slots, acc, lo, hi, pre={}, post={}, extra_r=None, extra_m=None, D=5):
        def reads(i):
            t = lo + i; s, j = divmod(t, 4)
            o = self.wreads(slots[s], j, t)
            if extra_r: o += extra_r(s, j, slots[s])
            return o
        def mf(k):
            t = lo + k
            o = ["v_mfma_f32_32x32x16_bf16 %s, %s, %s, %s" % (vr(acc, 16), vr(RING + 4 * (t % 6), 4), vr(XR + 4 * t, 4), vr(acc, 16) if t else "0")]
            if extra_m: o += extra_m(*divmod(t, 4))
            return o
        self.gemm(hi - lo, D, reads, mf, pre, post)

    def get_tag(self):
        a = self.a; e = a.e
        ok, rt = self.lab("tagok"), self.lab("tagrt")
        a.wait(vm="tag")
        e("s_mov_b32 s51, 0")
        a.label(rt)
        e("v_readfirstlane_b32 s50, v15\nv_readfirstlane_b32 s%d, v14" % sTAG)
        e("s_add_u32 s51, s51, 1\ns_cmp_lg_u32 s50, 0\ns_cbranch_scc1 %s" % ok)
        e("s_cmp_gt_u32 s51, 0x4000\ns_cbranch_scc1 %s" % ok)
        e("s_sleep 4\nbuffer_load_dwordx2 v[14:15], off, s[36:39], 0 sc1\ns_waitcnt vmcnt(0)\ns_branch %s" % rt)
        a.label(ok)

    def flag_store(self, soff):
        e = self.a.e
        l = self.lab("nf")
        e("s_cmp_eq_u32 s40, 0\ns_cbranch_scc0 %s" % l)
        e("s_mov_b64 exec, 1\nbuffer_store_dword v14, off, s[16:19], s%d sc1\ns_mov_b64 exec, -1" % soff)
        self.a.label(l)

    def poll_issue(self, vdst, vaddr, soff, tag):
        self.a.vmem("buffer_load_dword v%d, v%d, s[16:19], s%d offen sc1" % (vdst, vaddr, soff), tag)
    def poll_check(self, vdst, vaddr, soff, tag):
        a = self.a; e = a.e
        ok, rt = self.lab("pok"), self.lab("prt")
        a.wait(vm=tag)
        e("s_mov_b32 s51, 0")
        a.label(rt)
        e("v_cmp_ne_u32 vcc, s%d, v%d" % (sTAG, vdst))
        e("s_add_u32 s51, s51, 1\ns_cbranch_vccz %s" % ok)
        e("s_cmp_gt_u32 s51, 0x4000\ns_cbranch_scc1 %s" % ok)
        e("s_sleep 2\nbuffer_load_dword v%d, v%d, s[16:19], s%d offen sc1\ns_waitcnt vmcnt(0)\ns_branch %s" % (vdst, vaddr, soff, rt))
        a.label(ok)

    def phi(self, hooks={}, nm="pk"):
        e = self.a.e
        KB, EP, T, P = 80, 88, 104, 112
        def H(n):
            self.stamp("%s%d" % (nm, n))
            if n in hooks: hooks[n]()
            self.stamp("%s%db" % (nm, n))
        for i in range(8): e("v_cvt_pk_bf16_f32 v%d, v%d, v%d" % (KB + i, ACK + 2 * i, ACK + 2 * i + 1))
        e("v_mfma_f32_32x32x16_bf16 %s, v[72:75], %s, 0" % (vr(ACK, 16), vr(KB, 4)))
        e("v_mfma_f32_32x32x16_bf16 %s, v[76:79], %s, %s" % (vr(ACK, 16), vr(KB + 4, 4), vr(ACK, 16)))
        H(0)
        for (op, op2, d) in (("v_max3_f32", "v_max_f32", T), ("v_min3_f32", "v_min_f32", T + 2)):
            e("%s v%d, v%d, v%d, v%d" % (op, d, ACK, ACK + 1, ACK + 2))
            e("%s v%d, v%d, v%d, v%d" % (op, d + 1, ACK + 3, ACK + 4, ACK + 5))
        for i in range(2):
            for (op, d) in (("v_max3_f32", T), ("v_min3_f32", T + 2)):
                e("%s v%d, v%d, v%d, v%d" % (op, d, d, ACK + 6 + 4 * i, ACK + 7 + 4 * i))
                e("%s v%d, v%d, v%d, v%d" % (op, d + 1, d + 1, ACK + 8 + 4 * i, ACK + 9 + 4 * i))
        for (op, d) in (("v_max3_f32", T), ("v_min3_f32", T + 2)):
            e("%s v%d, v%d, v%d, v%d" % (op, d, d, ACK + 14, ACK + 15))
        e("v_max_f32 v%d, v%d, v%d\nv_min_f32 v%d, v%d, v%d" % (T, T, T + 1, T + 2, T + 2, T + 3))
        e("v_mul_f32 v%d, s52, v%d\nv_mul_f32 v%d, s52, v%d" % (T, T, T + 2, T + 2))
        for i in range(8):
            e("v_pk_fma_f32 %s, %s, s[52:53], %s op_sel_hi:[1,1,0] neg_lo:[0,0,1] neg_hi:[0,0,1]" % (vr(EP + 2 * i, 2), vr(ACK + 2 * i, 2), vr(T, 2)))
        for i in range(8):
            e("v_pk_fma_f32 %s, %s, s[52:53], %s op_sel_hi:[1,1,0] neg_lo:[1,0,0] neg_hi:[1,0,0]" % (vr(ACK + 2 * i, 2), vr(ACK + 2 * i, 2), vr(T + 2, 2)))
        H(1)
        for i in range(16): e("v_exp_f32 v%d, v%d" % (EP + i, EP + i))
        H(2)
        for i in range(16): e("v_exp_f32 v%d, v%d" % (ACK + i, ACK + i))
        H(3)
        for (src, d) in ((EP, KB), (ACK, KB + 4)):
            e("v_pk_add_f32 %s, %s, %s" % (vr(d, 2), vr(src, 2), vr(src + 2, 2)))
            e("v_pk_add_f32 %s, %s, %s" % (vr(d + 2, 2), vr(src + 4, 2), vr(src + 6, 2)))
        for i in range(2):
            for (src, d) in ((EP, KB), (ACK, KB + 4)):
                e("v_pk_add_f32 %s, %s, %s" % (vr(d, 2), vr(d, 2), vr(src + 8 + 4 * i, 2)))
                e("v_pk_add_f32 %s, %s, %s" % (vr(d + 2, 2), vr(d + 2, 2), vr(src + 10 + 4 * i, 2)))
        for d in (KB, KB + 4): e("v_pk_add_f32 %s, %s, %s" % (vr(d, 2), vr(d, 2), vr(d + 2, 2)))
        for d in (KB, KB + 4): e("v_add_f32 v%d, v%d, v%d" % (d, d, d + 1))
        for d in (KB, KB + 4): e("v_rcp_f32 v%d, v%d" % (d, d))
        for (src, d, o) in ((EP, KB, P), (ACK, KB + 4, P + 8)):
            for i in range(8):
                e("v_pk_mul_f32 %s, %s, %s op_sel_hi:[1,0]" % (vr(src + 2 * i, 2), vr(src + 2 * i, 2), vr(d, 2)))
            for i in range(8):
                e("v_cvt_pk_bf16_f32 v%d, v%d, v%d" % (o + i, src + 2 * i, src + 2 * i + 1))

    def stage_addr(self, d):
        e = self.a.e
        e("v_and_b32 v%d, 31, v0\nv_lshrrev_b32 v%d, 5, v0\nv_bfe_u32 v%d, v0, 1, 2" % (d, d + 1, d + 2))
        e("v_xor_b32 v%d, v%d, v%d\nv_lshlrev_b32 v%d, 4, v%d" % (d + 1, d + 1, d + 2, d + 1, d + 1))
        e("s_lshl_b32 s50, s%d, 11\nv_lshl_add_u32 v%d, v%d, 6, v%d\nv_add_u32 v%d, s50, v%d" % (sR, d, d, d + 1, d, d))

    def tr_addr(self, d, t, half_sgpr, rowskip):
        e = self.a.e
        e("v_lshrrev_b32 v%d, 2, v0" % d)
        e("v_bfe_u32 v%d, v0, 3, 2\nv_bfe_u32 v%d, v0, 1, 1\nv_xor_b32 v%d, v%d, v%d" % (t, t + 1, t, t, t + 1))
        if half_sgpr is not None:
            e("s_lshl_b32 s50, s%d, 1\nv_xor_b32 v%d, s50, v%d" % (half_sgpr, t, t))
        if rowskip:
            e("v_and_b32 v%d, 8, v%d\nv_add_u32 v%d, v%d, v%d" % (t + 1, d, d, d, t + 1))
        e("v_lshlrev_b32 v%d, 6, v%d\nv_lshl_add_u32 v%d, v%d, 4, v%d" % (d, d, d, t, d))
        e("v_and_b32 v%d, 1, v0\nv_lshl_add_u32 v%d, v%d, 3, v%d" % (t, d, t, d))

    def typeA(self):
        a = self.a; e = a.e
        self.dma_wv(0); self.dma_wq(0, WQ_A); self.dma_wk(1)
        self.dma_x(2, 0); self.dma_x(2, 1); self.dma_wk(2)
        self.setup2()
        self.stage_addr(16)
        e("s_lshl_b32 s50, s%d, 13\ns_add_u32 s50, s50, 0x%x\nv_add_u32 v11, s50, v16" % (sC, 14 * SLOT))
        e("v_lshrrev_b32 v17, 5, v0\nv_lshlrev_b32 v18, 4, v17\nv_xor_b32 v16, v16, v18\nv_lshl_add_u32 v16, v17, 13, v16")
        e("s_lshl_b32 s50, s%d, 14\ns_add_u32 s50, s50, 0x%x\nv_add_u32 v10, s50, v16" % (sC, 8 * SLOT))
        e("v_and_b32 v16, 1, v0\nv_lshlrev_b32 v16, 9, v16")
        e("v_bfe_u32 v17, v0, 2, 2\nv_lshrrev_b32 v18, 5, v0\nv_lshl_add_u32 v17, v18, 2, v17\nv_lshl_add_u32 v16, v17, 5, v16")
        e("v_bfe_u32 v17, v0, 4, 1\nv_lshl_add_u32 v16, v17, 4, v16\nv_bfe_u32 v17, v0, 1, 1\nv_lshl_add_u32 v16, v17, 3, v16")
        e("s_lshl_b32 s50, s%d, 10\ns_add_u32 s50, s50, 0x%x\nv_add_u32 v12, s50, v16" % (sC, WPHI))
        self.stamp(1)
        self.kpass(WQ_A)
        self.stamp(2)
        a.lds("ds_read_b64_tr_b16 v[72:73], v12"); a.lds("ds_read_b64_tr_b16 v[74:75], v12 offset:256")
        self.wa.rebase(2 * 49152)
        self.barrier(vm=("wv", 3))
        self.stamp("bv1")
        e("v_and_b32 v80, 4, v0\nv_cmp_eq_u32 vcc, 0, v80")
        for i in range(4): e("v_cndmask_b32 v%d, v%d, 0, vcc" % (76 + i, 72 + i))
        for i in range(4): e("v_cndmask_b32 v%d, 0, v%d, vcc" % (72 + i, 72 + i))
        e("s_cmp_eq_u32 s%d, 0\ns_cbranch_scc0 L_A1" % sC)
        st = a.state(); wb = self.wa.base
        def phi_write():
            e("v_xor_b32 v104, 16, v10\nv_xor_b32 v105, 32, v10\nv_xor_b32 v106, 48, v10")
            for ch, r in enumerate((10, 104, 105, 106)):
                a.lds("ds_write_b128 v%d, %s" % (r, vr(112 + 4 * ch, 4)))
        def v_write():
            for i in range(8): e("v_cvt_pk_bf16_f32 v%d, v%d, v%d" % (80 + i, ACV + 2 * i, ACV + 2 * i + 1))
            e("v_xor_b32 v107, 32, v11")
            a.lds("ds_write_b128 v11, v[80:83]"); a.lds("ds_write_b128 v107, v[84:87]")
        self.phi({0: lambda: (self.dma_wq(3, WQ_A), self.dma_wq(4, WQ_A)), 3: lambda: self.barrier(vm=("wv", 7))})
        self.stamp("pkend")
        phi_write()
        self.stamp("v0")
        self.wpass(WV_SLOTS, ACV, 0, 32)
        self.stamp("v1")
        v_write()
        self.stamp("mend")
        self.wa.rebase(2 * 49152)
        e("s_branch L_A_tail")
        st0 = a.state()
        a.restore(st); self.wa.base = wb
        a.label("L_A1")
        self.stamp("v0")
        self.wpass(WV_SLOTS, ACV, 0, 32, pre={16: lambda: self.barrier(vm=("wv", 7))},
                   post={6: [lambda: self.dma_wq(3, WQ_A)], 10: [lambda: self.dma_wq(4, WQ_A)]})
        self.stamp("v1")
        v_write()
        self.phi()
        self.stamp("pkend")
        phi_write()
        self.stamp("mend")
        self.wa.rebase(2 * 49152)
        assert a.state()[0] == st0[0], (a.state(), st0)
        a.label("L_A_tail")
        e("s_and_b32 s54, s40, 1\ns_lshr_b32 s55, s40, 1")
        self.tr_addr(104, 106, sT2, False)
        e("s_lshl_b32 s50, s55, 13\ns_add_u32 s50, s50, 0x%x\nv_add_u32 v104, s50, v104" % (8 * SLOT))
        e("s_and_b32 s54, s55, 1")
        self.tr_addr(105, 106, sT2, False)
        e("s_lshl_b32 s50, s%d, 13\ns_add_u32 s50, s50, 0x%x\nv_add_u32 v105, s50, v105" % (sC, 14 * SLOT))
        for i in range(4): e("v_mov_b32 v%d, 0x3f803f80" % (108 + i))
        self.get_tag()
        self.barrier(vm=("wq", 4))
        self.stamp(3)
        for m in range(4):
            for t in range(2): a.lds("ds_read_b64_tr_b16 %s, v104 offset:%d" % (vr(ACK + 8 * m + 2 * t, 2), m * 2048 + t * 1024), ("k", m))
            for t in range(2): a.lds("ds_read_b64_tr_b16 %s, v105 offset:%d" % (vr(ACK + 8 * m + 4 + 2 * t, 2), m * 2048 + t * 1024), ("k", m))
        e("s_lshl_b32 s54, s42, 3\ns_add_u32 s54, s54, s40\ns_lshl_b32 s54, s54, 4")
        e("s_add_u32 s55, s54, s41\ns_lshl_b32 s50, s55, 10\ns_add_u32 s50, s50, 0x%x" % KVP_OFF)
        e("s_lshl_b32 s51, s55, 6\ns_add_u32 s51, s51, 0x%x" % ZP_OFF)
        for m in range(4):
            a.wait(lg=("k", m))
            e("v_mfma_f32_16x16x32_bf16 v[80:83], %s, %s, %s" % (vr(ACK + 8 * m, 4), vr(ACK + 8 * m + 4, 4), "v[80:83]" if m else "0"))
            e("v_mfma_f32_16x16x32_bf16 v[84:87], %s, v[108:111], %s" % (vr(ACK + 8 * m, 4), "v[84:87]" if m else "0"))
        a.vmem("buffer_store_dwordx4 v[80:83], v13, s[16:19], s50 offen sc1", "kvst")
        e("s_mov_b64 exec, 0x10001\ns_mov_b32 exec_hi, 0x10001")
        a.vmem("buffer_store_dwordx4 v[84:87], v0, s[16:19], s51 offen sc1", "kvst")
        e("s_mov_b64 exec, -1")
        self.stamp(4)
        e("s_lshl_b32 s55, s42, 7\ns_add_u32 s55, s55, 0x%x" % F1_OFF)
        def bq2():
            self.barrier(vm=["kvst", ("wq", 7)])
            e("s_lshl_b32 s50, s41, 2\ns_add_u32 s50, s50, s55")
            self.flag_store(50)
        post = {0: [lambda: self.dma_wq(5, WQ_A)], 1: [lambda: self.dma_wq(6, WQ_A)], 2: [lambda: self.dma_wq(7, WQ_A)]}
        for i, g in enumerate((12, 0, 1, 2, 3)): post[6 + 3 * i] = [lambda g=g: self.dma_wo(g)]
        for i, g in enumerate((8, 9, 10, 11, 14, 15)): post[21 + 2 * i] = [lambda g=g: self.dma_wo(g)]
        self.wpass(WQ_A, ACK, 0, 32, pre={20: bq2}, post=post)
        self.stamp(5)
        e("v_and_b32 v104, 15, v0\nv_lshlrev_b32 v108, 2, v104")
        def bulk():
            self.poll_check(109, 108, sT3, "p1")
            self.stamp(6)
            e("s_lshl_b32 s50, s54, 6\ns_add_u32 s50, s50, 0x%x" % ZP_OFF)
            a.vmem("buffer_load_dwordx4 v[32:35], v13, s[16:19], s50 offen sc1", "z")
            e("s_lshl_b32 s54, s54, 10\ns_add_u32 s54, s54, 0x%x" % KVP_OFF)
            for i in range(16):
                if i % 4 == 0 and i: e("s_add_u32 s54, s54, 4096")
                a.vmem("buffer_load_dwordx4 %s, v13, s[16:19], s54 offen offset:%d sc1" % (vr(XR + 4 * i, 4), (i % 4) * 1024), ("kp", i))
        self.phi({0: lambda: (self.poll_issue(109, 108, sT3, "p1"), e("s_barrier")), 3: bulk}, nm="pq")
        for g in (13, 4, 5, 6, 7): self.dma_wo(g)
        for b in (112, 120):
            for i in range(4): e("v_permlane32_swap_b32 v%d, v%d" % (b + i, b + 4 + i))
        e("s_mul_i32 s50, s40, 576\ns_add_u32 s50, s50, 0x%x" % KVOP)
        e("v_and_b32 v104, 3, v0\nv_bfe_u32 v105, v0, 2, 1\nv_lshl_add_u32 v104, v105, 3, v104\nv_bfe_u32 v105, v0, 3, 1\nv_lshl_add_u32 v104, v105, 2, v104")
        e("v_lshrrev_b32 v105, 5, v0\nv_lshl_add_u32 v104, v105, 4, v104\nv_lshlrev_b32 v104, 4, v104\nv_bfe_u32 v105, v0, 4, 1\nv_lshl_add_u32 v104, v105, 3, v104")
        e("v_add_u32 v104, s50, v104")
        e("v_and_b32 v105, 3, v0\nv_lshlrev_b32 v105, 2, v105\nv_bfe_u32 v106, v0, 4, 1\nv_lshl_add_u32 v105, v106, 1, v105\nv_lshrrev_b32 v106, 5, v0\nv_add_u32 v105, v105, v106")
        e("v_lshlrev_b32 v105, 1, v105\nv_add_u32 v105, s50, v105")
        e("v_and_b32 v107, 15, v0\nv_lshl_add_u32 v107, v106, 4, v107\nv_lshlrev_b32 v107, 4, v107\nv_lshlrev_b32 v106, 4, v106\nv_add_u32 v106, 0x200, v106")
        e("v_and_b32 v108, 16, v0\nv_cmp_eq_u32 vcc, 0, v108\nv_cndmask_b32 v106, v106, v107, vcc")
        e("s_mul_i32 s50, s%d, %d\ns_add_u32 s50, s50, 0x%x\nv_add_u32 v106, s50, v106" % (sC, 4 * 576, KVOP))
        a.wait(vm="z")
        e("v_permlane32_swap_b32 v32, v33\nv_permlane32_swap_b32 v34, v35\nv_add_f32 v32, v32, v33\nv_add_f32 v34, v34, v35")
        e("v_permlane16_swap_b32 v32, v34\nv_add_f32 v32, v32, v34")
        e("v_add_f32_dpp v32, v32, v32 row_ror:4 row_mask:0xf bank_mask:0xf\nv_add_f32_dpp v32, v32, v32 row_ror:8 row_mask:0xf bank_mask:0xf")
        e("v_cvt_pk_bf16_f32 v32, v32, v32")
        a.lds("ds_write_b16 v105, v32 offset:512")
        for i in range(1, 16):
            a.wait(vm=("kp", i))
            if i == 1 or i == 2: continue
            if i == 3:
                for (d, s) in ((0, 2), (1, 3)):
                    for h in (0, 2): e("v_pk_add_f32 %s, %s, %s" % (vr(XR + 4 * d + h, 2), vr(XR + 4 * d + h, 2), vr(XR + 4 * s + h, 2)))
            else:
                d = i & 1
                for h in (0, 2): e("v_pk_add_f32 %s, %s, %s" % (vr(XR + 4 * d + h, 2), vr(XR + 4 * d + h, 2), vr(XR + 4 * i + h, 2)))
        for h in (0, 2): e("v_pk_add_f32 %s, %s, %s" % (vr(XR + h, 2), vr(XR + h, 2), vr(XR + 4 + h, 2)))
        e("v_cvt_pk_bf16_f32 v%d, v%d, v%d\nv_cvt_pk_bf16_f32 v%d, v%d, v%d" % (XR, XR, XR + 1, XR + 1, XR + 2, XR + 3))
        a.lds("ds_write_b64 v104, %s" % vr(XR, 2))
        self.barrier()
        self.stamp(7)
        for i in range(4): a.lds("ds_read_b128 %s, v106 offset:%d" % (vr(80 + 4 * i, 4), 576 * i), ("o", i))
        e("s_lshl_b32 s50, s41, 2\ns_add_u32 s50, s50, s%d\ns_lshl_b32 s50, s50, 6\ns_lshl_b32 s51, s42, 2\ns_add_u32 s50, s50, s51" % sR)
        e("s_lshl_b32 s51, s%d, 1\ns_add_u32 s50, s50, s51\ns_add_u32 s50, s50, 32\ns_lshl_b32 s50, s50, 10" % sC)
        for hd in range(2):
            D = ACK + 16 * hd
            a.wait(lg=("o", 2 * hd + 1))
            e("v_mfma_f32_32x32x16_bf16 %s, %s, %s, 0" % (vr(D, 16), vr(80 + 8 * hd, 4), vr(112 + 4 * hd, 4)))
            e("v_mfma_f32_32x32x16_bf16 %s, %s, %s, %s" % (vr(D, 16), vr(84 + 8 * hd, 4), vr(120 + 4 * hd, 4), vr(D, 16)))
        for hd in range(2):
            D = ACK + 16 * hd
            e("v_add_f32 v%d, 0x358637bd, v%d\nv_rcp_f32 v%d, v%d" % (D + 8, D + 8, D + 8, D + 8))
            for i in range(4): e("v_pk_mul_f32 %s, %s, %s op_sel_hi:[1,0]" % (vr(D + 2 * i, 2), vr(D + 2 * i, 2), vr(D + 8, 2)))
            for i in range(4): e("v_cvt_pk_bf16_f32 v%d, v%d, v%d" % (D + 12 + i, D + 2 * i, D + 2 * i + 1))
            a.vmem("buffer_store_dwordx4 %s, v13, s[16:19], s50 offen offset:%d sc1" % (vr(D + 12, 4), 1024 * hd), "ost")
        e("s_lshl_b32 s55, s41, 7\ns_lshl_b32 s50, s42, 2\ns_add_u32 s55, s55, s50\ns_add_u32 s55, s55, 0x%x" % F2A_OFF)
        e("s_branch L_phase2")

    def typeB(self, st):
        a = self.a; e = a.e
        a.restore(st)
        a.label("L_typeB")
        e("v_lshrrev_b32 v16, 3, v0\nv_lshrrev_b32 v17, 4, v0\nv_and_b32 v18, 7, v0\nv_xor_b32 v17, v17, v18\nv_lshlrev_b32 v17, 4, v17\nv_lshl_add_u32 v16, v16, 11, v17")
        e("s_add_u32 s50, s44, s40\ns_and_b32 s50, s50, 7\ns_lshl_b32 s50, s50, 7\ns_lshl_b32 s51, s41, 17\ns_add_u32 s50, s50, s51\ns_sub_u32 s50, s50, 0x4000")
        e("v_add_u32 v16, s50, v16\nv_xor_b32 v17, 64, v16\nv_add_u32 v17, 0x400, v17")
        e("s_lshl_b32 s50, s40, 11\ns_add_u32 m0, s50, 0x%x\ns_nop 0" % (14 * SLOT))
        a.vmem("buffer_load_dwordx4 v16, s[8:11], 0 offen lds", "halo")
        e("s_add_u32 m0, s50, 0x%x\ns_nop 0" % (14 * SLOT + 1024))
        a.vmem("buffer_load_dwordx4 v17, s[8:11], 0 offen lds", "halo")
        self.dma_wk(1); self.dma_wv(0); self.dma_wq(0, WQ_B)
        self.dma_x(2, 0); self.dma_x(2, 1); self.dma_wk(2)
        l = self.lab("notag")
        e("s_lshl_b32 s50, s2, 3\ns_add_u32 s50, s50, s40\ns_cmp_eq_u32 s50, %d\ns_cbranch_scc0 %s" % (64 * 8 + 7, l))
        e("s_mov_b32 s50, 0x%x\ns_buffer_load_dword s50, s[16:19], s50\ns_waitcnt lgkmcnt(0)" % F1_OFF)
        e("s_add_u32 s50, s50, 0x%x\nv_mov_b32 v16, s50\nv_mov_b32 v17, 1\ns_mov_b64 exec, 1" % TAGC)
        e("buffer_store_dwordx2 v[16:17], off, s[36:39], 0 sc1\ns_mov_b64 exec, -1")
        a.label(l)
        self.setup2()
        e("v_and_b32 v16, 15, v0\nv_lshrrev_b32 v17, 4, v0\nv_bfe_u32 v18, v0, 1, 3\nv_xor_b32 v18, v17, v18\nv_lshlrev_b32 v18, 4, v18\nv_lshl_add_u32 v16, v16, 7, v18")
        e("v_add_u32 v10, 0x%x, v16\nv_xor_b32 v11, 64, v10" % (14 * SLOT))
        e("s_lshl_b32 s50, s42, 11\nv_add_u32 v110, s50, v16\nv_xor_b32 v111, 64, v110")
        e("v_lshlrev_b32 v112, 4, v17\nv_add_u32 v112, 0x%x, v112" % GATE)
        e("v_bfe_u32 v16, v0, 2, 2\nv_lshl_add_u32 v16, v17, 3, v16\nv_lshlrev_b32 v16, 7, v16")
        e("s_lshr_b32 s50, s%d, 1\nv_bfe_u32 v17, v0, 3, 1\nv_xor_b32 v17, s50, v17\nv_lshl_add_u32 v16, v17, 6, v16" % sR)
        e("s_and_b32 s50, s%d, 1\ns_lshl_b32 s50, s50, 5\nv_and_b32 v17, 3, v0\nv_lshl_add_u32 v16, v17, 3, v16\nv_add_u32 v12, s50, v16" % sR)
        ha = Addr(a, [12]); ga = Addr(a, [110, 111])
        NH = 3
        def halo_r(s, j, slot):
            if j & 1: return []
            kk = j >> 1; u = (2 * s + kk) % NH
            return ["ds_read_b128 %s, v%d offset:%d" % (vr(76 + 8 * u, 4), 10 + kk, s * 2048)] + \
                   ["ds_read_b64_tr_b16 %s, %s" % (vr(80 + 8 * u + 2 * tt, 2), ha.at(slot * SLOT + (32 * kk + 4 * tt) * 128)) for tt in (0, 1)]
        def gate_r(s, j, slot):
            if j & 1: return []
            kk = j >> 1; u = (2 * s + kk) % NH
            return ["ds_read_b128 %s, %s" % (vr(76 + 8 * u, 4), ga.at(3 * (s & 3) * SLOT, kk)),
                    "ds_read_b128 %s, v112 offset:%d" % (vr(80 + 8 * u, 4), s * 128 + kk * 64)]
        def small_m(acc):
            def f(s, j):
                if j & 1: return []
                u = (2 * s + (j >> 1)) % NH
                return ["v_mfma_f32_16x16x32_bf16 %s, %s, %s, %s" % (vr(acc, 4), vr(80 + 8 * u, 4), vr(76 + 8 * u, 4), vr(acc, 4) if (s or j) else "0")]
            return f
        self.stamp(1)
        e("s_cmp_eq_u32 s%d, 0\ns_cbranch_scc0 L_B1" % sC)
        st1 = a.state()
        vpre = {0: lambda: self.barrier(vm=("wv", 3)), 16: lambda: self.barrier(vm=("wv", 7))}
        vpost = {2 + 4 * i: [lambda i=i: self.dma_wq(3 + i, WQ_B)] for i in range(5)}
        vpost[24] = [lambda: self.dma_wo(11)]
        def kcvt():
            for i in range(8): e("v_cvt_pk_bf16_f32 v%d, v%d, v%d" % (100 + i, ACK + 2 * i, ACK + 2 * i + 1))
        vpost.setdefault(8, []).append(kcvt)
        self.kpass(WQ_B, halo_r, small_m(72))
        self.stamp(2)
        self.wpass(WV_SLOTS, ACV, 0, 32, pre=vpre, post=vpost, D=4)
        self.wa.rebase(2 * 49152)
        e("s_branch L_B_tail")
        st0 = a.state()
        a.restore(st1); self.xa.base = 0; self.wa.base = 0; ha.base = 0
        a.label("L_B1")
        self.kpass(WQ_B, gate_r, small_m(116))
        self.stamp(2)
        self.wpass(WV_SLOTS, ACV, 0, 32, pre=vpre, post=vpost, extra_r=halo_r, extra_m=small_m(72), D=4)
        l = self.lab("nog")
        e("s_cmp_eq_u32 s40, 4\ns_cbranch_scc0 %s" % l)
        e("v_mul_f32 v116, s52, v116\nv_exp_f32 v116, -v116\nv_add_f32 v116, 1.0, v116\nv_rcp_f32 v116, v116")
        e("s_lshl_b32 s50, s41, 9\ns_lshl_b32 s51, s42, 6\ns_add_u32 s50, s50, s51\ns_add_u32 s50, s50, 0x%x" % GP_OFF)
        e("v_lshlrev_b32 v117, 2, v0\ns_mov_b64 exec, 0xffff\nbuffer_store_dword v116, v117, s[16:19], s50 offen sc1\ns_mov_b64 exec, -1")
        a.label(l)
        self.wa.rebase(2 * 49152)
        assert a.state()[0] == st0[0]
        a.label("L_B_tail")
        KV = 14 * SLOT
        def after_v():
            self.barrier(vm=("wq", 7))
            self.stamp(3)
        def stage_kv():
            for i in range(8): e("v_cvt_pk_bf16_f32 v%d, v%d, v%d" % (108 + i, ACV + 2 * i, ACV + 2 * i + 1))
            e("v_cvt_pk_bf16_f32 v72, v72, v73\nv_cvt_pk_bf16_f32 v73, v74, v75")
            self.stage_addr(76)
            e("s_lshl_b32 s50, s%d, 13\nv_add_u32 v79, s50, v76" % sC)
            e("s_mul_i32 s50, s%d, 9216\ns_add_u32 s50, s50, 0x%x\nv_add_u32 v76, s50, v76\nv_xor_b32 v77, 32, v76" % (sC, KV + 1024))
            a.lds("ds_write_b128 v76, v[100:103]"); a.lds("ds_write_b128 v77, v[104:107]")
            a.lds("ds_write_b128 v76, v[108:111] offset:18432"); a.lds("ds_write_b128 v77, v[112:115] offset:18432")
            e("v_bfe_u32 v78, v0, 4, 1\nv_bfe_u32 v80, v0, 1, 2\nv_xor_b32 v78, v78, v80\ns_and_b32 s50, s%d, 1\ns_lshl_b32 s50, s50, 1\nv_xor_b32 v78, s50, v78" % sR)
            e("v_lshlrev_b32 v78, 4, v78\nv_and_b32 v80, 15, v0\nv_lshl_add_u32 v78, v80, 6, v78\nv_lshrrev_b32 v80, 5, v0\nv_lshl_add_u32 v78, v80, 3, v78")
            e("s_lshr_b32 s50, s%d, 1\ns_lshl_b32 s51, s%d, 1\ns_add_u32 s50, s50, s51\ns_mul_i32 s50, s50, 9216\ns_add_u32 s50, s50, 0x%x\nv_add_u32 v78, s50, v78" % (sR, sC, KV))
            a.lds("ds_write_b64 v78, v[72:73]")
        def consts():
            e("v_lshrrev_b32 v88, 4, v0\nv_lshlrev_b32 v88, 2, v88\nv_and_b32 v89, 7, v0\nv_sub_u32 v88, v88, v89\nv_mov_b32 v90, 0x%x" % NEG)
            for i in range(4):
                e("v_add_u32 v89, %d, v88\nv_cmp_gt_u32 vcc, 8, v89\nv_cndmask_b32 v%d, v90, 0, vcc" % (i - 1, 80 + i))
            e("s_or_b32 s50, s41, s%d\ns_cmp_eq_u32 s50, 0\ns_cselect_b32 s50, 32, 0\nv_cmp_gt_u32 vcc, s50, v0" % sR)
            for i in range(4): e("v_cndmask_b32 v%d, v%d, v90, vcc" % (84 + i, 80 + i))
            e("s_mul_i32 s54, s%d, 9216\ns_lshl_b32 s50, s%d, 11\ns_add_u32 s54, s54, s50\ns_add_u32 s54, s54, 0x%x" % (sC, sR, KV))
            e("v_and_b32 v88, 15, v0\nv_and_b32 v89, 8, v0\nv_add_u32 v88, v88, v89\nv_lshrrev_b32 v89, 4, v0\nv_bfe_u32 v90, v0, 1, 2\nv_xor_b32 v89, v89, v90\nv_lshlrev_b32 v89, 4, v89")
            e("v_and_b32 v91, 7, v0\nv_lshl_add_u32 v91, v91, 6, v89\nv_lshl_add_u32 v88, v88, 6, v89\nv_add_u32 v88, s54, v88")
            e("s_lshl_b32 s50, s%d, 13\ns_lshl_b32 s51, s%d, 11\ns_add_u32 s50, s50, s51\nv_add_u32 v91, s50, v91" % (sC, sR))
            self.tr_addr(89, 92, None, True)
            e("s_add_u32 s54, s54, 18432\nv_add_u32 v89, s54, v89\nv_xor_b32 v90, 32, v89")
            e("v_bfe_u32 v92, v0, 3, 1\nv_lshlrev_b32 v92, 6, v92\nv_and_b32 v93, 32, v0\nv_add_u32 v92, v92, v93\nv_bfe_u32 v93, v0, 4, 1\nv_lshl_add_u32 v92, v93, 3, v92")
            e("v_and_b32 v93, 7, v0\nv_add_u32 v92, v92, v93\nv_lshlrev_b32 v92, 4, v92")
            for i in range(4): e("v_mov_b32 v%d, 0x3f803f80" % (96 + i))
            for i in range(16): e("v_mov_b32 v%d, 0" % (ACV + i))
        post = {6: [stage_kv], 12: [consts], 20: [self.get_tag]}
        for i, g in enumerate((2, 3, 12)): post[1 + 2 * i + (i == 2) * 4] = [lambda g=g: self.dma_wo(g)]
        self.wpass(WQ_B, ACK, 0, 32, pre={0: after_v}, post=post)
        self.stamp(4)
        for i in range(16): e("v_mov_b32 v%d, 0" % (XR + i))
        for i in range(8): e("v_cvt_pk_bf16_f32 v%d, v%d, v%d" % (100 + i, ACK + 2 * i, ACK + 2 * i + 1))
        e("v_xor_b32 v78, 32, v79")
        a.lds("ds_write_b128 v79, v[100:103]"); a.lds("ds_write_b128 v78, v[104:107]")
        self.barrier()
        QF, KF, VF, S, PO, O = XR, XR + 16, XR + 32, XR + 48, ACV, XR + 64
        e("s_mov_b32 exec_lo, 0x00ff00ff\ns_mov_b32 exec_hi, 0xff00ff00")
        for u in range(4): a.lds("ds_read_b128 %s, v91 offset:%d" % (vr(QF + 4 * u, 4), 512 * u), ("q", u))
        e("s_mov_b64 exec, -1")
        for u in range(4): a.lds("ds_read_b128 %s, v88 offset:%d" % (vr(KF + 4 * u, 4), 512 * u), ("k", u))
        for u in range(4):
            for hd in range(2): a.lds("ds_read_b64_tr_b16 %s, v%d offset:%d" % (vr(VF + 4 * u + 2 * hd, 2), 89 + hd, 512 * u), "v")
        for u in range(4):
            a.wait(lg=("k", u))
            e("v_mfma_f32_16x16x32_bf16 %s, %s, %s, %s" % (vr(S + 4 * u, 4), vr(KF + 4 * u, 4), vr(QF + 4 * u, 4), vr(84 if u < 2 else 80, 4)))
        for g in (13, 4, 5, 6): self.dma_wo(g)
        M = 100
        for u in range(4): e("v_max3_f32 v%d, v%d, v%d, v%d" % (M + u, S + 4 * u, S + 4 * u + 1, S + 4 * u + 2))
        for u in range(4): e("v_max_f32 v%d, v%d, v%d" % (M + u, M + u, S + 4 * u + 3))
        e("v_permlane16_swap_b32 v100, v101\nv_permlane16_swap_b32 v102, v103\nv_max_f32 v100, v100, v101\nv_max_f32 v102, v102, v103")
        e("v_permlane32_swap_b32 v100, v102\nv_max_f32 v100, v100, v102")
        e("s_mov_b32 s52, 0x3EB8AA3B\ns_mov_b32 s53, 0x3EB8AA3B")
        e("v_mul_f32 v100, s52, v100\nv_mov_b32 v104, v100\nv_permlane32_swap_b32 v100, v104")
        e("v_mov_b32 v102, v100\nv_mov_b32 v106, v104\nv_permlane16_swap_b32 v100, v102\nv_permlane16_swap_b32 v104, v106")
        for u in range(4):
            for h in (0, 2):
                e("v_pk_fma_f32 %s, %s, s[52:53], %s op_sel_hi:[1,1,0] neg_lo:[0,0,1] neg_hi:[0,0,1]" % (vr(S + 4 * u + h, 2), vr(S + 4 * u + h, 2), vr(M + 2 * u, 2)))
        for i in range(16): e("v_exp_f32 v%d, v%d" % (S + i, S + i))
        for hd, mk in ((0, 0x00ff00ff), (1, 0xff00ff00)):
            e("s_mov_b32 exec_lo, 0x%x\ns_mov_b32 exec_hi, 0x%x" % (mk, mk))
            for u in range(4):
                for h in (0, 1): e("v_cvt_pk_bf16_f32 v%d, v%d, v%d" % (PO + 4 * u + 2 * hd + h, S + 4 * u + 2 * h, S + 4 * u + 2 * h + 1))
        e("s_mov_b64 exec, -1")
        a.wait(lg=0)
        e("s_barrier")
        for u in range(4):
            e("v_mfma_f32_16x16x32_bf16 %s, v[96:99], %s, 0" % (vr(O + 8 * u + 4, 4), vr(PO + 4 * u, 4)))
            e("v_mfma_f32_16x16x32_bf16 %s, %s, %s, 0" % (vr(O + 8 * u, 4), vr(VF + 4 * u, 4), vr(PO + 4 * u, 4)))
        e("s_lshl_b32 s50, s41, 2\ns_add_u32 s50, s50, s%d\ns_lshl_b32 s50, s50, 6\ns_lshl_b32 s51, s42, 2\ns_add_u32 s50, s50, s51" % sR)
        e("s_lshl_b32 s51, s%d, 1\ns_add_u32 s50, s50, s51\ns_lshl_b32 s54, s50, 10" % sC)
        for u in range(4): e("v_rcp_f32 v%d, v%d" % (O + 8 * u + 4, O + 8 * u + 4))
        for u in range(4):
            for h in (0, 2): e("v_pk_mul_f32 %s, %s, %s op_sel_hi:[1,0]" % (vr(O + 8 * u + h, 2), vr(O + 8 * u + h, 2), vr(O + 8 * u + 4, 2)))
        for u in range(4):
            for h in (0, 1): e("v_cvt_pk_bf16_f32 v%d, v%d, v%d" % (QF + 2 * u + h, O + 8 * u + 2 * h, O + 8 * u + 2 * h + 1))
        for sp in range(2):
            for h in (0, 1): e("v_permlane16_swap_b32 v%d, v%d" % (QF + 4 * sp + h, QF + 4 * sp + 2 + h))
            a.vmem("buffer_store_dwordx4 %s, v92, s[16:19], s54 offen offset:%d sc1" % (vr(QF + 4 * sp, 4), 256 * sp), "ost")
        for g in (7, 8, 9, 10, 0, 1, 14, 15): self.dma_wo(g)
        e("s_lshl_b32 s55, s41, 7\ns_lshl_b32 s50, s42, 2\ns_add_u32 s55, s55, s50\ns_add_u32 s55, s55, 0x%x" % F2B_OFF)
        self.stamp(5)
        a.wait(vm="ost")
        e("s_barrier")
        self.flag_store(55)
        e("s_mov_b32 s55, 0")

    def phase2(self):
        a = self.a; e = a.e
        a.label("L_phase2")
        e("s_and_b32 s84, s40, 1\ns_bfe_u32 s54, s40, 0x10001")
        e("v_bfe_u32 v16, v0, 2, 2\nv_lshrrev_b32 v17, 5, v0\nv_lshl_add_u32 v16, v17, 2, v16\nv_lshlrev_b32 v16, 7, v16")
        e("v_bfe_u32 v17, v0, 3, 1\nv_xor_b32 v17, s54, v17\nv_lshl_add_u32 v16, v17, 6, v16")
        e("v_bfe_u32 v17, v0, 4, 1\nv_lshl_add_u32 v16, v17, 5, v16\nv_and_b32 v17, 3, v0\nv_lshl_add_u32 v9, v17, 3, v16")
        e("s_lshr_b32 s50, s40, 1\ns_lshl_b32 s50, s50, 15\nv_add_u32 v9, s50, v9\nv_xor_b32 v10, 64, v9")
        e("v_and_b32 v11, 7, v0\nv_lshlrev_b32 v11, 2, v11")
        e("s_lshl_b32 s50, s45, 1\ns_add_u32 s50, s50, s84\ns_lshl_b32 s50, s50, 2\ns_lshr_b32 s51, s40, 1\ns_add_u32 s50, s50, s51\ns_lshl_b32 s50, s50, 14")
        for g in range(4):
            e("s_add_u32 s51, s45, %d\ns_and_b32 s51, s51, 3\ns_lshl_b32 s51, s51, 12\ns_add_u32 s%d, s50, s51" % (g, 64 + g))
        e("s_lshr_b32 s68, s45, 1\ns_lshl_b32 s68, s68, 7\ns_lshl_b32 s50, s85, 12\ns_add_u32 s68, s68, s50\ns_add_u32 s68, s68, 0x%x" % F2B_OFF)
        a.wait(vm=0, lg=0)
        e("s_barrier")
        l = self.lab("f2")
        e("s_cmp_eq_u32 s55, 0\ns_cbranch_scc1 %s" % l)
        self.flag_store(55)
        a.label(l)
        self.stamp(8)
        OFR = 48
        EX, BD = 16 * SLOT, 8 * SLOT
        def oloads():
            for i in range(16):
                a.vmem("buffer_load_dwordx4 %s, v13, s[16:19], s%d offen offset:%d sc1" % (vr(OFR + 4 * i, 4), 64 + i // 4, (i % 4) * 1024), ("of", i))
        def preread():
            for i in range(16):
                for t in range(2):
                    for tt in range(2):
                        a.lds("ds_read_b64_tr_b16 %s, v%d offset:%d" % (vr(XR + 8 * i + 4 * t + 2 * tt, 2), 9 + t, (16 * i + 8 * tt) * 128))
        def mfmas():
            for i in range(16):
                a.wait(vm=("of", i))
                for t in range(2):
                    e("v_mfma_f32_32x32x16_bf16 %s, %s, %s, %s" % (vr(ACK + 16 * t, 16), vr(XR + 8 * i + 4 * t, 4), vr(OFR + 4 * i, 4), vr(ACK + 16 * t, 16) if i else "0"))
        e("s_cmp_eq_u32 s85, 0\ns_cbranch_scc0 L_P2A")
        self.poll_issue(12, 11, 68, "p2")
        preread()
        self.poll_check(12, 11, 68, "p2")
        e("v_and_b32 v5, 31, v0\nv_lshlrev_b32 v5, 2, v5\ns_lshl_b32 s50, s45, 8\ns_lshl_b32 s51, s84, 7\ns_add_u32 s50, s50, s51\ns_add_u32 s50, s50, 0x%x" % GP_OFF)
        a.vmem("buffer_load_dword v6, v5, s[16:19], s50 offen sc1", "g")
        oloads()
        self.barrier()
        self.stamp(9)
        mfmas()
        e("v_add_u32 v5, s51, v5\nv_sub_f32 v8, 1.0, v6")
        e("v_add_u32 v5, 0x%x, v5" % GEX)
        a.lds("ds_write_b32 v5, v6")
        e("s_lshl_b32 s50, s54, 1\ns_add_u32 s50, s50, s84\ns_lshl_b32 s50, s50, 1\ns_add_u32 s50, s50, s54\ns_lshl_b32 s50, s50, 12\ns_add_u32 s50, s50, 0x%x" % BD)
        e("v_add_u32 v5, s50, v13\nv_xor_b32 v7, 0x1000, v5")
        for t in range(2):
            for i in range(8): e("v_pk_mul_f32 %s, %s, v[8:9] op_sel_hi:[1,0]" % (vr(ACK + 16 * t + 2 * i, 2), vr(ACK + 16 * t + 2 * i, 2)))
            for i in range(4): a.lds("ds_write_b128 v%d, %s offset:%d" % (5 + 2 * t, vr(ACK + 16 * t + 4 * i, 4), 1024 * i))
        self.barrier()
        self.stamp(10)
        e("s_branch L_fin")
        a.label("L_P2A")
        preread()
        self.barrier()
        self.poll_issue(12, 11, 68, "p2")
        e("s_lshl_b32 s50, s84, 1\ns_add_u32 s50, s50, s54\ns_lshl_b32 s50, s50, 12\nv_add_u32 v5, s50, v13")
        e("v_add_u32 v7, 0x%x, v5\nv_xor_b32 v6, 0x1000, v7\nv_add_u32 v5, 0x%x, v5" % (EX, BD))
        e("v_and_b32 v8, 31, v0\nv_lshlrev_b32 v8, 2, v8\ns_lshl_b32 s50, s84, 7\ns_add_u32 s50, s50, 0x%x\nv_add_u32 v8, s50, v8" % GEX)
        e("v_and_b32 v1, 16, v0\nv_and_b32 v2, 7, v0\nv_lshl_add_u32 v1, v2, 1, v1\nv_bfe_u32 v2, v0, 3, 1\nv_add_u32 v1, v1, v2\nv_lshlrev_b32 v1, 10, v1")
        e("v_lshrrev_b32 v2, 5, v0\nv_lshl_add_u32 v1, v2, 4, v1")
        e("s_lshl_b32 s69, s45, 1\ns_add_u32 s69, s69, s84\ns_lshl_b32 s69, s69, 15\ns_lshl_b32 s50, s46, 7\ns_add_u32 s69, s69, s50\ns_lshl_b32 s50, s54, 6\ns_add_u32 s69, s69, s50")
        self.poll_check(12, 11, 68, "p2")
        self.stamp(9)
        oloads()
        mfmas()
        for i in range(4): a.lds("ds_write_b128 v6, %s offset:%d" % (vr(ACV + 4 * i, 4), 1024 * i))
        self.barrier()
        self.stamp(10)
        a.lds("ds_read_b32 v10, v8", "g")
        for i in range(4):
            a.lds("ds_read_b128 %s, v7 offset:%d" % (vr(48 + 4 * i, 4), 1024 * i), ("x", i))
            a.lds("ds_read_b128 %s, v5 offset:%d" % (vr(64 + 4 * i, 4), 1024 * i), ("x", i))
            a.lds("ds_read_b128 %s, v5 offset:%d" % (vr(80 + 4 * i, 4), 16384 + 1024 * i), ("x", i))
        for i in range(4):
            a.wait(lg=("x", i))
            for h in (0, 2):
                r = 4 * i + h
                e("v_pk_add_f32 %s, %s, %s" % (vr(ACK + r, 2), vr(ACK + r, 2), vr(48 + r, 2)))
                e("v_pk_add_f32 %s, %s, %s" % (vr(64 + r, 2), vr(64 + r, 2), vr(80 + r, 2)))
            for h in (0, 2):
                r = 4 * i + h
                e("v_pk_fma_f32 %s, %s, v[10:11], %s op_sel_hi:[1,0,1]" % (vr(ACK + r, 2), vr(ACK + r, 2), vr(64 + r, 2)))
            for h in (0, 1): e("v_cvt_pk_bf16_f32 v%d, v%d, v%d" % (96 + 2 * i + h, ACK + 4 * i + 2 * h, ACK + 4 * i + 2 * h + 1))
            if i & 1:
                b = 96 + 4 * (i >> 1)
                e("v_permlane32_swap_b32 v%d, v%d\nv_permlane32_swap_b32 v%d, v%d" % (b, b + 2, b + 1, b + 3))
                a.vmem("buffer_store_dwordx4 %s, v1, s[28:31], s69 offen offset:%d" % (vr(b, 4), 32 * (i >> 1)))
        a.label("L_fin")
        if self.stamps:
            e("s_waitcnt vmcnt(0)")
            self.stamp(11)
            e("s_waitcnt lgkmcnt(0)")
            e("s_lshl_b32 s50, s2, 3\ns_add_u32 s50, s50, s40\ns_lshl_b32 s50, s50, 6\ns_add_u32 s50, s50, 0x%x" % STAMP_OFF)
            for i in range(12): e("v_mov_b32 v%d, s%d" % (16 + i, STAMPS[i]))
            e("s_mov_b64 exec, 1")
            for i in range(3): e("buffer_store_dwordx4 %s, off, s[16:19], s50 offset:%d" % (vr(16 + 4 * i, 4), 16 * i))
            if self.dbgout:
                e("s_cmp_eq_u32 s40, 4\ns_cbranch_scc0 L_end\ns_cmp_eq_u32 s43, 0\ns_cbranch_scc0 L_end")
                e("v_not_b32 v28, v16\nbuffer_atomic_umax v28, off, s[36:39], 0 offset:8")
                for i in range(12): e("buffer_atomic_umax v%d, off, s[36:39], 0 offset:%d" % (16 + i, 12 + 4 * i))
        a.label("L_end")
        e("s_endpgm")

    def build(self):
        if self.stamps:
            for r in STAMPS: self.a.e("s_mov_b64 %s, 0" % sr(r, 2))
        self.setup()
        st = self.a.state()
        self.typeA()
        self.typeB(st)
        self.phase2()
        lines, added = fix_hazards(self.a.lines)
        hdr = open("cdna_kernels/%s.s.ref" % KNAME).read().split("; Override launch")[0]
        out = hdr + "; @launch grid=(256,1,1) block=(512,1,1) lds=163840\n"
        out += '.amdgcn_target "amdgcn-amd-amdhsa--gfx950"\n.text\n.globl %s_kernel\n.p2align 8\n.type %s_kernel,@function\n%s_kernel:\n' % ((KNAME,) * 3)
        body = "\n".join(("" if l.endswith(":") else "    ") + l for l in lines)
        out += body + "\n"
        out += '.section .rodata,"a"\n.p2align 6\n.amdhsa_kernel %s_kernel\n' % KNAME
        out += "  .amdhsa_next_free_vgpr 256\n  .amdhsa_next_free_sgpr 102\n  .amdhsa_accum_offset 256\n  .amdhsa_group_segment_fixed_size 0\n  .amdhsa_kernarg_size 88\n"
        out += "  .amdhsa_user_sgpr_count 2\n  .amdhsa_user_sgpr_kernarg_segment_ptr 1\n  .amdhsa_system_sgpr_workgroup_id_x 1\n.end_amdhsa_kernel\n"
        return out

if __name__ == "__main__":
    stamps = 2 if "--cyc" in sys.argv else ("--stamps" in sys.argv)
    outp = [x for x in sys.argv[1:] if not x.startswith("--")][0]
    sset = [x[7:].split(",") for x in sys.argv if x.startswith("--sset=")]
    open(outp, "w").write(Gen(stamps, sset[0] if sset else None).build())
```

```python
import sys
from asmlib import *

KNAME = "gated_mix__linear_kernel_hedgehog__sliding_local_dilated__prompt"
SLOT = 8192
MISC = 19 * SLOT
WPHI = MISC
GATE = MISC
GPART = MISC + 1024
GEX = MISC + 2048
MCNT = MISC + 2560
KVOP = MISC + 3072
OF_OFF = 0
KVP_OFF = 4 << 20
ZP_OFF = 5 << 20
GP_OFF = (5 << 20) + (128 << 10)
F1_OFF = (5 << 20) + (256 << 10)
F2_OFF = F1_OFF + (128 << 10)
STAMP_OFF = 192 << 20
LOG2E = 0x3FB8AA3B
NEG = 0xF149F2CA
TAGC = 0x9E3779B9

SX, SW, SWS, SWOA, SWOB, SOUT, SMISC, SDBG = 8, 12, 16, 20, 24, 28, 32, 36
sW, sRB, sGRP, sTYPE, sROT, sRT, sCT, sTAG, sWL, sOFF = 40, 41, 42, 43, 44, 45, 46, 47, 48, 49
sKX, sKW, sWOO, sR, sC = 64, 72, 80, 84, 85
STAMPS = [86, 88, 90, 92, 94, 96, 98, 100, 58, 60, 62, 6]
vX0, vW, vWO = 1, 3, 4
ACK, ACV, RING, XR = 16, 32, 48, 128
WV_SLOTS = [12, 16, 17, 18, 0, 1, 2, 3]
WQ_A = [13, 4, 5, 6, 7, 16, 17, 18]

class Addr:
    def __init__(self, a, regs, base=0):
        self.a, self.regs, self.base = a, regs, base
    def rebase(self, nb):
        if nb != self.base:
            for r in self.regs:
                self.a.e("v_add_u32 v%d, 0x%x, v%d" % (r, (nb - self.base) & 0xffffffff, r))
            self.base = nb
    def at(self, off, i=0, span=0, gran=49152):
        if not (0 <= off - self.base and off + span - self.base <= 65535 - 15):
            self.rebase(off // gran * gran)
        return "v%d offset:%d" % (self.regs[i], off - self.base)

def MF32(d, a, b, c): return "v_mfma_f32_32x32x16_bf16 %s, %s, %s, %s" % (vr(d, 16), vr(a, 4), vr(b, 4), "0" if c is None else vr(c, 16))
def MF16(d, a, b, c): return "v_mfma_f32_16x16x32_bf16 %s, %s, %s, %s" % (vr(d, 4), vr(a, 4), vr(b, 4), "0" if c is None else vr(c, 4))
def CVT(d, s): return "v_cvt_pk_bf16_f32 v%d, v%d, v%d" % (d, s, s + 1)

class Gen:
    def __init__(self, stamps=False, sset=None, opt=None):
        self.a = Asm()
        self.stamps = stamps
        self.dbgout = "--dbgout" in sys.argv
        self.sset = sset or "0,k0,kend,bv3,kvst,qend,pollok,sum,ost,p2poll,p3,end".split(",")
        self.o = dict(bd=2, warm=0, pk1=2, g0n=2, g1n=5, g2n=4, fs1=7, fs2=7, sl1=2, pre=0)
        self.o.update(opt or {})
        self.nl = 0
    def stamp(self, name):
        if self.stamps and name in self.sset:
            self.a.e("%s %s" % ("s_memtime" if self.stamps == 2 else "s_memrealtime", sr(STAMPS[self.sset.index(name)], 2)))
    def wgtype(self, wg): return (wg >> 6) & 1
    def lab(self, p):
        self.nl += 1
        return "L_%s_%d" % (p, self.nl)

    def dma(self, slot, vaddr, srd, sbase, add, tag, ldsadd=0):
        a = self.a
        a.e("s_add_u32 m0, s%d, 0x%x" % (sWL, (slot * SLOT + ldsadd) & 0xffffffff))
        if add:
            a.e("s_add_u32 s%d, s%d, 0x%x" % (sOFF, sbase, add & 0xffffffff)); so = "s%d" % sOFF
        else:
            so = "s%d" % sbase
        a.vmem("buffer_load_dwordx4 v%d, %s, %s offen lds" % (vaddr, sr(srd, 4), so), tag)
    def dma_x(self, s, h, slot): self.dma(slot, vX0 + h, SX, sKX + s, 0, ("c", s))
    def dma_w(self, s, sec, slot, tag): self.dma(slot, vW, SW, sKW + s, 1024 * sec, tag)
    def dma_wo(self, g, vaddr=vWO, ldsadd=0):
        self.dma(g, vaddr, SWOA if g >= 8 else SWOB, sWOO + (g & 3), ((g >> 2) & 1) * 262144, "wo", ldsadd)

    def gemm(self, n, D, reads, mfmas, pre={}, post={}, pairfrom=None):
        a = self.a
        for i in range(n + D):
            if i < n:
                if i in pre: pre[i]()
                for t in reads(i): a.lds(t, ("r", i))
                for f in post.get(i - 1000, []): f()
            k = i - D
            if k >= 0:
                kk = k + 1 if (pairfrom is not None and k >= pairfrom and k % 2 == 0 and k + 1 < n) else k
                a.wait(lg=[("r", k), ("r", kk)])
                for t in mfmas(k): a.e(t)
            for f in post.get(i, []): f()
            for f in post.get(i + 2000, []): f()

    def gemm_il(self, n, D, reads, mfmas, pre={}, post={}):
        a = self.a
        for i in range(n + D):
            k = i - D
            ms = []
            if k >= 0:
                a.wait(lg=("r", k)); ms = mfmas(k)
            if ms: a.e(ms[0])
            rs = []
            if i < n:
                if i in pre: pre[i]()
                rs = reads(i)
            nm = max(1, len(ms)); per = -(-len(rs) // nm)
            for q in range(nm):
                if q: a.e(ms[q])
                for t in rs[q * per:(q + 1) * per]: a.lds(t, ("r", i))
                if q == 0:
                    for f in post.get(i - 1000, []): f()
            for f in post.get(i, []): f()

    def barrier(self, vm=None):
        self.a.wait(vm=vm, lg=0)
        self.a.e("s_barrier")

    def kxw(self, s):
        e = self.a.e
        e("s_add_u32 s50, s44, %d\ns_and_b32 s50, s50, 7" % s)
        e("s_lshl_b32 s%d, s50, 7\ns_add_u32 s%d, s%d, s54" % (sKX + s, sKX + s, sKX + s))
        e("s_mul_i32 s%d, s50, 0x30000\ns_add_u32 s%d, s%d, s55" % (sKW + s, sKW + s, sKW + s))

    def setup(self):
        a = self.a; e = a.e
        self.stamp("0")
        e("s_cmp_ge_u32 s2, 256\ns_cbranch_scc1 L_end")
        e("s_load_dwordx4 s[4:7], s[0:1], 0")
        e("s_load_dwordx2 s[12:13], s[0:1], 40")
        e("v_lshrrev_b32 v1, 6, v0\nv_and_b32 v0, 63, v0")
        e("s_and_b32 s50, s2, 7\ns_lshr_b32 s51, s2, 3")
        e("v_readfirstlane_b32 s%d, v1" % sW)
        e("s_and_b32 s41, s50, 1\ns_lshl_b32 s41, s41, 3\ns_and_b32 s54, s51, 7\ns_add_u32 s41, s41, s54")
        e("s_lshr_b32 s54, s51, 3")
        e("s_and_b32 s43, s54, 1")
        e("s_and_b32 s42, s50, 6\ns_lshr_b32 s55, s54, 1\ns_add_u32 s42, s42, s55")
        e("s_lshl_b32 s44, s54, 1\ns_add_u32 s44, s44, s41\ns_and_b32 s44, s44, 7")
        e("s_lshl_b32 s45, s50, 2\ns_add_u32 s45, s45, s54")
        e("s_and_b32 s46, s51, 7")
        e("s_lshl_b32 s48, s40, 10")
        e("v_lshrrev_b32 v5, 3, v0\nv_lshrrev_b32 v6, 4, v0\nv_and_b32 v7, 7, v0")
        e("s_and_b32 s54, s40, 1\ns_lshl_b32 s55, s54, 2")
        e("v_add_u32 v8, s55, v6\nv_xor_b32 v8, v8, v7\nv_lshlrev_b32 v8, 4, v8")
        e("s_lshr_b32 s55, s40, 1\ns_lshl_b32 s55, s55, 4\ns_add_u32 s55, s55, s54\ns_lshl_b32 s55, s55, 10")
        e("v_lshl_add_u32 v1, v5, 11, v8\nv_add_u32 v1, s55, v1\nv_add_u32 v2, 0x10000, v1")
        e("v_and_b32 v6, 1, v6\nv_lshlrev_b32 v6, 2, v6\nv_xor_b32 v6, v6, v7\nv_lshlrev_b32 v6, 4, v6")
        e("s_lshl_b32 s55, s40, 3\nv_add_u32 v5, s55, v5")
        e("s_movk_i32 s55, 3072\nv_mad_u32_u24 v3, v5, s55, v6\nv_lshl_add_u32 v4, v5, 10, v6")
        e("v_lshlrev_b32 v13, 4, v0")
        e("s_lshl_b32 s54, s41, 17\ns_lshl_b32 s55, s42, 7")
        for s in range(2): self.kxw(s)
        e("s_and_b32 s%d, s40, 3\ns_lshr_b32 s%d, s40, 2" % (sR, sC))
        e("s_mov_b32 s10, 0x200000\ns_mov_b32 s11, 0x20000\ns_mov_b32 s14, 0x180000\ns_mov_b32 s15, 0x20000")
        e("s_cmp_eq_u32 s43, 0")
        e("s_waitcnt lgkmcnt(0)")
        self.stamp("ka")
        e("s_mov_b32 s8, s4\ns_mov_b32 s9, s5")
        e("s_cbranch_scc0 L_typeB")
        e("s_mov_b32 s12, s6\ns_mov_b32 s13, s7")

    def setup_rest(self, typ, pf):
        a = self.a; e = a.e
        e("s_load_dwordx2 s[32:33], s[0:1], %d" % (16 if typ == 0 else 56))
        e("s_load_dwordx2 s[20:21], s[0:1], 24\ns_load_dwordx2 s[24:25], s[0:1], 48\ns_load_dwordx2 s[28:29], s[0:1], 64")
        e("s_load_dwordx2 s[36:37], s[0:1], 72\ns_load_dwordx2 s[16:17], s[0:1], 80")
        for q in range(2, 8): self.kxw(q)
        e("s_mov_b32 s34, 0x%x\ns_mov_b32 s35, 0x20000" % (0x4000 if typ == 0 else 0x400))
        e("s_mov_b32 s18, 0x10000000\ns_mov_b32 s19, 0x20000\ns_mov_b32 s22, 0x80000\ns_mov_b32 s23, 0x20000")
        e("s_mov_b32 s26, 0x80000\ns_mov_b32 s27, 0x20000\ns_mov_b32 s30, 0x200000\ns_mov_b32 s31, 0x20000")
        e("s_mov_b32 s38, 0x100\ns_mov_b32 s39, 0x20000")
        l = self.lab("nopre"); pc = self.lab("pc")
        e("s_cmp_eq_u32 s40, 3\ns_cbranch_scc0 %s" % l)
        e("s_getpc_b64 s[4:5]")
        a.label(pc)
        e("s_sub_u32 s4, s4, %s-L_start\ns_subb_u32 s5, s5, 0" % pc)
        e("s_lshr_b32 s50, s2, 3\ns_lshl_b32 s50, s50, 10\nv_add_u32 v16, s50, v13\nv_min_u32 v16, L_end-L_start-16, v16")
        e("global_load_dwordx4 %s, v16, s[4:5]" % vr(pf, 4))
        a.label(l)
        e("s_waitcnt lgkmcnt(0)")
        l = self.lab("nomisc")
        e("s_cmp_lt_u32 s40, %d\ns_cbranch_scc0 %s" % (2 - typ, l))
        if typ == 0: e("s_lshl_b32 s50, s42, 11\ns_add_u32 s50, s50, s48\nv_add_u32 v16, s50, v13")
        else: e("s_lshl_b32 s50, s44, 7\nv_add_u32 v16, s50, v13\nv_and_b32 v16, 0x3ff, v16")
        e("s_add_u32 m0, s48, 0x%x\nbuffer_load_dwordx4 v16, s[32:35], 0 offen lds" % MISC)
        a.label(l)

    def setup2(self, srow=sR, sh=12, scol=sC):
        e = self.a.e
        e("s_mov_b32 s52, 0x%x\ns_mov_b32 s53, 0x%x" % (LOG2E, LOG2E))
        for g in range(4):
            e("s_add_u32 s50, s45, %d\ns_and_b32 s50, s50, 3\ns_lshl_b32 s50, s50, 16\ns_lshl_b32 s51, s46, 7\ns_add_u32 s%d, s50, s51" % (g, sWOO + g))
        e("v_and_b32 v16, 31, v0\nv_lshrrev_b32 v17, 5, v0\nv_bfe_u32 v18, v0, 1, 3\nv_xor_b32 v17, v17, v18\nv_lshlrev_b32 v17, 4, v17")
        e("s_lshl_b32 s50, s%d, %d\nv_lshl_add_u32 v5, v16, 7, v17\nv_add_u32 v5, s50, v5" % (srow, sh))
        e("v_xor_b32 v6, 32, v5\nv_xor_b32 v7, 64, v5\nv_xor_b32 v8, 0x60, v5")
        e("v_bfe_u32 v16, v0, 2, 2\nv_lshrrev_b32 v17, 5, v0\nv_lshl_add_u32 v16, v17, 3, v16\nv_lshlrev_b32 v16, 7, v16")
        e("v_bfe_u32 v17, v0, 3, 1\nv_xor_b32 v17, s%d, v17\nv_lshl_add_u32 v16, v17, 6, v16" % scol)
        e("v_bfe_u32 v17, v0, 4, 1\nv_lshl_add_u32 v16, v17, 5, v16\nv_and_b32 v17, 3, v0\nv_lshl_add_u32 v9, v17, 3, v16")
        self.xa = Addr(self.a, [5, 6, 7, 8]); self.wa = Addr(self.a, [9])

    def wreads(self, slot, j, r, **kw):
        return ["ds_read_b64_tr_b16 %s, %s" % (vr(r + 2 * tt, 2), self.wa.at(slot * SLOT + (16 * j + 4 * tt) * 128, **kw)) for tt in (0, 1)]

    def wpass(self, slots, acc, pre={}, post={}, D=5):
        def reads(i): return self.wreads(slots[i // 4], i % 4, RING + 4 * (i % 6))
        def mf(k): return [MF32(acc, RING + 4 * (k % 6), XR + 4 * k, acc if k else None)]
        self.gemm(32, D, reads, mf, pre, post)

    def tag_issue(self): self.a.vmem("buffer_load_dwordx2 v[14:15], off, s[36:39], 0 sc1", "tag")
    def get_tag(self):
        a = self.a; e = a.e
        ok, rt = self.lab("tagok"), self.lab("tagrt")
        a.wait(vm="tag")
        e("s_mov_b32 s51, 0")
        a.label(rt)
        e("v_readfirstlane_b32 s50, v15\nv_readfirstlane_b32 s%d, v14" % sTAG)
        e("s_add_u32 s51, s51, 1\ns_cmp_lg_u32 s50, 0\ns_cbranch_scc1 %s" % ok)
        e("s_cmp_gt_u32 s51, 0x4000\ns_cbranch_scc1 %s" % ok)
        e("s_sleep 4\nbuffer_load_dwordx2 v[14:15], off, s[36:39], 0 sc1\ns_waitcnt vmcnt(0)\ns_branch %s" % rt)
        a.label(ok)
    def flag(self, soff):
        self.a.e("s_mov_b64 exec, 1")
        self.a.vmem("buffer_store_dword v14, off, s[16:19], s%d sc1" % soff, "flag")
        self.a.e("s_mov_b64 exec, -1")
    def poll_issue(self, vdst, vaddr, soff, tag):
        self.a.vmem("buffer_load_dword v%d, v%d, s[16:19], s%d offen sc1" % (vdst, vaddr, soff), tag)
    def poll_check(self, vdst, vaddr, soff, tag, sleep=2):
        a = self.a; e = a.e
        ok, rt = self.lab("pok"), self.lab("prt")
        a.wait(vm=tag)
        e("s_mov_b32 s51, 0")
        a.label(rt)
        e("v_cmp_ne_u32 vcc, s%d, v%d" % (sTAG, vdst))
        e("s_add_u32 s51, s51, 1\ns_cbranch_vccz %s" % ok)
        e("s_cmp_gt_u32 s51, 0x4000\ns_cbranch_scc1 %s" % ok)
        e("s_sleep %d\nbuffer_load_dword v%d, v%d, s[16:19], s%d offen sc1\ns_waitcnt vmcnt(0)\ns_branch %s" % (sleep, vdst, vaddr, soff, rt))
        a.label(ok)

    KB, EP, T = 80, 88, 104
    def phi_pre(self):
        e = self.a.e
        for i in range(8): e(CVT(self.KB + i, ACK + 2 * i))
        e(MF32(ACK, 72, self.KB, None)); e(MF32(ACK, 76, self.KB + 4, ACK))
    def phi(self, hooks={}, nm="pk", pk=False, collect=False, pk1=False, ACK=16, pk2=False, EP=88):
        items = []
        def e(t): items.extend(t.split("\n"))
        KB, T = self.KB, self.T
        def H(n):
            items.append(lambda: self.stamp("%s%d" % (nm, n)))
            if n in hooks: items.append(hooks[n])
        H(0)
        mm = (("v_max3_f32", T), ("v_min3_f32", T + 2))
        for (op, d) in mm:
            e("%s v%d, v%d, v%d, v%d" % (op, d, ACK, ACK + 1, ACK + 2))
            e("%s v%d, v%d, v%d, v%d" % (op, d + 1, ACK + 3, ACK + 4, ACK + 5))
        for i in range(2):
            for (op, d) in mm:
                e("%s v%d, v%d, v%d, v%d" % (op, d, d, ACK + 6 + 4 * i, ACK + 7 + 4 * i))
                e("%s v%d, v%d, v%d, v%d" % (op, d + 1, d + 1, ACK + 8 + 4 * i, ACK + 9 + 4 * i))
        for (op, d) in mm: e("%s v%d, v%d, v%d, v%d" % (op, d, d, ACK + 14, ACK + 15))
        e("v_max_f32 v%d, v%d, v%d\nv_min_f32 v%d, v%d, v%d" % (T, T, T + 1, T + 2, T + 2, T + 3))
        e("v_mul_f32 v%d, s52, v%d\nv_mul_f32 v%d, s52, v%d" % (T, T, T + 2, T + 2))
        if pk or pk1:
            for i in range(8):
                e("v_pk_fma_f32 %s, %s, s[52:53], %s op_sel_hi:[1,1,0] neg_lo:[0,0,1] neg_hi:[0,0,1]" % (vr(EP + 2 * i, 2), vr(ACK + 2 * i, 2), vr(T, 2)))
            for i in range(8):
                e("v_pk_fma_f32 %s, %s, s[52:53], %s op_sel_hi:[1,1,0] neg_lo:[1,0,0] neg_hi:[1,0,0]" % (vr(ACK + 2 * i, 2), vr(ACK + 2 * i, 2), vr(T + 2, 2)))
        else:
            for i in range(16): e("v_fma_f32 v%d, v%d, s52, -v%d" % (EP + i, ACK + i, T))
            for i in range(16): e("v_fma_f32 v%d, -v%d, s52, v%d" % (ACK + i, ACK + i, T + 2))
        H(1)
        for i in range(16): e("v_exp_f32 v%d, v%d" % (EP + i, EP + i))
        H(2)
        for i in range(16): e("v_exp_f32 v%d, v%d" % (ACK + i, ACK + i))
        H(3)
        two = ((EP, KB), (ACK, KB + 4))
        pk = pk or pk2
        if pk:
            for (src, d) in two:
                e("v_pk_add_f32 %s, %s, %s" % (vr(d, 2), vr(src, 2), vr(src + 2, 2)))
                e("v_pk_add_f32 %s, %s, %s" % (vr(d + 2, 2), vr(src + 4, 2), vr(src + 6, 2)))
            for i in range(2):
                for (src, d) in two:
                    e("v_pk_add_f32 %s, %s, %s" % (vr(d, 2), vr(d, 2), vr(src + 8 + 4 * i, 2)))
                    e("v_pk_add_f32 %s, %s, %s" % (vr(d + 2, 2), vr(d + 2, 2), vr(src + 10 + 4 * i, 2)))
            for (src, d) in two: e("v_pk_add_f32 %s, %s, %s" % (vr(d, 2), vr(d, 2), vr(d + 2, 2)))
        else:
            for (src, d) in two:
                for q in range(2): e("v_add_f32 v%d, v%d, v%d" % (d + q, src + 2 * q, src + 2 * q + 1))
            for i in range(6):
                for (src, d) in two:
                    for q in range(2): e("v_add_f32 v%d, v%d, v%d" % (d + q, d + q, src + 4 + 2 * i + q))
        for (src, d) in two: e("v_add_f32 v%d, v%d, v%d" % (d, d, d + 1))
        for (src, d) in two: e("v_rcp_f32 v%d, v%d" % (d, d))
        H(4)
        for p, (src, d) in enumerate(two):
            for q in range(2):
                if pk:
                    for i in range(4 * q, 4 * q + 4): e("v_pk_mul_f32 %s, %s, %s op_sel_hi:[1,0]" % (vr(src + 2 * i, 2), vr(src + 2 * i, 2), vr(d, 2)))
                else:
                    for i in range(8 * q, 8 * q + 8): e("v_mul_f32 v%d, v%d, v%d" % (src + i, src + i, d))
                for i in range(4 * q, 4 * q + 4): e(CVT(src + i, src + 2 * i))
                H(5 + 2 * p + q)
        if collect: return items
        self.emit_items(items)

    def emit_items(self, items):
        for it in items:
            if callable(it): it()
            else: self.a.e(it)

    def spread(self, items, first, last, post, budget):
        def cost(it):
            if callable(it): return getattr(it, "cost", 0)
            if it.startswith(TRANS): return 2
            return 1.5 if it.startswith(("v_fma", "v_max3", "v_min3")) else 1
        items = list(items); credit = 0
        for i in range(first, last + 1):
            credit = min(credit, 0.5) + budget; g = []
            while items and cost(items[0]) <= credit:
                credit -= cost(items[0]); g.append(items.pop(0))
            post.setdefault(i, []).append(lambda g=g: self.emit_items(g))
        return items

    def stage_addr(self, d, t, srow=sR, sh=11):
        e = self.a.e
        e("v_and_b32 v%d, 31, v0\nv_lshrrev_b32 v%d, 5, v0\nv_bfe_u32 v%d, v0, 1, 2" % (d, t, t + 1))
        e("v_xor_b32 v%d, v%d, v%d\nv_lshlrev_b32 v%d, 4, v%d" % (t, t, t + 1, t, t))
        e("s_lshl_b32 s50, s%d, %d\nv_lshl_add_u32 v%d, v%d, 6, v%d\nv_add_u32 v%d, s50, v%d" % (srow, sh, d, d, t, d, d))

    def tr_addr(self, d, t, half_sgpr, rowskip):
        e = self.a.e
        e("v_lshrrev_b32 v%d, 2, v0" % d)
        e("v_bfe_u32 v%d, v0, 3, 2\nv_bfe_u32 v%d, v0, 1, 1\nv_xor_b32 v%d, v%d, v%d" % (t, t + 1, t, t, t + 1))
        if half_sgpr is not None:
            e("s_lshl_b32 s50, s%d, 1\nv_xor_b32 v%d, s50, v%d" % (half_sgpr, t, t))
        if rowskip:
            e("v_and_b32 v%d, 8, v%d\nv_add_u32 v%d, v%d, v%d" % (t + 1, d, d, d, t + 1))
        e("v_lshlrev_b32 v%d, 6, v%d\nv_lshl_add_u32 v%d, v%d, 4, v%d" % (d, d, d, t, d))
        e("v_and_b32 v%d, 1, v0\nv_lshl_add_u32 v%d, v%d, 3, v%d" % (t, d, t, d))

    def msig(self, c):
        self.a.e("s_mov_b64 exec, 1"); self.a.lds("ds_add_u32 v126, v127 offset:%d" % (4 * c)); self.a.e("s_mov_b64 exec, -1")
    def mread(self, c): self.a.lds("ds_read_b32 v125, v126 offset:%d" % (4 * c), ("ms", c))
    def mcheck(self, c, n=4, sleep=0):
        a = self.a; e = a.e
        ok, rt = self.lab("mok"), self.lab("mrt")
        a.wait(lg=("ms", c))
        a.label(rt)
        e("v_readfirstlane_b32 s50, v125\ns_cmp_ge_u32 s50, %d\ns_cbranch_scc1 %s" % (n, ok))
        if sleep: e("s_sleep %d" % sleep)
        e("ds_read_b32 v125, v126 offset:%d\ns_waitcnt lgkmcnt(0)\ns_branch %s" % (4 * c, rt))
        a.label(ok)

    def typeA(self):
        a = self.a; e = a.e; o = self.o
        cx = lambda s, h: self.dma_x(s, h, 3 * (s & 3) + h)
        ck = lambda s: self.dma_w(s, 1, 3 * (s & 3) + 2, ("c", s))
        wv = lambda s: self.dma_w(s, 2, WV_SLOTS[s], ("wv", s))
        wq = lambda s: self.dma_w(s, 0, WQ_A[s], ("wq", s))
        cx(0, 0); cx(0, 1); ck(0); cx(1, 0); cx(1, 1); wv(0); wq(0)
        self.setup_rest(0, 104)
        e("v_mov_b32 v126, 0x%x\nv_mov_b32 v127, 1\nv_mov_b32 v16, 0\nv_mov_b32 v17, 0\nv_mov_b32 v18, 0\nv_mov_b32 v19, 0" % MCNT)
        a.lds("ds_write_b128 v126, v[16:19]"); a.lds("ds_write_b128 v126, v[16:19] offset:16")
        e("s_barrier")
        ck(1); cx(2, 0); cx(2, 1); ck(2)
        e("s_mov_b32 s55, 0")
        self.setup2(scol=55)
        e("v_xor_b32 v10, 64, v9")
        self.wa = Addr(a, [9, 10])
        e("v_and_b32 v16, 1, v0\nv_lshlrev_b32 v16, 9, v16")
        e("v_bfe_u32 v17, v0, 2, 2\nv_lshrrev_b32 v18, 5, v0\nv_lshl_add_u32 v17, v18, 2, v17\nv_lshl_add_u32 v16, v17, 5, v16")
        e("v_bfe_u32 v17, v0, 4, 1\nv_lshl_add_u32 v16, v17, 4, v16\nv_bfe_u32 v17, v0, 1, 1\nv_lshl_add_u32 v16, v17, 3, v16")
        e("v_add_u32 v12, 0x%x, v16" % WPHI)
        e("v_lshrrev_b32 v16, 5, v0")
        e("v_xor_b32 v124, 0x8000, v4")
        self.stage_addr(20, 17)
        def wrd(slot, j, r, c):
            return ["ds_read_b64_tr_b16 %s, %s" % (vr(r + 2 * tt, 2), self.wa.at(slot * SLOT + (16 * j + 4 * tt) * 128, c)) for tt in (0, 1)]
        def wphi_r(c):
            for t in range(2): a.lds("ds_read_b64_tr_b16 %s, v12 offset:%d" % (vr(72 - 8 * c + 2 * t, 2), 1024 * c + 256 * t))
        def wphi_m(c):
            b = 72 - 8 * c
            e("v_and_b32 v125, 4, v0\nv_cmp_eq_u32 vcc, 0, v125")
            for i in range(4): e("v_cndmask_b32 v%d, v%d, 0, vcc" % (b + 4 + i, b + i))
            for i in range(4): e("v_cndmask_b32 v%d, 0, v%d, vcc" % (b + i, b + i))
        def proj():
            for c in range(2):
                kb = (80, 48)[c]
                for i in range(8): e(CVT(kb + i, 16 + 16 * c + 2 * i))
                e(MF32(16 + 16 * c, 72 - 8 * c, kb, None)); e(MF32(16 + 16 * c, 76 - 8 * c, kb + 4, 16 + 16 * c))
        GA = (12, 0, 1, 2, 3, 8, 9, 10, 11, 14, 15, 4, 5, 6, 7, 13); g1, g2 = o["g1n"], o["g1n"] + o["g2n"]
        assert g2 <= 11
        e("s_cmp_eq_u32 s%d, 0\ns_cbranch_scc0 L_AK" % sC)
        st = a.state()
        e("v_add_u32 v116, 0x%x, v20\nv_xor_b32 v117, 32, v116" % (14 * SLOT))
        e("v_and_b32 v18, 15, v0\nv_lshl_add_u32 v18, v16, 4, v18\nv_lshlrev_b32 v18, 4, v18\nv_lshlrev_b32 v17, 4, v16\nv_add_u32 v17, 0x200, v17")
        e("v_and_b32 v19, 16, v0\nv_cmp_eq_u32 vcc, 0, v19\nv_cndmask_b32 v122, v17, v18, vcc\nv_add_u32 v122, 0x%x, v122" % KVOP)
        e("s_lshl_b32 s50, s41, 2\ns_add_u32 s50, s50, s%d\ns_lshl_b32 s56, s50, 5\ns_lshl_b32 s51, s42, 1\ns_add_u32 s56, s56, s51" % sR)
        e("s_lshl_b32 s57, s56, %d\ns_add_u32 s57, s57, 0x%x\ns_add_u32 s56, s56, 16\ns_lshl_b32 s56, s56, 11" % (o["fs2"], F2_OFF + (256 << 10)))
        e("v_xor_b32 v56, 0x8000, v1\nv_xor_b32 v57, 0x8000, v2\nv_add_u32 v58, 0x18000, v3")
        self.stamp("1")
        def x2(s, h): cx(s, h); self.dma(3 * (s & 3) + h, 56 + h, SX, sKX + s, 0, ("c", s), 4096)
        def w2(s, sec, slot, tag): self.dma_w(s, sec, slot, tag); self.dma(slot, 58, SW, sKW + s, 1024 * sec, tag, 4096)
        wv2 = lambda s: w2(s, 2, WV_SLOTS[s], ("wv", s))
        wq2 = lambda s: w2(s, 0, WQ_A[s], ("wq", s))
        VR = lambda t: 80 + 8 * (t % 4)
        def dreads(slots, t): return wrd(slots[t // 4], t % 4, VR(t), 0) + wrd(slots[t // 4], t % 4, VR(t) + 4, 1)
        def dmf(t): return [MF32(16 + 16 * c, VR(t) + 4 * c, XR + 4 * t, (16 + 16 * c) if t else None) for c in range(2)]
        for s in range(8):
            self.barrier(vm=("c", s)); self.stamp("k%d" % s)
            if s < 5: ld = [lambda: x2(s + 3, 0), lambda: x2(s + 3, 1), lambda: ck(s + 3)]
            elif s < 7: ld = [lambda g=g: wv2(3 * s - 14 + g) for g in range(2)] + [lambda: wv(3 * s - 12)]
            else: ld = [lambda: wv2(7), lambda: None, lambda: None]
            ld[0]()
            for j in range(4): a.lds("ds_read_b128 %s, %s" % (vr(XR + 16 * s + 4 * j, 4), self.xa.at(3 * (s & 3) * SLOT, j)))
            ld[1](); ld[2]()
            if s == 3: self.tag_issue()
        for t in range(4):
            for r in dreads(WV_SLOTS, t): a.lds(r, ("v0", t))
        for t in range(4):
            a.wait(lg=("v0", t))
            for m in dmf(t): e(m)
            wq2(1 + t)
        wphi_r(0); wphi_r(1)
        self.stamp("ae")
        self.barrier(vm=("wv", 7))
        self.stamp("bv1")
        self.gemm_il(28, 3, lambda i: dreads(WV_SLOTS, i + 4), lambda k: dmf(k + 4), {}, {})
        self.stamp("v1")
        for c in range(2):
            b = 16 + 16 * c
            for q in range(2):
                for i in range(4 * q, 4 * q + 4): e(CVT(b + i, b + 2 * i))
                a.lds("ds_write_b128 v%d, %s offset:%d" % (116 + q, vr(b + 4 * q, 4), SLOT * c))
        self.stamp("abv3")
        self.barrier(vm=("wq", 4))
        self.stamp("bv3")
        wphi_m(0); wphi_m(1)
        self.get_tag()
        self.stamp("q0")
        self.gemm_il(32, 3, lambda i: dreads(WQ_A, i), dmf, {20: lambda: (e("s_barrier"), self.stamp("q3"))}, {})
        self.stamp("qend")
        proj()
        for c in range(2):
            ep = (88, 128)[c]
            self.phi(nm="pq%d" % c, pk=True, ACK=16 + 16 * c, EP=ep)
            for b in (ep, 16 + 16 * c):
                for i in range(4): e("v_permlane32_swap_b32 v%d, v%d" % (b + i, b + 4 + i))
        self.stamp("asum")
        e("s_barrier")
        self.stamp("sum")
        for i in range(8): a.lds("ds_read_b128 %s, v122 offset:%d" % (vr(144 + 4 * i, 4), 576 * i), ("o", i))
        for h in range(4):
            a.wait(lg=("o", 2 * h + 1))
            D = 176 + 16 * h; c, hd = divmod(h, 2)
            e(MF32(D, 144 + 8 * h, (88, 128)[c] + 4 * hd, None)); e(MF32(D, 148 + 8 * h, 16 + 16 * c + 4 * hd, D))
        a.vm = []
        for h in range(4):
            D = 176 + 16 * h
            e("v_add_f32 v%d, 0x358637bd, v%d\nv_rcp_f32 v%d, v%d" % (D + 8, D + 8, D + 8, D + 8))
            if h < 2:
                for i in range(8): e("v_mul_f32 v%d, v%d, v%d" % (D + i, D + i, D + 8))
            else:
                for i in range(4): e("v_pk_mul_f32 %s, %s, %s op_sel_hi:[1,0]" % (vr(D + 2 * i, 2), vr(D + 2 * i, 2), vr(D + 8, 2)))
            for i in range(4): e(CVT(D + 12 + i, D + 2 * i))
            a.vmem("buffer_store_dwordx4 %s, v13, s[16:19], s56 offen offset:%d sc1" % (vr(D + 12, 4), 1024 * h), "ost")
        self.stamp("ost")
        self.p2setup()
        a.wait(vm="ost")
        self.flag(57)
        self.stamp("oflag")
        e("s_branch L_phase2")
        a.restore(st); self.xa.base = 0; self.wa.base = 0
        a.label("L_AK")
        e("v_lshlrev_b32 v18, 4, v16\nv_xor_b32 v20, v20, v18\nv_lshl_add_u32 v20, v16, 13, v20\nv_add_u32 v112, 0x%x, v20" % (8 * SLOT))
        e("v_xor_b32 v113, 16, v112\nv_xor_b32 v114, 32, v112\nv_xor_b32 v115, 48, v112")
        e("v_and_b32 v17, 15, v0\nv_lshrrev_b32 v18, 4, v0\nv_lshlrev_b32 v121, 4, v17\nv_lshl_add_u32 v116, v18, 3, v121\nv_lshl_add_u32 v121, v18, 10, v121")
        e("s_mul_i32 s50, s%d, 1152\ns_add_u32 s50, s50, 0x%x\nv_add_u32 v116, s50, v116" % (sR, KVOP))
        e("v_bfe_u32 v117, v0, 1, 1\nv_mul_u32_u24 v117, 576, v117\nv_and_b32 v19, 1, v0\nv_lshl_add_u32 v117, v19, 4, v117\nv_lshl_add_u32 v117, v18, 3, v117\ns_add_u32 s50, s50, 512\nv_add_u32 v117, s50, v117")
        e("v_lshlrev_b32 v19, 4, v19\nv_mov_b32 v18, 0x3f80\nv_lshlrev_b32 v18, v19, v18\nv_lshrrev_b32 v17, 1, v17")
        for i in range(4): e("v_cmp_eq_u32 vcc, %d, v17\nv_cndmask_b32 v%d, 0, v18, vcc" % (i, 56 + i))
        e("v_and_b32 v123, 15, v0\nv_lshlrev_b32 v123, %d, v123\nv_subrev_u32 v11, 0x18000, v3" % o["fs1"])
        e("s_lshl_b32 s50, s42, 2\ns_add_u32 s50, s50, s%d" % sR)
        e("s_lshl_b32 s4, s50, %d\ns_add_u32 s4, s4, 0x%x\ns_lshl_b32 s5, s50, 14\ns_add_u32 s5, s5, 0x%x\ns_lshl_b32 s43, s50, 10\ns_add_u32 s43, s43, 0x%x" % (o["fs1"] + 4, F1_OFF, KVP_OFF, ZP_OFF))
        e("s_lshl_b32 s50, s50, 4\ns_add_u32 s50, s50, s41")
        e("s_lshl_b32 s3, s50, %d\ns_add_u32 s3, s3, 0x%x" % (o["fs1"], F1_OFF))
        e("s_lshl_b32 s54, s50, 10\ns_add_u32 s54, s54, 0x%x\ns_lshl_b32 s55, s50, 6\ns_add_u32 s55, s55, 0x%x" % (KVP_OFF, ZP_OFF))
        self.tr_addr(118, 17, None, False)
        e("s_and_b32 s50, s%d, 1\ns_lshl_b32 s50, s50, 5\nv_xor_b32 v119, s50, v118" % sR)
        e("s_lshr_b32 s50, s%d, 1\ns_lshl_b32 s50, s50, 13\ns_add_u32 s50, s50, 0x%x\nv_add_u32 v119, s50, v119" % (sR, 14 * SLOT))
        e("s_lshl_b32 s50, s%d, 13\ns_add_u32 s50, s50, 0x%x\nv_add_u32 v118, s50, v118\nv_xor_b32 v122, 32, v118" % (sR, 8 * SLOT))
        for i in range(4): e("v_mov_b32 v%d, 0x3f803f80" % (60 + i))
        e("v_and_b32 v120, 3, v0\nv_bfe_u32 v17, v0, 2, 1\nv_lshl_add_u32 v120, v17, 3, v120\nv_bfe_u32 v17, v0, 3, 1\nv_lshl_add_u32 v120, v17, 2, v120")
        e("v_bfe_u32 v17, v0, 4, 1\nv_lshl_add_u32 v17, v17, 1, v16\nv_lshl_add_u32 v120, v17, 4, v120\nv_lshlrev_b32 v120, 4, v120\nv_lshlrev_b32 v108, 4, v17")
        e("s_setprio 1")
        self.stamp("1")
        KR = lambda t: 128 + 12 * (t % 6)
        def reads(i):
            s, j = divmod(i, 4); b = 3 * (s & 3)
            return ["ds_read_b128 %s, %s" % (vr(KR(i), 4), self.xa.at(b * SLOT, j))] + wrd(b + 2, j, KR(i) + 4, 0) + wrd(b + 2, j, KR(i) + 8, 1)
        def mf(k): return [MF32(16 + 16 * c, KR(k) + 4 + 4 * c, KR(k), (16 + 16 * c) if k else None) for c in range(2)]
        extra = {2: lambda: (wphi_r(0), wphi_r(1)), 3: lambda: (wphi_m(0), self.tag_issue()), 4: lambda: wphi_m(1), 6: self.get_tag}
        for s in range(8):
            self.barrier(vm=("c", s)); self.stamp("k%d" % s)
            pend = (mf(4 * s - 2) + mf(4 * s - 1)) if s else [None] * 4
            for j in range(4):
                if pend[j]: e(pend[j])
                for t in reads(4 * s + j): a.lds(t, ("r", j))
            for j in range(4 if s == 7 else 2):
                a.wait(lg=("r", j))
                for m in mf(4 * s + j): e(m)
                if j == 0 and s < 5: ck(s + 3)
                if j == 0 and 5 <= s < 7: wv(3 * s - 12)
            if s in extra: extra[s]()
        self.stamp("kend")
        proj()
        def ebar():
            self.stamp("ae")
            a.wait(vm=("wv", 6))
            e("s_barrier")
            self.stamp("bv1")
            e("s_setprio 0")
        EPK = (88, 128)
        def phi_write(c, ch):
            a.lds("ds_write_b128 v%d, %s offset:%d" % (112 + ch, vr((EPK[c], 16 + 16 * c)[ch >> 1] + 4 * (ch & 1), 4), 2 * SLOT * c))
        its = [self.phi({5 + ch: (lambda c=c, ch=ch: phi_write(c, ch)) for ch in range(4)}, nm="pk%d" % c, ACK=16 + 16 * c, EP=EPK[c], collect=True, pk1=(c < o["pk1"])) for c in range(2)]
        cut = [[q for q, it in enumerate(x) if isinstance(it, str) and it.startswith("v_exp")][0] for x in its]
        def warm():
            if not o["warm"]: return
            e("s_lshl_b32 s50, s%d, 17\ns_lshl_b32 s51, s46, 7\ns_add_u32 s50, s50, s51\ns_add_u32 s51, s50, 0x10000\nv_lshlrev_b32 v109, 10, v0" % sR)
            for srd in (SWOB, SWOA):
                for q in (50, 51): a.vmem("buffer_load_dword v110, v109, %s, s%d offen" % (sr(srd, 4), q), "warm")
        def wq57():
            for q in range(5, 8):
                wq(q); self.dma(WQ_A[q], 11, SW, sKW + q, 0, ("wq", q), -4096)
        if o["pk1"] == 2: seq = its[0][:cut[0]] + its[1][:cut[1]] + [ebar, warm] + its[0][cut[0]:] + its[1][cut[1]:]
        else: seq = its[0][:cut[0]] + [ebar, warm] + its[0][cut[0]:] + its[1]
        self.emit_items(seq)
        if o["pre"]: self.msig(1); self.mread(1)
        self.stamp("pend")
        if o["pre"]: self.mcheck(1, 4, 1)
        else:
            self.stamp("abv3"); self.barrier(); self.stamp("bv3")
        e("s_setprio 1")
        PH, VV = 144, 176
        for m in range(4):
            for f in range(2):
                for t in range(2): a.lds("ds_read_b64_tr_b16 %s, v%d offset:%d" % (vr(PH + 8 * m + 4 * f + 2 * t, 2), (118, 122)[f], m * 2048 + t * 1024), ("k", m))
            if not o["pre"]:
                for t in range(2): a.lds("ds_read_b64_tr_b16 %s, v119 offset:%d" % (vr(VV + 4 * m + 2 * t, 2), m * 2048 + t * 1024), ("k", m))
        def pack(b, vaddr, soff, mask):
            e(CVT(b, b)); e(CVT(b + 1, b + 2)); e(CVT(b + 2, b + 4)); e(CVT(b + 3, b + 6))
            e("v_permlane16_swap_b32 v%d, v%d\nv_permlane16_swap_b32 v%d, v%d" % (b, b + 2, b + 1, b + 3))
            if mask: e("s_mov_b32 exec_lo, 0x10001\ns_mov_b32 exec_hi, 0x10001")
            a.vmem("buffer_store_dwordx4 %s, v%d, s[16:19], s%d offen sc1" % (vr(b, 4), vaddr, soff), "kvst")
            if mask: e("s_mov_b64 exec, -1")
        def zm(m):
            for f in range(2): e(MF16(48 + 4 * f, PH + 8 * m + 4 * f, 60, (48 + 4 * f) if m else None))
        def km(m):
            for f in range(2): e(MF16(16 + 4 * f, PH + 8 * m + 4 * f, VV + 4 * m, (16 + 4 * f) if m else None))
        if o["pre"]:
            for m in range(4):
                a.wait(lg=("k", m)); zm(m)
            pack(48, 108, 55, True)
            self.stamp("abv3")
            e("s_barrier")
            self.stamp("bv3")
            for m in range(4):
                for t in range(2): a.lds("ds_read_b64_tr_b16 %s, v119 offset:%d" % (vr(VV + 4 * m + 2 * t, 2), m * 2048 + t * 1024), ("k", m))
            for m in range(4):
                a.wait(lg=("k", m)); km(m)
            pack(16, 120, 54, False)
        else:
            for m in range(4):
                a.wait(lg=("k", m)); km(m); zm(m)
            pack(16, 120, 54, False); pack(48, 108, 55, True)
        self.stamp("kvst")
        e("s_setprio 0")
        def wo2(g): self.dma_wo(g); self.dma_wo(g, 124, -4096)
        assert g1 <= (9 if o['pre'] else 5)
        wq57()
        for g in GA[:o["g0n"]]: wo2(g)
        a.wait(vm="kvst"); self.flag(3)
        self.stamp("q1")
        for g in GA[o["g0n"]:g1]: wo2(g)
        a.wait(vm=("wq", 7))
        self.stamp("aq")
        e("s_barrier")
        if o.get("wwo"):
            a.wait(vm=0); self.stamp("wl")
        self.stamp("q2")
        self.poll_issue(125, 123, 4, "p1")
        a.wait(vm="p1"); self.stamp("p1st")
        self.poll_check(125, 123, 4, "p1", o["sl1"])
        if self.stamps and "np" in self.sset: e("s_lshl_b32 s50, s51, 7\ns_add_u32 s%d, s%d, s50" % (STAMPS[self.sset.index("np")], STAMPS[0]))
        self.stamp("pollok")
        a.vmem("buffer_load_dwordx4 v[32:35], v13, s[16:19], s43 offen sc1", "z")
        for i in range(16):
            if i % 4 == 0 and i: e("s_add_u32 s5, s5, 4096")
            a.vmem("buffer_load_dwordx4 %s, v121, s[16:19], s5 offen offset:%d sc1" % (vr(XR + 4 * i, 4), (i % 4) * 256), ("kp", i))
        self.stamp("bi")
        for g in GA[g1:g2]: wo2(g)
        e("s_setprio 1")
        a.wait(vm="z")
        e(MF16(36, 56, 32, None))
        for i in range(16):
            a.wait(vm=("kp", i))
            e(MF16(16 + 4 * (i % 4), 56, XR + 4 * i, (16 + 4 * (i % 4)) if i >= 4 else None))
            if i == 7:
                for k in (4, 8):
                    for q in range(4): e("v_add_f32_dpp v%d, v%d, v%d row_ror:%d row_mask:0xf bank_mask:0xf" % (36 + q, 36 + q, 36 + q, k))
                e(CVT(36, 36)); e(CVT(37, 38))
        self.stamp("bl")
        e("s_mov_b32 exec_hi, 0")
        a.lds("ds_write_b64 v117, v[36:37]")
        for q in range(4):
            e(CVT(16 + 4 * q, 16 + 4 * q)); e(CVT(17 + 4 * q, 18 + 4 * q))
            a.lds("ds_write_b64 v116, %s offset:%d" % (vr(16 + 4 * q, 2), 576 * (q >> 1) + 256 * (q & 1)))
        e("s_mov_b64 exec, -1\ns_setprio 0")
        self.stamp("asum")
        self.barrier()
        self.stamp("sum")
        self.p2setup()
        for g in GA[g2:]: wo2(g)
        a.wait(vm=0)
        e("s_branch L_phase2")

    def typeB(self):
        a = self.a; e = a.e
        a.vm = []; a.lg = []
        a.label("L_typeB")
        HALO, KV, QP = 15 * SLOT, 5 * SLOT, 17 * SLOT
        buf = lambda s: 5 * (s % 3)
        def gran(s, g):
            if g < 2: self.dma_x(s, g, buf(s) + g)
            else: self.dma_w(s, (1, 2, 0)[g - 2], buf(s) + g, ("c", s))
        for g in range(5): gran(0, g)
        gran(1, 0); gran(1, 1)
        self.setup_rest(1, 240)
        l = self.lab("notag")
        e("s_lshl_b32 s50, s2, 3\ns_add_u32 s50, s50, s40\ns_cmp_eq_u32 s50, %d\ns_cbranch_scc0 %s" % (64 * 8 + 7, l))
        e("s_mov_b32 s50, 0x%x\ns_buffer_load_dword s50, s[16:19], s50\ns_waitcnt lgkmcnt(0)" % F1_OFF)
        e("s_add_u32 s50, s50, 0x%x\nv_mov_b32 v16, s50\nv_mov_b32 v17, 1\ns_mov_b64 exec, 1" % TAGC)
        e("buffer_store_dwordx2 v[16:17], off, s[36:39], 0 sc1\ns_mov_b64 exec, -1")
        a.label(l)
        e("s_barrier")
        e("v_lshrrev_b32 v16, 3, v0\nv_lshrrev_b32 v17, 4, v0\nv_and_b32 v18, 7, v0\nv_xor_b32 v17, v17, v18\nv_lshlrev_b32 v17, 4, v17\nv_lshl_add_u32 v16, v16, 11, v17")
        e("s_add_u32 s50, s44, s40\ns_and_b32 s50, s50, 7\ns_lshl_b32 s50, s50, 7\ns_lshl_b32 s51, s41, 17\ns_add_u32 s50, s50, s51\ns_sub_u32 s50, s50, 0x4000")
        e("v_add_u32 v16, s50, v16\nv_xor_b32 v17, 64, v16\nv_add_u32 v17, 0x400, v17")
        e("s_lshl_b32 s50, s40, 11\ns_add_u32 m0, s50, 0x%x" % HALO)
        a.vmem("buffer_load_dwordx4 v16, s[8:11], 0 offen lds", "halo")
        e("s_add_u32 m0, s50, 0x%x" % (HALO + 1024))
        a.vmem("buffer_load_dwordx4 v17, s[8:11], 0 offen lds", "halo")
        for g in (2, 3, 4): gran(1, g)
        e("s_and_b32 s54, s40, 1\ns_bfe_u32 s55, s40, 0x10001")
        self.setup2(54, 13, 55)
        self.stage_addr(76, 16, 54, 12)
        e("s_lshl_b32 s50, s55, 13\ns_add_u32 s50, s50, 0x%x\nv_add_u32 v79, s50, v76\nv_xor_b32 v64, 32, v79" % QP)
        e("s_mul_i32 s50, s55, 9216\ns_add_u32 s50, s50, 0x%x\nv_add_u32 v76, s50, v76\nv_xor_b32 v77, 32, v76" % (KV + 1024))
        e("v_lshrrev_b32 v88, 4, v0\nv_lshlrev_b32 v88, 2, v88\nv_and_b32 v89, 7, v0\nv_sub_u32 v88, v88, v89\nv_mov_b32 v90, 0x%x" % NEG)
        for i in range(4):
            e("v_add_u32 v89, %d, v88\nv_cmp_gt_u32 vcc, 8, v89\nv_cndmask_b32 v%d, v90, 0, vcc" % (i - 1, 80 + i))
        e("s_or_b32 s50, s41, s%d\ns_cmp_eq_u32 s50, 0\ns_cselect_b32 s50, 32, 0\nv_cmp_gt_u32 vcc, s50, v0" % sR)
        for i in range(4): e("v_cndmask_b32 v%d, v%d, v90, vcc" % (84 + i, 80 + i))
        e("s_mul_i32 s54, s%d, 9216\ns_lshl_b32 s50, s%d, 11\ns_add_u32 s54, s54, s50\ns_add_u32 s54, s54, 0x%x" % (sC, sR, KV))
        e("v_and_b32 v88, 15, v0\nv_and_b32 v89, 8, v0\nv_add_u32 v88, v88, v89\nv_lshrrev_b32 v89, 4, v0\nv_bfe_u32 v90, v0, 1, 2\nv_xor_b32 v89, v89, v90\nv_lshlrev_b32 v89, 4, v89")
        e("v_and_b32 v91, 7, v0\nv_lshl_add_u32 v91, v91, 6, v89\nv_lshl_add_u32 v88, v88, 6, v89\nv_add_u32 v88, s54, v88")
        e("s_lshl_b32 s50, s%d, 13\ns_lshl_b32 s51, s%d, 11\ns_add_u32 s50, s50, s51\ns_add_u32 s50, s50, 0x%x\nv_add_u32 v91, s50, v91" % (sC, sR, QP))
        self.tr_addr(89, 92, None, True)
        e("s_add_u32 s54, s54, 18432\nv_add_u32 v89, s54, v89\nv_xor_b32 v90, 32, v89")
        e("v_bfe_u32 v92, v0, 3, 1\nv_lshlrev_b32 v92, 6, v92\nv_and_b32 v93, 32, v0\nv_add_u32 v92, v92, v93\nv_bfe_u32 v93, v0, 4, 1\nv_lshl_add_u32 v92, v93, 3, v92")
        e("v_and_b32 v93, 7, v0\nv_add_u32 v92, v92, v93\nv_lshlrev_b32 v92, 4, v92")
        for i in range(4): e("v_mov_b32 v%d, 0x3f803f80" % (96 + i))
        QF, PO = 208, 224
        for i in range(32): e("v_mov_b32 v%d, 0" % (QF + i))
        self.stamp("1")
        def scal():
            e("s_lshl_b32 s50, s41, 2\ns_add_u32 s50, s50, s%d\ns_lshl_b32 s51, s42, 1\ns_add_u32 s51, s51, s%d" % (sR, sC))
            e("s_lshl_b32 s68, s50, 5\ns_add_u32 s68, s68, s51\ns_lshl_b32 s69, s68, %d\ns_add_u32 s69, s69, 0x%x\ns_lshl_b32 s68, s68, 11" % (self.o["fs2"], F2_OFF))
            e("s_lshl_b32 s50, s41, 2\ns_lshr_b32 s51, s42, 1\ns_add_u32 s50, s50, s51\ns_lshl_b32 s50, s50, 5\ns_and_b32 s51, s42, 1\ns_add_u32 s50, s50, s51")
            e("s_lshl_b32 s70, s50, %d\ns_add_u32 s70, s70, 0x%x\ns_cmp_eq_u32 s40, 4\ns_cselect_b32 s70, s70, 0" % (self.o["fs2"], F2_OFF + (16 << self.o["fs2"])))
            e("s_lshl_b32 s71, s41, 9\ns_lshl_b32 s51, s42, 6\ns_add_u32 s71, s71, s51\ns_add_u32 s71, s71, 0x%x" % GP_OFF)
        e("s_cmp_eq_u32 s%d, 0\ns_cbranch_scc0 L_Bh" % sC)
        st = a.state()
        RG = 148; AC = (16, 100)
        scal()
        def reads(i):
            s, j = divmod(i, 4); r = RG + 20 * (i % 3); b = buf(s)
            self.wa.at(b * SLOT, span=5 * SLOT - 64, gran=5 * SLOT)
            self.xa.at(b * SLOT, span=4096, gran=5 * SLOT)
            x = ["ds_read_b128 %s, %s" % (vr(r + 4 * h, 4), self.xa.at(b * SLOT + 4096 * h, j)) for h in range(2)]
            w = [self.wreads(b + 2 + sec, j, r + 8 + 4 * sec) for sec in range(3)]
            if self.o.get("nox"): return w[0] + w[1] + w[2]
            if self.o.get("now"): return x
            return [x[0]] + w[0] + [x[1]] + w[1] + w[2]
        def mf(k):
            r = RG + 20 * (k % 3)
            return [MF32(AC[h] + 16 * sec, r + 8 + 4 * sec, r + 4 * h, (AC[h] + 16 * sec) if k else None) for sec in range(3) for h in range(2)]
        pre = {4 * s: (lambda s=s: (self.stamp("a%d" % s), self.barrier(vm=("c", s)), self.stamp("k%d" % s))) for s in range(8)}
        NT = self.o["bd"] + 1
        self.gemm_il(32, self.o["bd"], reads, lambda k: mf(k) if k < 32 - NT else mf(k)[:2], pre, {24: [self.tag_issue]})
        self.barrier()
        def stage(sec):
            a0, a1, off = ((76, 77, 0), (76, 77, 18432), (79, 64, 0))[sec]
            o = []
            for h in range(2):
                b = AC[h] + 16 * sec
                for q, ad in enumerate((a0, a1)):
                    o += [CVT(b + i, b + 2 * i) for i in range(4 * q, 4 * q + 4)]
                    o.append(lambda t="ds_write_b128 v%d, %s offset:%d" % (ad, vr(b + 4 * q, 4), off + 2048 * h): a.lds(t))
            return o
        pend = stage(0)
        for sec in range(1, 3):
            ms = [mf(k)[2 * sec + h] for h in range(2) for k in range(32 - NT, 32)]
            per = -(-len(pend) // (len(ms) - 1))
            for q, m in enumerate(ms):
                e(m)
                if q: self.emit_items(pend[(q - 1) * per:q * per])
            pend = stage(sec)
        self.stamp("kend")
        self.emit_items(pend)
        self.get_tag()
        e("s_branch L_Bt")
        a.restore(st)
        a.label("L_Bh")
        e("s_setprio %d" % self.o.get("hprio", 2))
        e("v_xor_b32 v65, 0x8000, v1\nv_xor_b32 v66, 0x8000, v2\nv_subrev_u32 v67, 0x18000, v3\nv_xor_b32 v68, 0x8000, v4")
        e("v_and_b32 v16, 15, v0\nv_lshrrev_b32 v17, 4, v0\nv_bfe_u32 v18, v0, 1, 3\nv_xor_b32 v18, v17, v18\nv_lshlrev_b32 v18, 4, v18\nv_lshl_add_u32 v18, v16, 7, v18")
        e("v_add_u32 v10, 0x%x, v18\nv_xor_b32 v11, 64, v10" % HALO)
        e("s_lshl_b32 s50, s42, 11\nv_add_u32 v110, s50, v18\nv_xor_b32 v111, 64, v110")
        e("v_lshlrev_b32 v112, 4, v17\nv_add_u32 v112, 0x%x, v112" % GATE)
        e("v_bfe_u32 v16, v0, 2, 2\nv_lshl_add_u32 v16, v17, 3, v16\nv_lshlrev_b32 v16, 7, v16")
        e("s_lshr_b32 s50, s%d, 1\nv_bfe_u32 v17, v0, 3, 1\nv_xor_b32 v17, s50, v17\nv_lshl_add_u32 v16, v17, 6, v16" % sR)
        e("s_and_b32 s50, s%d, 1\ns_lshl_b32 s50, s50, 5\nv_and_b32 v17, 3, v0\nv_lshl_add_u32 v16, v17, 3, v16\nv_add_u32 v12, s50, v16" % sR)
        e("v_bfe_u32 v78, v0, 4, 1\nv_bfe_u32 v16, v0, 1, 2\nv_xor_b32 v78, v78, v16\ns_and_b32 s50, s%d, 1\ns_lshl_b32 s50, s50, 1\nv_xor_b32 v78, s50, v78" % sR)
        e("v_lshlrev_b32 v78, 4, v78\nv_and_b32 v16, 15, v0\nv_lshl_add_u32 v78, v16, 6, v78\nv_lshrrev_b32 v16, 5, v0\nv_lshl_add_u32 v78, v16, 3, v78")
        e("s_lshr_b32 s50, s%d, 1\ns_mul_i32 s50, s50, 9216\ns_add_u32 s50, s50, 0x%x\nv_add_u32 v78, s50, v78" % (sR, KV))
        ha = Addr(a, [12]); ga = Addr(a, [110, 111])
        def gran2(s, g):
            gran(s, g)
            if g < 2: self.dma(buf(s) + g, 65 + g, SX, sKX + s, 0, ("c", s), -4096)
            else: self.dma(buf(s) + g, 67, SW, sKW + s, 1024 * (1, 2, 0)[g - 2], ("c", s), -4096)
        FR = lambda s, kk, q: 128 + 40 * (s & 1) + 20 * kk + 4 * q
        def early(s):
            b = buf(s)
            ha.at(b * SLOT, span=4 * SLOT, gran=5 * SLOT)
            return ["ds_read_b64_tr_b16 %s, %s" % (vr(FR(s, kk, q) + 2 * tt, 2), ha.at((b + 2 + q) * SLOT + (32 * kk + 4 * tt) * 128)) for kk in range(2) for q in range(2) for tt in range(2)]
        def late(s): return ["ds_read_b128 %s, v%d offset:%d" % (vr(FR(s, kk, 2), 4), 10 + kk, s * 2048) for kk in range(2)]
        def gate_r(s):
            ga.at(buf(s) * SLOT, gran=5 * SLOT)
            l = self.lab("ngr")
            e("s_cmp_eq_u32 s40, 4\ns_cbranch_scc0 %s" % l)
            for kk in range(2): e("ds_read_b128 %s, %s" % (vr(FR(s, kk, 3), 4), ga.at(buf(s) * SLOT, kk)))
            for t in ([0, 1] if s == 1 else [s] if s else []):
                for kk in range(2): e("ds_read_b128 %s, v112 offset:%d" % (vr(FR(t, kk, 4), 4), t * 128 + kk * 64))
            a.label(l)
        def small(s):
            o = [MF16(16 + 4 * q, FR(s, kk, q), FR(s, kk, 2), (16 + 4 * q) if (s or kk) else None) for kk in range(2) for q in range(2)]
            def gt():
                l = self.lab("ng")
                e("s_cmp_eq_u32 s40, 4\ns_cbranch_scc0 %s" % l)
                for kk in range(2): e(MF16(24, FR(s, kk, 4), FR(s, kk, 3), 24 if (s or kk) else None))
                a.label(l)
            return o + [gt]
        def wo2(g):
            self.dma_wo(g); self.dma_wo(g, 68, -4096)
        def piece(s, q):
            g, p = divmod(q, 2)
            if not p: gran(s, g)
            elif g < 2: self.dma(buf(s) + g, 65 + g, SX, sKX + s, 0, ("c", s), -4096)
            else: self.dma(buf(s) + g, 67, SW, sKW + s, 1024 * (1, 2, 0)[g - 2], ("c", s), -4096)
        def wopiece(g, p): self.dma_wo(g, 68 if p else vWO, -4096 * p)
        for s in range(8):
            self.stamp("a%d" % s); a.wait(vm=("c", s)); self.stamp("w%d" % s); self.barrier(); self.stamp("k%d" % s)
            if s < 6: ld = [lambda q=q: piece(s + 2, q) for q in range(10)]
            elif s == 6: ld = [lambda q=q: wopiece(10 + q // 2, q & 1) for q in range(6)] + [lambda: None] * 4
            else: ld = [lambda q=q: wopiece(13 + q // 2, q & 1) for q in range(4)] + [lambda: None] * 6
            if s == 6: self.tag_issue()
            rd = (late(0) if s == 1 else []) + early(s) + (late(s) if s else [])
            ms = small(s - 1) if s >= 2 else []
            for q in range(10):
                ld[q]()
                for t in rd[q::10]: a.lds(t)
                if q < len(ms): self.emit_items([ms[q]])
                if q == 6: gate_r(s)
            if s == 1:
                a.wait(lg=0); self.emit_items(small(0))
        scal()
        self.barrier()
        self.emit_items(small(7))
        self.stamp("kend")
        e("s_setprio 0")
        for q in range(2):
            e(CVT(16 + 4 * q, 16 + 4 * q)); e(CVT(17 + 4 * q, 18 + 4 * q))
            a.lds("ds_write_b64 v78, %s offset:%d" % (vr(16 + 4 * q, 2), 18432 * q))
        l = self.lab("nog")
        e("s_cmp_eq_u32 s40, 4\ns_cbranch_scc0 %s" % l)
        e("v_mul_f32 v24, s52, v24\nv_exp_f32 v24, -v24\nv_add_f32 v24, 1.0, v24\nv_rcp_f32 v24, v24")
        e("v_lshlrev_b32 v25, 2, v0\ns_mov_b64 exec, 0xffff\nbuffer_store_dword v24, v25, s[16:19], s71 offen sc1\ns_mov_b64 exec, -1")
        a.label(l)
        self.get_tag()
        for g in (0, 1, 2, 3, 4, 15): wo2(g)
        a.label("L_Bt")
        self.barrier()
        self.stamp("bv3")
        KF, VF, S, O = 128, 144, 160, 176
        e("s_mov_b32 exec_lo, 0x00ff00ff\ns_mov_b32 exec_hi, 0xff00ff00")
        for u in range(4): a.lds("ds_read_b128 %s, v91 offset:%d" % (vr(QF + 4 * u, 4), 512 * u), ("q", u))
        e("s_mov_b64 exec, -1")
        for u in range(4): a.lds("ds_read_b128 %s, v88 offset:%d" % (vr(KF + 4 * u, 4), 512 * u), ("k", u))
        for u in range(4):
            for hd in range(2): a.lds("ds_read_b64_tr_b16 %s, v%d offset:%d" % (vr(VF + 4 * u + 2 * hd, 2), 89 + hd, 512 * u), "v")
        for u in range(4):
            a.wait(lg=("k", u))
            e(MF16(S + 4 * u, KF + 4 * u, QF + 4 * u, 84 if u < 2 else 80))
        self.barrier()
        M = 100
        for u in range(4): e("v_max3_f32 v%d, v%d, v%d, v%d" % (M + u, S + 4 * u, S + 4 * u + 1, S + 4 * u + 2))
        for u in range(4): e("v_max_f32 v%d, v%d, v%d" % (M + u, M + u, S + 4 * u + 3))
        e("v_permlane16_swap_b32 v100, v101\nv_permlane16_swap_b32 v102, v103\nv_max_f32 v100, v100, v101\nv_max_f32 v102, v102, v103")
        e("v_permlane32_swap_b32 v100, v102\nv_max_f32 v100, v100, v102")
        e("s_mov_b32 s52, 0x3EB8AA3B")
        e("v_mul_f32 v100, s52, v100\nv_mov_b32 v104, v100\nv_permlane32_swap_b32 v100, v104")
        e("v_mov_b32 v102, v100\nv_mov_b32 v106, v104\nv_permlane16_swap_b32 v100, v102\nv_permlane16_swap_b32 v104, v106")
        for i in range(16): e("v_fma_f32 v%d, v%d, s52, -v%d" % (S + i, S + i, M + 2 * (i // 4)))
        for i in range(16): e("v_exp_f32 v%d, v%d" % (S + i, S + i))
        for hd, mk in ((0, 0x00ff00ff), (1, 0xff00ff00)):
            e("s_mov_b32 exec_lo, 0x%x\ns_mov_b32 exec_hi, 0x%x" % (mk, mk))
            for u in range(4):
                for h in (0, 1): e(CVT(PO + 4 * u + 2 * hd + h, S + 4 * u + 2 * h))
        e("s_mov_b64 exec, -1")
        a.wait(lg=0)
        for u in range(4):
            e(MF16(O + 8 * u + 4, 96, PO + 4 * u, None)); e(MF16(O + 8 * u, VF + 4 * u, PO + 4 * u, None))
        for u in range(4): e("v_rcp_f32 v%d, v%d" % (O + 8 * u + 4, O + 8 * u + 4))
        for u in range(4):
            for h in range(4): e("v_mul_f32 v%d, v%d, v%d" % (O + 8 * u + h, O + 8 * u + h, O + 8 * u + 4))
        for u in range(4):
            for h in (0, 1): e(CVT(KF + 2 * u + h, O + 8 * u + 2 * h))
        a.vm = []
        for sp in range(2):
            for h in (0, 1): e("v_permlane16_swap_b32 v%d, v%d" % (KF + 4 * sp + h, KF + 4 * sp + 2 + h))
            a.vmem("buffer_store_dwordx4 %s, v92, s[16:19], s68 offen offset:%d sc1" % (vr(KF + 4 * sp, 4), 256 * sp), "ost")
        self.stamp("ost")
        for g in (5, 6, 7, 8, 9): self.dma_wo(g)
        self.p2setup()
        a.wait(vm="ost")
        self.flag(69)
        self.stamp("oflag")
        l = self.lab("f2")
        e("s_cmp_eq_u32 s70, 0\ns_cbranch_scc1 %s" % l)
        e("s_mov_b64 exec, 1\nbuffer_store_dword v14, off, s[16:19], s70 sc1\ns_mov_b64 exec, -1")
        e("s_waitcnt vmcnt(2)\ns_branch L_phase2")
        a.label(l)
        a.wait(vm="wo")

    def p2setup(self):
        e = self.a.e
        e("s_and_b32 s84, s40, 1\ns_bfe_u32 s54, s40, 0x10001")
        e("v_bfe_u32 v16, v0, 2, 2\nv_lshrrev_b32 v17, 5, v0\nv_lshl_add_u32 v16, v17, 2, v16\nv_lshlrev_b32 v16, 7, v16")
        e("v_bfe_u32 v17, v0, 3, 1\nv_xor_b32 v17, s54, v17\nv_lshl_add_u32 v16, v17, 6, v16")
        e("v_bfe_u32 v17, v0, 4, 1\nv_lshl_add_u32 v16, v17, 5, v16\nv_and_b32 v17, 3, v0\nv_lshl_add_u32 v9, v17, 3, v16")
        e("s_lshr_b32 s50, s40, 1\ns_lshl_b32 s50, s50, 15\nv_add_u32 v9, s50, v9\nv_xor_b32 v10, 64, v9")
        e("s_lshl_b32 s55, s45, 1\ns_add_u32 s55, s55, s84\ns_lshl_b32 s50, s55, 2\ns_lshr_b32 s51, s40, 1\ns_add_u32 s50, s50, s51\ns_lshl_b32 s50, s50, 14")
        for g in range(4):
            e("s_add_u32 s51, s45, %d\ns_and_b32 s51, s51, 3\ns_lshl_b32 s51, s51, 12\ns_add_u32 s%d, s50, s51" % (g, 64 + g))
        e("s_lshl_b32 s68, s55, %d\ns_lshl_b32 s50, s85, 18\ns_add_u32 s68, s68, s50\ns_add_u32 s68, s68, 0x%x" % (self.o["fs2"] + 5, F2_OFF))

    def phase2(self):
        a = self.a; e = a.e
        a.label("L_phase2")
        a.vm = []
        OFR = 48
        EX, BD = 16 * SLOT, 8 * SLOT
        def oloads():
            for i in range(16):
                a.vmem("buffer_load_dwordx4 %s, v13, s[16:19], s%d offen offset:%d sc1" % (vr(OFR + 4 * i, 4), 64 + i // 4, (i % 4) * 1024), ("of", i))
        def preread():
            for i in range(16):
                for t in range(2):
                    for tt in range(2):
                        a.lds("ds_read_b64_tr_b16 %s, v%d offset:%d" % (vr(XR + 8 * i + 4 * t + 2 * tt, 2), 9 + t, (16 * i + 8 * tt) * 128))
        def mfmas():
            for i in range(16):
                a.wait(vm=("of", i))
                for t in range(2): e(MF32(ACK + 16 * t, XR + 8 * i + 4 * t, OFR + 4 * i, (ACK + 16 * t) if i else None))
        e("s_cmp_eq_u32 s85, 0\ns_cbranch_scc0 L_P2A")
        st = a.state()
        e("v_and_b32 v11, 7, v0\ns_lshl_b32 s50, s54, 3\nv_add_u32 v11, s50, v11\nv_and_b32 v12, 1, v0\nv_add_u32 v12, 16, v12")
        e("v_cmp_gt_u32 vcc, 32, v0\nv_cndmask_b32 v11, v12, v11, vcc\nv_lshlrev_b32 v11, %d, v11" % self.o["fs2"])
        self.poll_issue(12, 11, 68, "p2")
        e("v_and_b32 v5, 31, v0\nv_lshlrev_b32 v5, 2, v5\ns_lshl_b32 s50, s55, 7\ns_add_u32 s50, s50, 0x%x" % GP_OFF)
        e("s_barrier")
        self.stamp("p1")
        preread()
        self.barrier()
        self.poll_check(12, 11, 68, "p2")
        self.stamp("p2poll")
        a.vmem("buffer_load_dword v6, v5, s[16:19], s50 offen sc1", "g")
        oloads()
        mfmas()
        e("s_lshl_b32 s50, s84, 7\ns_add_u32 s50, s50, 0x%x\nv_add_u32 v5, s50, v5\nv_sub_f32 v8, 1.0, v6" % GEX)
        a.lds("ds_write_b32 v5, v6")
        e("s_lshl_b32 s50, s54, 1\ns_add_u32 s50, s50, s84\ns_lshl_b32 s50, s50, 1\ns_add_u32 s50, s50, s54\ns_lshl_b32 s50, s50, 12\ns_add_u32 s50, s50, 0x%x" % BD)
        e("v_add_u32 v5, s50, v13\nv_xor_b32 v7, 0x1000, v5")
        for t in range(2):
            for i in range(16): e("v_mul_f32 v%d, v%d, v8" % (ACK + 16 * t + i, ACK + 16 * t + i))
            for i in range(4): a.lds("ds_write_b128 v%d, %s offset:%d" % (5 + 2 * t, vr(ACK + 16 * t + 4 * i, 4), 1024 * i))
        self.stamp("bdump")
        self.barrier()
        self.stamp("p3")
        e("s_branch L_fin")
        a.restore(st)
        a.label("L_P2A")
        e("v_and_b32 v11, 6, v0\ns_lshl_b32 s50, s54, 3\nv_add_u32 v11, s50, v11\nv_lshlrev_b32 v11, %d, v11" % self.o["fs2"])
        e("s_lshl_b32 s50, s84, 1\ns_add_u32 s50, s50, s54\ns_lshl_b32 s50, s50, 12\nv_add_u32 v5, s50, v13")
        e("v_add_u32 v7, 0x%x, v5\nv_xor_b32 v6, 0x1000, v7\nv_add_u32 v5, 0x%x, v5" % (EX, BD))
        e("v_and_b32 v8, 31, v0\nv_lshlrev_b32 v8, 2, v8\ns_lshl_b32 s50, s84, 7\ns_add_u32 s50, s50, 0x%x\nv_add_u32 v8, s50, v8" % GEX)
        e("v_and_b32 v1, 16, v0\nv_and_b32 v2, 7, v0\nv_lshl_add_u32 v1, v2, 1, v1\nv_bfe_u32 v2, v0, 3, 1\nv_add_u32 v1, v1, v2\nv_lshlrev_b32 v1, 10, v1")
        e("v_lshrrev_b32 v2, 5, v0\nv_lshl_add_u32 v1, v2, 4, v1")
        e("s_lshl_b32 s69, s55, 15\ns_lshl_b32 s50, s46, 7\ns_add_u32 s69, s69, s50\ns_lshl_b32 s50, s54, 6\ns_add_u32 s69, s69, s50")
        e("s_barrier")
        self.stamp("p1")
        preread()
        self.poll_issue(12, 11, 68, "p2")
        self.barrier()
        self.poll_check(12, 11, 68, "p2")
        self.stamp("p2poll")
        oloads()
        mfmas()
        for i in range(4): a.lds("ds_write_b128 v6, %s offset:%d" % (vr(ACV + 4 * i, 4), 1024 * i))
        self.stamp("bdump")
        self.barrier()
        self.stamp("p3")
        a.lds("ds_read_b32 v10, v8", "g")
        for i in range(4):
            a.lds("ds_read_b128 %s, v7 offset:%d" % (vr(48 + 4 * i, 4), 1024 * i), ("x", i))
            a.lds("ds_read_b128 %s, v5 offset:%d" % (vr(64 + 4 * i, 4), 1024 * i), ("x", i))
            a.lds("ds_read_b128 %s, v5 offset:%d" % (vr(80 + 4 * i, 4), 16384 + 1024 * i), ("x", i))
        for i in range(4):
            a.wait(lg=("x", i))
            for h in (0, 2):
                r = 4 * i + h
                e("v_pk_add_f32 %s, %s, %s" % (vr(ACK + r, 2), vr(ACK + r, 2), vr(48 + r, 2)))
                e("v_pk_add_f32 %s, %s, %s" % (vr(64 + r, 2), vr(64 + r, 2), vr(80 + r, 2)))
            for h in (0, 2):
                r = 4 * i + h
                e("v_pk_fma_f32 %s, %s, v[10:11], %s op_sel_hi:[1,0,1]" % (vr(ACK + r, 2), vr(ACK + r, 2), vr(64 + r, 2)))
            for h in (0, 1): e(CVT(96 + 2 * i + h, ACK + 4 * i + 2 * h))
            if i & 1:
                b = 96 + 4 * (i >> 1)
                e("v_permlane32_swap_b32 v%d, v%d\nv_permlane32_swap_b32 v%d, v%d" % (b, b + 2, b + 1, b + 3))
                a.vmem("buffer_store_dwordx4 %s, v1, s[28:31], s69 offen offset:%d" % (vr(b, 4), 32 * (i >> 1)))
        self.stamp("outst")
        a.label("L_fin")
        if self.stamps:
            e("s_waitcnt vmcnt(0)")
            self.stamp("end")
            e("s_waitcnt lgkmcnt(0)")
            e("s_lshl_b32 s50, s2, 3\ns_add_u32 s50, s50, s40\ns_lshl_b32 s50, s50, 6\ns_add_u32 s50, s50, 0x%x" % STAMP_OFF)
            for i in range(12): e("v_mov_b32 v%d, s%d" % (16 + i, STAMPS[i]))
            e("s_mov_b64 exec, 1")
            for i in range(3): e("buffer_store_dwordx4 %s, off, s[16:19], s50 offset:%d" % (vr(16 + 4 * i, 4), 16 * i))
            if self.dbgout:
                e("s_cmp_eq_u32 s40, 4\ns_cbranch_scc0 L_end")
                e("v_not_b32 v28, v16\nbuffer_atomic_umax v28, off, s[36:39], 0 offset:8")
                for i in range(12): e("buffer_atomic_umax v%d, off, s[36:39], 0 offset:%d" % (16 + i, 12 + 4 * i))
        a.label("L_end")
        e("s_endpgm")

    def build(self):
        self.a.label("L_start")
        if self.stamps:
            for r in STAMPS: self.a.e("s_mov_b64 %s, 0" % sr(r, 2))
        self.setup()
        self.typeA()
        self.typeB()
        self.phase2()
        lines, added = fix_hazards(self.a.lines)
        hdr = open("cdna_kernels/%s.s.ref" % KNAME).read().split("; Override launch")[0]
        out = hdr + "; @launch grid=(256,1,1) block=(512,1,1) lds=163840\n"
        out += '.amdgcn_target "amdgcn-amd-amdhsa--gfx950"\n.text\n.globl %s_kernel\n.p2align 8\n.type %s_kernel,@function\n%s_kernel:\n' % ((KNAME,) * 3)
        out += "\n".join(("" if l.endswith(":") else "    ") + l for l in lines) + "\n"
        out += '.section .rodata,"a"\n.p2align 6\n.amdhsa_kernel %s_kernel\n' % KNAME
        out += "  .amdhsa_next_free_vgpr 256\n  .amdhsa_next_free_sgpr 102\n  .amdhsa_accum_offset 256\n  .amdhsa_group_segment_fixed_size 0\n  .amdhsa_kernarg_size 88\n"
        out += "  .amdhsa_user_sgpr_count 2\n  .amdhsa_user_sgpr_kernarg_segment_ptr 1\n  .amdhsa_system_sgpr_workgroup_id_x 1\n.end_amdhsa_kernel\n"
        return out

if __name__ == "__main__":
    stamps = 2 if "--cyc" in sys.argv else ("--stamps" in sys.argv)
    outp = [x for x in sys.argv[1:] if not x.startswith("--")][0]
    sset = [x[7:].split(",") for x in sys.argv if x.startswith("--sset=")]
    opt = dict((x[2:].split("=")[0], int(x.split("=")[1])) for x in sys.argv if x.startswith("--") and "=" in x and not x.startswith("--sset"))
    open(outp, "w").write(Gen(stamps, sset[0] if sset else None, opt).build())
```

```python
import sys
from asmlib import *

KNAME = "gated_mix__linear_kernel_hedgehog__sliding_local_dilated__prompt"
SLOT = 8192
MISC = 19 * SLOT
WPHI = MISC
GATE = MISC
GPART = MISC + 1024
GEX = MISC + 2048
MCNT = MISC + 2560
KVOP = MISC + 3072
OF_OFF = 0
KVP_OFF = 4 << 20
ZP_OFF = 5 << 20
GP_OFF = (5 << 20) + (128 << 10)
F1_OFF = (5 << 20) + (256 << 10)
F2_OFF = F1_OFF + (128 << 10)
STAMP_OFF = 192 << 20
LOG2E = 0x3FB8AA3B
NEG = 0xF149F2CA
TAGC = 0x9E3779B9

SX, SW, SWS, SWOA, SWOB, SOUT, SMISC, SDBG = 8, 12, 16, 20, 24, 28, 32, 36
sW, sRB, sGRP, sTYPE, sROT, sRT, sCT, sTAG, sWL, sOFF = 40, 41, 42, 43, 44, 45, 46, 47, 48, 49
sKX, sKW, sWOO, sR, sC = 64, 72, 80, 84, 85
STAMPS = [86, 88, 90, 92, 94, 96, 98, 100, 58, 60, 62, 6]
vX0, vW, vWO = 1, 3, 4
ACK, ACV, RING, XR = 16, 32, 48, 128
WV_SLOTS = [12, 16, 17, 18, 0, 1, 2, 3]
WQ_A = [13, 4, 5, 6, 7, 16, 17, 18]

class Addr:
    def __init__(self, a, regs, base=0):
        self.a, self.regs, self.base = a, regs, base
    def rebase(self, nb):
        if nb != self.base:
            for r in self.regs:
                self.a.e("v_add_u32 v%d, 0x%x, v%d" % (r, (nb - self.base) & 0xffffffff, r))
            self.base = nb
    def at(self, off, i=0, span=0, gran=49152):
        if not (0 <= off - self.base and off + span - self.base <= 65535 - 15):
            self.rebase(off // gran * gran)
        return "v%d offset:%d" % (self.regs[i], off - self.base)

def MF32(d, a, b, c): return "v_mfma_f32_32x32x16_bf16 %s, %s, %s, %s" % (vr(d, 16), vr(a, 4), vr(b, 4), "0" if c is None else vr(c, 16))
def MF16(d, a, b, c): return "v_mfma_f32_16x16x32_bf16 %s, %s, %s, %s" % (vr(d, 4), vr(a, 4), vr(b, 4), "0" if c is None else vr(c, 4))
def CVT(d, s): return "v_cvt_pk_bf16_f32 v%d, v%d, v%d" % (d, s, s + 1)

class Gen:
    def __init__(self, stamps=False, sset=None, opt=None):
        self.a = Asm()
        self.stamps = stamps
        self.dbgout = "--dbgout" in sys.argv
        self.sset = sset or "0,k0,kend,bv3,kvst,qend,pollok,sum,ost,p2poll,p3,end".split(",")
        self.o = dict(bd=2, warm=0, pk1=2, g0n=2, g1n=5, g2n=4, fs1=7, fs2=7, sl1=2, pre=0)
        self.o.update(opt or {})
        self.nl = 0
    def stamp(self, name):
        if self.stamps and name in self.sset:
            self.a.e("%s %s" % ("s_memtime" if self.stamps == 2 else "s_memrealtime", sr(STAMPS[self.sset.index(name)], 2)))
    def wgtype(self, wg): return (wg >> 6) & 1
    def lab(self, p):
        self.nl += 1
        return "L_%s_%d" % (p, self.nl)

    def dma(self, slot, vaddr, srd, sbase, add, tag, ldsadd=0):
        a = self.a
        a.e("s_add_u32 m0, s%d, 0x%x" % (sWL, (slot * SLOT + ldsadd) & 0xffffffff))
        if add:
            a.e("s_add_u32 s%d, s%d, 0x%x" % (sOFF, sbase, add & 0xffffffff)); so = "s%d" % sOFF
        else:
            so = "s%d" % sbase
        a.vmem("buffer_load_dwordx4 v%d, %s, %s offen lds" % (vaddr, sr(srd, 4), so), tag)
    def dma_x(self, s, h, slot): self.dma(slot, vX0 + h, SX, sKX + s, 0, ("c", s))
    def dma_w(self, s, sec, slot, tag): self.dma(slot, vW, SW, sKW + s, 1024 * sec, tag)
    def dma_wo(self, g, vaddr=vWO, ldsadd=0):
        self.dma(g, vaddr, SWOA if g >= 8 else SWOB, sWOO + (g & 3), ((g >> 2) & 1) * 262144, "wo", ldsadd)

    def gemm(self, n, D, reads, mfmas, pre={}, post={}, pairfrom=None):
        a = self.a
        for i in range(n + D):
            if i < n:
                if i in pre: pre[i]()
                for t in reads(i): a.lds(t, ("r", i))
                for f in post.get(i - 1000, []): f()
            k = i - D
            if k >= 0:
                kk = k + 1 if (pairfrom is not None and k >= pairfrom and k % 2 == 0 and k + 1 < n) else k
                a.wait(lg=[("r", k), ("r", kk)])
                for t in mfmas(k): a.e(t)
            for f in post.get(i, []): f()
            for f in post.get(i + 2000, []): f()

    def gemm_il(self, n, D, reads, mfmas, pre={}, post={}):
        a = self.a
        for i in range(n + D):
            k = i - D
            ms = []
            if k >= 0:
                a.wait(lg=("r", k)); ms = mfmas(k)
            if ms: a.e(ms[0])
            rs = []
            if i < n:
                if i in pre: pre[i]()
                rs = reads(i)
            nm = max(1, len(ms)); per = -(-len(rs) // nm)
            for q in range(nm):
                if q: a.e(ms[q])
                for t in rs[q * per:(q + 1) * per]: a.lds(t, ("r", i))
                if q == 0:
                    for f in post.get(i - 1000, []): f()
            for f in post.get(i, []): f()

    def barrier(self, vm=None):
        self.a.wait(vm=vm, lg=0)
        self.a.e("s_barrier")

    def kxw(self, s):
        e = self.a.e
        e("s_add_u32 s50, s44, %d\ns_and_b32 s50, s50, 7" % s)
        e("s_lshl_b32 s%d, s50, 7\ns_add_u32 s%d, s%d, s54" % (sKX + s, sKX + s, sKX + s))
        e("s_mul_i32 s%d, s50, 0x30000\ns_add_u32 s%d, s%d, s55" % (sKW + s, sKW + s, sKW + s))

    def setup(self):
        a = self.a; e = a.e
        self.stamp("0")
        e("s_cmp_ge_u32 s2, 256\ns_cbranch_scc1 L_end")
        e("s_load_dwordx4 s[4:7], s[0:1], 0")
        e("s_load_dwordx2 s[12:13], s[0:1], 40")
        e("v_lshrrev_b32 v1, 6, v0\nv_and_b32 v0, 63, v0")
        e("s_and_b32 s50, s2, 7\ns_lshr_b32 s51, s2, 3")
        e("v_readfirstlane_b32 s%d, v1" % sW)
        e("s_and_b32 s41, s50, 1\ns_lshl_b32 s41, s41, 3\ns_and_b32 s54, s51, 7\ns_add_u32 s41, s41, s54")
        e("s_lshr_b32 s54, s51, 3")
        e("s_and_b32 s43, s54, 1")
        e("s_and_b32 s42, s50, 6\ns_lshr_b32 s55, s54, 1\ns_add_u32 s42, s42, s55")
        e("s_lshl_b32 s44, s54, 1\ns_add_u32 s44, s44, s41\ns_and_b32 s44, s44, 7")
        e("s_lshl_b32 s45, s50, 2\ns_add_u32 s45, s45, s54")
        e("s_and_b32 s46, s51, 7")
        e("s_lshl_b32 s48, s40, 10")
        e("v_lshrrev_b32 v5, 3, v0\nv_lshrrev_b32 v6, 4, v0\nv_and_b32 v7, 7, v0")
        e("s_and_b32 s54, s40, 1\ns_lshl_b32 s55, s54, 2")
        e("v_add_u32 v8, s55, v6\nv_xor_b32 v8, v8, v7\nv_lshlrev_b32 v8, 4, v8")
        e("s_lshr_b32 s55, s40, 1\ns_lshl_b32 s55, s55, 4\ns_add_u32 s55, s55, s54\ns_lshl_b32 s55, s55, 10")
        e("v_lshl_add_u32 v1, v5, 11, v8\nv_add_u32 v1, s55, v1\nv_add_u32 v2, 0x10000, v1")
        e("v_and_b32 v6, 1, v6\nv_lshlrev_b32 v6, 2, v6\nv_xor_b32 v6, v6, v7\nv_lshlrev_b32 v6, 4, v6")
        e("s_lshl_b32 s55, s40, 3\nv_add_u32 v5, s55, v5")
        e("s_movk_i32 s55, 3072\nv_mad_u32_u24 v3, v5, s55, v6\nv_lshl_add_u32 v4, v5, 10, v6")
        e("v_lshlrev_b32 v13, 4, v0")
        e("s_lshl_b32 s54, s41, 17\ns_lshl_b32 s55, s42, 7")
        for s in range(2): self.kxw(s)
        e("s_and_b32 s%d, s40, 3\ns_lshr_b32 s%d, s40, 2" % (sR, sC))
        e("s_mov_b32 s10, 0x200000\ns_mov_b32 s11, 0x20000\ns_mov_b32 s14, 0x180000\ns_mov_b32 s15, 0x20000")
        e("s_cmp_eq_u32 s43, 0")
        e("s_waitcnt lgkmcnt(0)")
        self.stamp("ka")
        e("s_mov_b32 s8, s4\ns_mov_b32 s9, s5")
        e("s_cbranch_scc0 L_typeB")
        e("s_mov_b32 s12, s6\ns_mov_b32 s13, s7")

    def setup_rest(self, typ, pf):
        a = self.a; e = a.e
        e("s_load_dwordx2 s[32:33], s[0:1], %d" % (16 if typ == 0 else 56))
        e("s_load_dwordx2 s[20:21], s[0:1], 24\ns_load_dwordx2 s[24:25], s[0:1], 48\ns_load_dwordx2 s[28:29], s[0:1], 64")
        e("s_load_dwordx2 s[36:37], s[0:1], 72\ns_load_dwordx2 s[16:17], s[0:1], 80")
        for q in range(2, 8): self.kxw(q)
        e("s_mov_b32 s34, 0x%x\ns_mov_b32 s35, 0x20000" % (0x4000 if typ == 0 else 0x400))
        e("s_mov_b32 s18, 0x10000000\ns_mov_b32 s19, 0x20000\ns_mov_b32 s22, 0x80000\ns_mov_b32 s23, 0x20000")
        e("s_mov_b32 s26, 0x80000\ns_mov_b32 s27, 0x20000\ns_mov_b32 s30, 0x200000\ns_mov_b32 s31, 0x20000")
        e("s_mov_b32 s38, 0x100\ns_mov_b32 s39, 0x20000")
        l = self.lab("nopre"); pc = self.lab("pc")
        e("s_cmp_eq_u32 s40, 3\ns_cbranch_scc0 %s" % l)
        e("s_getpc_b64 s[4:5]")
        a.label(pc)
        e("s_sub_u32 s4, s4, %s-L_start\ns_subb_u32 s5, s5, 0" % pc)
        e("s_lshr_b32 s50, s2, 3\ns_lshl_b32 s50, s50, 10\nv_add_u32 v16, s50, v13\nv_min_u32 v16, L_end-L_start-16, v16")
        e("global_load_dwordx4 %s, v16, s[4:5]" % vr(pf, 4))
        a.label(l)
        e("s_waitcnt lgkmcnt(0)")
        l = self.lab("nomisc")
        e("s_cmp_lt_u32 s40, %d\ns_cbranch_scc0 %s" % (2 - typ, l))
        if typ == 0: e("s_lshl_b32 s50, s42, 11\ns_add_u32 s50, s50, s48\nv_add_u32 v16, s50, v13")
        else: e("s_lshl_b32 s50, s44, 7\nv_add_u32 v16, s50, v13\nv_and_b32 v16, 0x3ff, v16")
        e("s_add_u32 m0, s48, 0x%x\nbuffer_load_dwordx4 v16, s[32:35], 0 offen lds" % MISC)
        a.label(l)

    def setup2(self, srow=sR, sh=12, scol=sC):
        e = self.a.e
        e("s_mov_b32 s52, 0x%x\ns_mov_b32 s53, 0x%x" % (LOG2E, LOG2E))
        for g in range(4):
            e("s_add_u32 s50, s45, %d\ns_and_b32 s50, s50, 3\ns_lshl_b32 s50, s50, 16\ns_lshl_b32 s51, s46, 7\ns_add_u32 s%d, s50, s51" % (g, sWOO + g))
        e("v_and_b32 v16, 31, v0\nv_lshrrev_b32 v17, 5, v0\nv_bfe_u32 v18, v0, 1, 3\nv_xor_b32 v17, v17, v18\nv_lshlrev_b32 v17, 4, v17")
        e("s_lshl_b32 s50, s%d, %d\nv_lshl_add_u32 v5, v16, 7, v17\nv_add_u32 v5, s50, v5" % (srow, sh))
        e("v_xor_b32 v6, 32, v5\nv_xor_b32 v7, 64, v5\nv_xor_b32 v8, 0x60, v5")
        e("v_bfe_u32 v16, v0, 2, 2\nv_lshrrev_b32 v17, 5, v0\nv_lshl_add_u32 v16, v17, 3, v16\nv_lshlrev_b32 v16, 7, v16")
        e("v_bfe_u32 v17, v0, 3, 1\nv_xor_b32 v17, s%d, v17\nv_lshl_add_u32 v16, v17, 6, v16" % scol)
        e("v_bfe_u32 v17, v0, 4, 1\nv_lshl_add_u32 v16, v17, 5, v16\nv_and_b32 v17, 3, v0\nv_lshl_add_u32 v9, v17, 3, v16")
        self.xa = Addr(self.a, [5, 6, 7, 8]); self.wa = Addr(self.a, [9])

    def wreads(self, slot, j, r, **kw):
        return ["ds_read_b64_tr_b16 %s, %s" % (vr(r + 2 * tt, 2), self.wa.at(slot * SLOT + (16 * j + 4 * tt) * 128, **kw)) for tt in (0, 1)]

    def wpass(self, slots, acc, pre={}, post={}, D=5):
        def reads(i): return self.wreads(slots[i // 4], i % 4, RING + 4 * (i % 6))
        def mf(k): return [MF32(acc, RING + 4 * (k % 6), XR + 4 * k, acc if k else None)]
        self.gemm(32, D, reads, mf, pre, post)

    def tag_issue(self): self.a.vmem("buffer_load_dwordx2 v[14:15], off, s[36:39], 0 sc1", "tag")
    def get_tag(self):
        a = self.a; e = a.e
        ok, rt = self.lab("tagok"), self.lab("tagrt")
        a.wait(vm="tag")
        e("s_mov_b32 s51, 0")
        a.label(rt)
        e("v_readfirstlane_b32 s50, v15\nv_readfirstlane_b32 s%d, v14" % sTAG)
        e("s_add_u32 s51, s51, 1\ns_cmp_lg_u32 s50, 0\ns_cbranch_scc1 %s" % ok)
        e("s_cmp_gt_u32 s51, 0x4000\ns_cbranch_scc1 %s" % ok)
        e("s_sleep 4\nbuffer_load_dwordx2 v[14:15], off, s[36:39], 0 sc1\ns_waitcnt vmcnt(0)\ns_branch %s" % rt)
        a.label(ok)
    def flag(self, soff):
        self.a.e("s_mov_b64 exec, 1")
        self.a.vmem("buffer_store_dword v14, off, s[16:19], s%d sc1" % soff, "flag")
        self.a.e("s_mov_b64 exec, -1")
    def poll_issue(self, vdst, vaddr, soff, tag):
        self.a.vmem("buffer_load_dword v%d, v%d, s[16:19], s%d offen sc1" % (vdst, vaddr, soff), tag)
    def poll_check(self, vdst, vaddr, soff, tag, sleep=2):
        a = self.a; e = a.e
        ok, rt = self.lab("pok"), self.lab("prt")
        a.wait(vm=tag)
        e("s_mov_b32 s51, 0")
        a.label(rt)
        e("v_cmp_ne_u32 vcc, s%d, v%d" % (sTAG, vdst))
        e("s_add_u32 s51, s51, 1\ns_cbranch_vccz %s" % ok)
        e("s_cmp_gt_u32 s51, 0x4000\ns_cbranch_scc1 %s" % ok)
        e("s_sleep %d\nbuffer_load_dword v%d, v%d, s[16:19], s%d offen sc1\ns_waitcnt vmcnt(0)\ns_branch %s" % (sleep, vdst, vaddr, soff, rt))
        a.label(ok)

    KB, EP, T = 80, 88, 104
    def phi_pre(self):
        e = self.a.e
        for i in range(8): e(CVT(self.KB + i, ACK + 2 * i))
        e(MF32(ACK, 72, self.KB, None)); e(MF32(ACK, 76, self.KB + 4, ACK))
    def phi(self, hooks={}, nm="pk", pk=False, collect=False, pk1=False, ACK=16, pk2=False, EP=88):
        items = []
        def e(t): items.extend(t.split("\n"))
        KB, T = self.KB, self.T
        def H(n):
            items.append(lambda: self.stamp("%s%d" % (nm, n)))
            if n in hooks: items.append(hooks[n])
        H(0)
        mm = (("v_max3_f32", T), ("v_min3_f32", T + 2))
        for (op, d) in mm:
            e("%s v%d, v%d, v%d, v%d" % (op, d, ACK, ACK + 1, ACK + 2))
            e("%s v%d, v%d, v%d, v%d" % (op, d + 1, ACK + 3, ACK + 4, ACK + 5))
        for i in range(2):
            for (op, d) in mm:
                e("%s v%d, v%d, v%d, v%d" % (op, d, d, ACK + 6 + 4 * i, ACK + 7 + 4 * i))
                e("%s v%d, v%d, v%d, v%d" % (op, d + 1, d + 1, ACK + 8 + 4 * i, ACK + 9 + 4 * i))
        for (op, d) in mm: e("%s v%d, v%d, v%d, v%d" % (op, d, d, ACK + 14, ACK + 15))
        e("v_max_f32 v%d, v%d, v%d\nv_min_f32 v%d, v%d, v%d" % (T, T, T + 1, T + 2, T + 2, T + 3))
        e("v_mul_f32 v%d, s52, v%d\nv_mul_f32 v%d, s52, v%d" % (T, T, T + 2, T + 2))
        if pk or pk1:
            for i in range(8):
                e("v_pk_fma_f32 %s, %s, s[52:53], %s op_sel_hi:[1,1,0] neg_lo:[0,0,1] neg_hi:[0,0,1]" % (vr(EP + 2 * i, 2), vr(ACK + 2 * i, 2), vr(T, 2)))
            for i in range(8):
                e("v_pk_fma_f32 %s, %s, s[52:53], %s op_sel_hi:[1,1,0] neg_lo:[1,0,0] neg_hi:[1,0,0]" % (vr(ACK + 2 * i, 2), vr(ACK + 2 * i, 2), vr(T + 2, 2)))
        else:
            for i in range(16): e("v_fma_f32 v%d, v%d, s52, -v%d" % (EP + i, ACK + i, T))
            for i in range(16): e("v_fma_f32 v%d, -v%d, s52, v%d" % (ACK + i, ACK + i, T + 2))
        H(1)
        for i in range(16): e("v_exp_f32 v%d, v%d" % (EP + i, EP + i))
        H(2)
        for i in range(16): e("v_exp_f32 v%d, v%d" % (ACK + i, ACK + i))
        H(3)
        two = ((EP, KB), (ACK, KB + 4))
        pk = pk or pk2
        if pk:
            for (src, d) in two:
                e("v_pk_add_f32 %s, %s, %s" % (vr(d, 2), vr(src, 2), vr(src + 2, 2)))
                e("v_pk_add_f32 %s, %s, %s" % (vr(d + 2, 2), vr(src + 4, 2), vr(src + 6, 2)))
            for i in range(2):
                for (src, d) in two:
                    e("v_pk_add_f32 %s, %s, %s" % (vr(d, 2), vr(d, 2), vr(src + 8 + 4 * i, 2)))
                    e("v_pk_add_f32 %s, %s, %s" % (vr(d + 2, 2), vr(d + 2, 2), vr(src + 10 + 4 * i, 2)))
            for (src, d) in two: e("v_pk_add_f32 %s, %s, %s" % (vr(d, 2), vr(d, 2), vr(d + 2, 2)))
        else:
            for (src, d) in two:
                for q in range(2): e("v_add_f32 v%d, v%d, v%d" % (d + q, src + 2 * q, src + 2 * q + 1))
            for i in range(6):
                for (src, d) in two:
                    for q in range(2): e("v_add_f32 v%d, v%d, v%d" % (d + q, d + q, src + 4 + 2 * i + q))
        for (src, d) in two: e("v_add_f32 v%d, v%d, v%d" % (d, d, d + 1))
        for (src, d) in two: e("v_rcp_f32 v%d, v%d" % (d, d))
        H(4)
        for p, (src, d) in enumerate(two):
            for q in range(2):
                if pk:
                    for i in range(4 * q, 4 * q + 4): e("v_pk_mul_f32 %s, %s, %s op_sel_hi:[1,0]" % (vr(src + 2 * i, 2), vr(src + 2 * i, 2), vr(d, 2)))
                else:
                    for i in range(8 * q, 8 * q + 8): e("v_mul_f32 v%d, v%d, v%d" % (src + i, src + i, d))
                for i in range(4 * q, 4 * q + 4): e(CVT(src + i, src + 2 * i))
                H(5 + 2 * p + q)
        if collect: return items
        self.emit_items(items)

    def emit_items(self, items):
        for it in items:
            if callable(it): it()
            else: self.a.e(it)

    def spread(self, items, first, last, post, budget):
        def cost(it):
            if callable(it): return getattr(it, "cost", 0)
            if it.startswith(TRANS): return 2
            return 1.5 if it.startswith(("v_fma", "v_max3", "v_min3")) else 1
        items = list(items); credit = 0
        for i in range(first, last + 1):
            credit = min(credit, 0.5) + budget; g = []
            while items and cost(items[0]) <= credit:
                credit -= cost(items[0]); g.append(items.pop(0))
            post.setdefault(i, []).append(lambda g=g: self.emit_items(g))
        return items

    def stage_addr(self, d, t, srow=sR, sh=11):
        e = self.a.e
        e("v_and_b32 v%d, 31, v0\nv_lshrrev_b32 v%d, 5, v0\nv_bfe_u32 v%d, v0, 1, 2" % (d, t, t + 1))
        e("v_xor_b32 v%d, v%d, v%d\nv_lshlrev_b32 v%d, 4, v%d" % (t, t, t + 1, t, t))
        e("s_lshl_b32 s50, s%d, %d\nv_lshl_add_u32 v%d, v%d, 6, v%d\nv_add_u32 v%d, s50, v%d" % (srow, sh, d, d, t, d, d))

    def tr_addr(self, d, t, half_sgpr, rowskip):
        e = self.a.e
        e("v_lshrrev_b32 v%d, 2, v0" % d)
        e("v_bfe_u32 v%d, v0, 3, 2\nv_bfe_u32 v%d, v0, 1, 1\nv_xor_b32 v%d, v%d, v%d" % (t, t + 1, t, t, t + 1))
        if half_sgpr is not None:
            e("s_lshl_b32 s50, s%d, 1\nv_xor_b32 v%d, s50, v%d" % (half_sgpr, t, t))
        if rowskip:
            e("v_and_b32 v%d, 8, v%d\nv_add_u32 v%d, v%d, v%d" % (t + 1, d, d, d, t + 1))
        e("v_lshlrev_b32 v%d, 6, v%d\nv_lshl_add_u32 v%d, v%d, 4, v%d" % (d, d, d, t, d))
        e("v_and_b32 v%d, 1, v0\nv_lshl_add_u32 v%d, v%d, 3, v%d" % (t, d, t, d))

    def msig(self, c):
        self.a.e("s_mov_b64 exec, 1"); self.a.lds("ds_add_u32 v126, v127 offset:%d" % (4 * c)); self.a.e("s_mov_b64 exec, -1")
    def mread(self, c): self.a.lds("ds_read_b32 v125, v126 offset:%d" % (4 * c), ("ms", c))
    def mcheck(self, c, n=4, sleep=0):
        a = self.a; e = a.e
        ok, rt = self.lab("mok"), self.lab("mrt")
        a.wait(lg=("ms", c))
        a.label(rt)
        e("v_readfirstlane_b32 s50, v125\ns_cmp_ge_u32 s50, %d\ns_cbranch_scc1 %s" % (n, ok))
        if sleep: e("s_sleep %d" % sleep)
        e("ds_read_b32 v125, v126 offset:%d\ns_waitcnt lgkmcnt(0)\ns_branch %s" % (4 * c, rt))
        a.label(ok)

    def typeA(self):
        a = self.a; e = a.e; o = self.o
        cx = lambda s, h: self.dma_x(s, h, 3 * (s & 3) + h)
        ck = lambda s: self.dma_w(s, 1, 3 * (s & 3) + 2, ("c", s))
        wv = lambda s: self.dma_w(s, 2, WV_SLOTS[s], ("wv", s))
        wq = lambda s: self.dma_w(s, 0, WQ_A[s], ("wq", s))
        cx(0, 0); cx(0, 1); ck(0); cx(1, 0); cx(1, 1); wv(0); wq(0)
        self.setup_rest(0, 104)
        e("v_mov_b32 v126, 0x%x\nv_mov_b32 v127, 1\nv_mov_b32 v16, 0\nv_mov_b32 v17, 0\nv_mov_b32 v18, 0\nv_mov_b32 v19, 0" % MCNT)
        a.lds("ds_write_b128 v126, v[16:19]"); a.lds("ds_write_b128 v126, v[16:19] offset:16")
        e("s_barrier")
        ck(1); cx(2, 0); cx(2, 1); ck(2)
        e("s_mov_b32 s55, 0")
        self.setup2(scol=55)
        e("v_xor_b32 v10, 64, v9")
        self.wa = Addr(a, [9, 10])
        e("v_and_b32 v16, 1, v0\nv_lshlrev_b32 v16, 9, v16")
        e("v_bfe_u32 v17, v0, 2, 2\nv_lshrrev_b32 v18, 5, v0\nv_lshl_add_u32 v17, v18, 2, v17\nv_lshl_add_u32 v16, v17, 5, v16")
        e("v_bfe_u32 v17, v0, 4, 1\nv_lshl_add_u32 v16, v17, 4, v16\nv_bfe_u32 v17, v0, 1, 1\nv_lshl_add_u32 v16, v17, 3, v16")
        e("v_add_u32 v12, 0x%x, v16" % WPHI)
        e("v_lshrrev_b32 v16, 5, v0")
        e("v_xor_b32 v124, 0x8000, v4")
        self.stage_addr(20, 17)
        def wrd(slot, j, r, c):
            return ["ds_read_b64_tr_b16 %s, %s" % (vr(r + 2 * tt, 2), self.wa.at(slot * SLOT + (16 * j + 4 * tt) * 128, c)) for tt in (0, 1)]
        def wphi_r(c):
            for t in range(2): a.lds("ds_read_b64_tr_b16 %s, v12 offset:%d" % (vr(72 - 8 * c + 2 * t, 2), 1024 * c + 256 * t))
        def wphi_m(c):
            b = 72 - 8 * c
            e("v_and_b32 v125, 4, v0\nv_cmp_eq_u32 vcc, 0, v125")
            for i in range(4): e("v_cndmask_b32 v%d, v%d, 0, vcc" % (b + 4 + i, b + i))
            for i in range(4): e("v_cndmask_b32 v%d, 0, v%d, vcc" % (b + i, b + i))
        def proj():
            for c in range(2):
                kb = (80, 48)[c]
                for i in range(8): e(CVT(kb + i, 16 + 16 * c + 2 * i))
                e(MF32(16 + 16 * c, 72 - 8 * c, kb, None)); e(MF32(16 + 16 * c, 76 - 8 * c, kb + 4, 16 + 16 * c))
        GA = (12, 0, 1, 2, 3, 8, 9, 10, 11, 14, 15, 4, 5, 6, 7, 13); g1, g2 = o["g1n"], o["g1n"] + o["g2n"]
        assert g2 <= 11
        e("s_cmp_eq_u32 s%d, 0\ns_cbranch_scc0 L_AK" % sC)
        st = a.state()
        e("v_add_u32 v116, 0x%x, v20\nv_xor_b32 v117, 32, v116" % (14 * SLOT))
        e("v_and_b32 v18, 15, v0\nv_lshl_add_u32 v18, v16, 4, v18\nv_lshlrev_b32 v18, 4, v18\nv_lshlrev_b32 v17, 4, v16\nv_add_u32 v17, 0x200, v17")
        e("v_and_b32 v19, 16, v0\nv_cmp_eq_u32 vcc, 0, v19\nv_cndmask_b32 v122, v17, v18, vcc\nv_add_u32 v122, 0x%x, v122" % KVOP)
        e("s_lshl_b32 s50, s41, 2\ns_add_u32 s50, s50, s%d\ns_lshl_b32 s56, s50, 5\ns_lshl_b32 s51, s42, 1\ns_add_u32 s56, s56, s51" % sR)
        e("s_lshl_b32 s57, s56, %d\ns_add_u32 s57, s57, 0x%x\ns_add_u32 s56, s56, 16\ns_lshl_b32 s56, s56, 11" % (o["fs2"], F2_OFF + (256 << 10)))
        e("v_xor_b32 v56, 0x8000, v1\nv_xor_b32 v57, 0x8000, v2\nv_add_u32 v58, 0x18000, v3")
        self.stamp("1")
        def x2(s, h): cx(s, h); self.dma(3 * (s & 3) + h, 56 + h, SX, sKX + s, 0, ("c", s), 4096)
        def w2(s, sec, slot, tag): self.dma_w(s, sec, slot, tag); self.dma(slot, 58, SW, sKW + s, 1024 * sec, tag, 4096)
        wv2 = lambda s: w2(s, 2, WV_SLOTS[s], ("wv", s))
        wq2 = lambda s: w2(s, 0, WQ_A[s], ("wq", s))
        VR = lambda t: 80 + 8 * (t % 4)
        def dreads(slots, t): return wrd(slots[t // 4], t % 4, VR(t), 0) + wrd(slots[t // 4], t % 4, VR(t) + 4, 1)
        def dmf(t): return [MF32(16 + 16 * c, VR(t) + 4 * c, XR + 4 * t, (16 + 16 * c) if t else None) for c in range(2)]
        for s in range(8):
            self.barrier(vm=("c", s)); self.stamp("k%d" % s)
            if s < 5: ld = [lambda: x2(s + 3, 0), lambda: x2(s + 3, 1), lambda: ck(s + 3)]
            elif s < 7: ld = [lambda g=g: wv2(3 * s - 14 + g) for g in range(2)] + [lambda: wv(3 * s - 12)]
            else: ld = [lambda: wv2(7), lambda: None, lambda: None]
            ld[0]()
            for j in range(4): a.lds("ds_read_b128 %s, %s" % (vr(XR + 16 * s + 4 * j, 4), self.xa.at(3 * (s & 3) * SLOT, j)))
            ld[1](); ld[2]()
            if s == 3: self.tag_issue()
        for t in range(4):
            for r in dreads(WV_SLOTS, t): a.lds(r, ("v0", t))
        for t in range(4):
            a.wait(lg=("v0", t))
            for m in dmf(t): e(m)
            wq2(1 + t)
        wphi_r(0); wphi_r(1)
        self.stamp("ae")
        self.barrier(vm=("wv", 7))
        self.stamp("bv1")
        self.gemm_il(28, 3, lambda i: dreads(WV_SLOTS, i + 4), lambda k: dmf(k + 4), {}, {})
        self.stamp("v1")
        for c in range(2):
            b = 16 + 16 * c
            for q in range(2):
                for i in range(4 * q, 4 * q + 4): e(CVT(b + i, b + 2 * i))
                a.lds("ds_write_b128 v%d, %s offset:%d" % (116 + q, vr(b + 4 * q, 4), SLOT * c))
        self.stamp("abv3")
        self.barrier(vm=("wq", 4))
        self.stamp("bv3")
        wphi_m(0); wphi_m(1)
        self.get_tag()
        self.stamp("q0")
        self.gemm_il(32, 3, lambda i: dreads(WQ_A, i), dmf, {20: lambda: (e("s_barrier"), self.stamp("q3"))}, {})
        self.stamp("qend")
        proj()
        for c in range(2):
            ep = (88, 128)[c]
            self.phi(nm="pq%d" % c, pk=True, ACK=16 + 16 * c, EP=ep)
            for b in (ep, 16 + 16 * c):
                for i in range(4): e("v_permlane32_swap_b32 v%d, v%d" % (b + i, b + 4 + i))
        self.stamp("asum")
        e("s_barrier")
        self.stamp("sum")
        for i in range(8): a.lds("ds_read_b128 %s, v122 offset:%d" % (vr(144 + 4 * i, 4), 576 * i), ("o", i))
        for h in range(4):
            a.wait(lg=("o", 2 * h + 1))
            D = 176 + 16 * h; c, hd = divmod(h, 2)
            e(MF32(D, 144 + 8 * h, (88, 128)[c] + 4 * hd, None)); e(MF32(D, 148 + 8 * h, 16 + 16 * c + 4 * hd, D))
        a.vm = []
        for h in range(4):
            D = 176 + 16 * h
            e("v_add_f32 v%d, 0x358637bd, v%d\nv_rcp_f32 v%d, v%d" % (D + 8, D + 8, D + 8, D + 8))
            if h < 2:
                for i in range(8): e("v_mul_f32 v%d, v%d, v%d" % (D + i, D + i, D + 8))
            else:
                for i in range(4): e("v_pk_mul_f32 %s, %s, %s op_sel_hi:[1,0]" % (vr(D + 2 * i, 2), vr(D + 2 * i, 2), vr(D + 8, 2)))
            for i in range(4): e(CVT(D + 12 + i, D + 2 * i))
            a.vmem("buffer_store_dwordx4 %s, v13, s[16:19], s56 offen offset:%d sc1" % (vr(D + 12, 4), 1024 * h), "ost")
        self.stamp("ost")
        self.p2setup()
        a.wait(vm="ost")
        self.flag(57)
        self.stamp("oflag")
        e("s_branch L_phase2")
        a.restore(st); self.xa.base = 0; self.wa.base = 0
        a.label("L_AK")
        e("v_lshlrev_b32 v18, 4, v16\nv_xor_b32 v20, v20, v18\nv_lshl_add_u32 v20, v16, 13, v20\nv_add_u32 v112, 0x%x, v20" % (8 * SLOT))
        e("v_xor_b32 v113, 16, v112\nv_xor_b32 v114, 32, v112\nv_xor_b32 v115, 48, v112")
        e("v_and_b32 v17, 15, v0\nv_lshrrev_b32 v18, 4, v0\nv_lshlrev_b32 v121, 4, v17\nv_lshl_add_u32 v116, v18, 3, v121\nv_lshl_add_u32 v121, v18, 10, v121")
        e("s_mul_i32 s50, s%d, 1152\ns_add_u32 s50, s50, 0x%x\nv_add_u32 v116, s50, v116" % (sR, KVOP))
        e("v_bfe_u32 v117, v0, 1, 1\nv_mul_u32_u24 v117, 576, v117\nv_and_b32 v19, 1, v0\nv_lshl_add_u32 v117, v19, 4, v117\nv_lshl_add_u32 v117, v18, 3, v117\ns_add_u32 s50, s50, 512\nv_add_u32 v117, s50, v117")
        e("v_lshlrev_b32 v19, 4, v19\nv_mov_b32 v18, 0x3f80\nv_lshlrev_b32 v18, v19, v18\nv_lshrrev_b32 v17, 1, v17")
        for i in range(4): e("v_cmp_eq_u32 vcc, %d, v17\nv_cndmask_b32 v%d, 0, v18, vcc" % (i, 56 + i))
        e("v_and_b32 v123, 15, v0\nv_lshlrev_b32 v123, %d, v123\nv_subrev_u32 v11, 0x18000, v3" % o["fs1"])
        e("s_lshl_b32 s50, s42, 2\ns_add_u32 s50, s50, s%d" % sR)
        e("s_lshl_b32 s4, s50, %d\ns_add_u32 s4, s4, 0x%x\ns_lshl_b32 s5, s50, 14\ns_add_u32 s5, s5, 0x%x\ns_lshl_b32 s43, s50, 10\ns_add_u32 s43, s43, 0x%x" % (o["fs1"] + 4, F1_OFF, KVP_OFF, ZP_OFF))
        e("s_lshl_b32 s50, s50, 4\ns_add_u32 s50, s50, s41")
        e("s_lshl_b32 s3, s50, %d\ns_add_u32 s3, s3, 0x%x" % (o["fs1"], F1_OFF))
        e("s_lshl_b32 s54, s50, 10\ns_add_u32 s54, s54, 0x%x\ns_lshl_b32 s55, s50, 6\ns_add_u32 s55, s55, 0x%x" % (KVP_OFF, ZP_OFF))
        self.tr_addr(118, 17, None, False)
        e("s_and_b32 s50, s%d, 1\ns_lshl_b32 s50, s50, 5\nv_xor_b32 v119, s50, v118" % sR)
        e("s_lshr_b32 s50, s%d, 1\ns_lshl_b32 s50, s50, 13\ns_add_u32 s50, s50, 0x%x\nv_add_u32 v119, s50, v119" % (sR, 14 * SLOT))
        e("s_lshl_b32 s50, s%d, 13\ns_add_u32 s50, s50, 0x%x\nv_add_u32 v118, s50, v118\nv_xor_b32 v122, 32, v118" % (sR, 8 * SLOT))
        for i in range(4): e("v_mov_b32 v%d, 0x3f803f80" % (60 + i))
        e("v_and_b32 v120, 3, v0\nv_bfe_u32 v17, v0, 2, 1\nv_lshl_add_u32 v120, v17, 3, v120\nv_bfe_u32 v17, v0, 3, 1\nv_lshl_add_u32 v120, v17, 2, v120")
        e("v_bfe_u32 v17, v0, 4, 1\nv_lshl_add_u32 v17, v17, 1, v16\nv_lshl_add_u32 v120, v17, 4, v120\nv_lshlrev_b32 v120, 4, v120\nv_lshlrev_b32 v108, 4, v17")
        e("s_setprio 1")
        self.stamp("1")
        KR = lambda t: 128 + 12 * (t % 6)
        def reads(i):
            s, j = divmod(i, 4); b = 3 * (s & 3)
            return ["ds_read_b128 %s, %s" % (vr(KR(i), 4), self.xa.at(b * SLOT, j))] + wrd(b + 2, j, KR(i) + 4, 0) + wrd(b + 2, j, KR(i) + 8, 1)
        def mf(k): return [MF32(16 + 16 * c, KR(k) + 4 + 4 * c, KR(k), (16 + 16 * c) if k else None) for c in range(2)]
        extra = {2: lambda: (wphi_r(0), wphi_r(1)), 3: lambda: (wphi_m(0), self.tag_issue()), 4: lambda: wphi_m(1), 6: self.get_tag}
        for s in range(8):
            self.barrier(vm=("c", s)); self.stamp("k%d" % s)
            pend = (mf(4 * s - 2) + mf(4 * s - 1)) if s else [None] * 4
            for j in range(4):
                if pend[j]: e(pend[j])
                for t in reads(4 * s + j): a.lds(t, ("r", j))
            for j in range(4 if s == 7 else 2):
                a.wait(lg=("r", j))
                for m in mf(4 * s + j): e(m)
                if j == 0 and s < 5: ck(s + 3)
                if j == 0 and 5 <= s < 7: wv(3 * s - 12)
            if s in extra: extra[s]()
        self.stamp("kend")
        proj()
        def ebar():
            self.stamp("ae")
            a.wait(vm=("wv", 6))
            e("s_barrier")
            self.stamp("bv1")
            e("s_setprio 0")
        EPK = (88, 128)
        def phi_write(c, ch):
            a.lds("ds_write_b128 v%d, %s offset:%d" % (112 + ch, vr((EPK[c], 16 + 16 * c)[ch >> 1] + 4 * (ch & 1), 4), 2 * SLOT * c))
        its = [self.phi({5 + ch: (lambda c=c, ch=ch: phi_write(c, ch)) for ch in range(4)}, nm="pk%d" % c, ACK=16 + 16 * c, EP=EPK[c], collect=True, pk1=(c < o["pk1"])) for c in range(2)]
        cut = [[q for q, it in enumerate(x) if isinstance(it, str) and it.startswith("v_exp")][0] for x in its]
        def warm():
            if not o["warm"]: return
            e("s_lshl_b32 s50, s%d, 17\ns_lshl_b32 s51, s46, 7\ns_add_u32 s50, s50, s51\ns_add_u32 s51, s50, 0x10000\nv_lshlrev_b32 v109, 10, v0" % sR)
            for srd in (SWOB, SWOA):
                for q in (50, 51): a.vmem("buffer_load_dword v110, v109, %s, s%d offen" % (sr(srd, 4), q), "warm")
        def wq57():
            for q in range(5, 8):
                wq(q); self.dma(WQ_A[q], 11, SW, sKW + q, 0, ("wq", q), -4096)
        if o["pk1"] == 2: seq = its[0][:cut[0]] + its[1][:cut[1]] + [ebar, warm] + its[0][cut[0]:] + its[1][cut[1]:]
        else: seq = its[0][:cut[0]] + [ebar, warm] + its[0][cut[0]:] + its[1]
        self.emit_items(seq)
        if o["pre"]: self.msig(1); self.mread(1)
        self.stamp("pend")
        if o["pre"]: self.mcheck(1, 4, 1)
        else:
            self.stamp("abv3"); self.barrier(); self.stamp("bv3")
        e("s_setprio 1")
        PH, VV = 144, 176
        for m in range(4):
            for f in range(2):
                for t in range(2): a.lds("ds_read_b64_tr_b16 %s, v%d offset:%d" % (vr(PH + 8 * m + 4 * f + 2 * t, 2), (118, 122)[f], m * 2048 + t * 1024), ("k", m))
            if not o["pre"]:
                for t in range(2): a.lds("ds_read_b64_tr_b16 %s, v119 offset:%d" % (vr(VV + 4 * m + 2 * t, 2), m * 2048 + t * 1024), ("k", m))
        def pack(b, vaddr, soff, mask):
            e(CVT(b, b)); e(CVT(b + 1, b + 2)); e(CVT(b + 2, b + 4)); e(CVT(b + 3, b + 6))
            e("v_permlane16_swap_b32 v%d, v%d\nv_permlane16_swap_b32 v%d, v%d" % (b, b + 2, b + 1, b + 3))
            if mask: e("s_mov_b32 exec_lo, 0x10001\ns_mov_b32 exec_hi, 0x10001")
            a.vmem("buffer_store_dwordx4 %s, v%d, s[16:19], s%d offen sc1" % (vr(b, 4), vaddr, soff), "kvst")
            if mask: e("s_mov_b64 exec, -1")
        def zm(m):
            for f in range(2): e(MF16(48 + 4 * f, PH + 8 * m + 4 * f, 60, (48 + 4 * f) if m else None))
        def km(m):
            for f in range(2): e(MF16(16 + 4 * f, PH + 8 * m + 4 * f, VV + 4 * m, (16 + 4 * f) if m else None))
        if o["pre"]:
            for m in range(4):
                a.wait(lg=("k", m)); zm(m)
            pack(48, 108, 55, True)
            self.stamp("abv3")
            e("s_barrier")
            self.stamp("bv3")
            for m in range(4):
                for t in range(2): a.lds("ds_read_b64_tr_b16 %s, v119 offset:%d" % (vr(VV + 4 * m + 2 * t, 2), m * 2048 + t * 1024), ("k", m))
            for m in range(4):
                a.wait(lg=("k", m)); km(m)
            pack(16, 120, 54, False)
        else:
            for m in range(4):
                a.wait(lg=("k", m)); km(m); zm(m)
            pack(16, 120, 54, False); pack(48, 108, 55, True)
        self.stamp("kvst")
        e("s_setprio 0")
        def wo2(g): self.dma_wo(g); self.dma_wo(g, 124, -4096)
        assert g1 <= (9 if o['pre'] else 5)
        wq57()
        for g in GA[:o["g0n"]]: wo2(g)
        a.wait(vm="kvst"); self.flag(3)
        self.stamp("q1")
        for g in GA[o["g0n"]:g1]: wo2(g)
        a.wait(vm=("wq", 7))
        self.stamp("aq")
        e("s_barrier")
        if o.get("wwo"):
            a.wait(vm=0); self.stamp("wl")
        self.stamp("q2")
        self.poll_issue(125, 123, 4, "p1")
        a.wait(vm="p1"); self.stamp("p1st")
        self.poll_check(125, 123, 4, "p1", o["sl1"])
        if self.stamps and "np" in self.sset: e("s_lshl_b32 s50, s51, 7\ns_add_u32 s%d, s%d, s50" % (STAMPS[self.sset.index("np")], STAMPS[0]))
        self.stamp("pollok")
        a.vmem("buffer_load_dwordx4 v[32:35], v13, s[16:19], s43 offen sc1", "z")
        for i in range(16):
            if i % 4 == 0 and i: e("s_add_u32 s5, s5, 4096")
            a.vmem("buffer_load_dwordx4 %s, v121, s[16:19], s5 offen offset:%d sc1" % (vr(XR + 4 * i, 4), (i % 4) * 256), ("kp", i))
        self.stamp("bi")
        for g in GA[g1:g2]: wo2(g)
        e("s_setprio 1")
        a.wait(vm="z")
        e(MF16(36, 56, 32, None))
        for i in range(16):
            a.wait(vm=("kp", i))
            e(MF16(16 + 4 * (i % 4), 56, XR + 4 * i, (16 + 4 * (i % 4)) if i >= 4 else None))
            if i == 7:
                for k in (4, 8):
                    for q in range(4): e("v_add_f32_dpp v%d, v%d, v%d row_ror:%d row_mask:0xf bank_mask:0xf" % (36 + q, 36 + q, 36 + q, k))
                e(CVT(36, 36)); e(CVT(37, 38))
        self.stamp("bl")
        e("s_mov_b32 exec_hi, 0")
        a.lds("ds_write_b64 v117, v[36:37]")
        for q in range(4):
            e(CVT(16 + 4 * q, 16 + 4 * q)); e(CVT(17 + 4 * q, 18 + 4 * q))
            a.lds("ds_write_b64 v116, %s offset:%d" % (vr(16 + 4 * q, 2), 576 * (q >> 1) + 256 * (q & 1)))
        e("s_mov_b64 exec, -1\ns_setprio 0")
        self.stamp("asum")
        self.barrier()
        self.stamp("sum")
        self.p2setup()
        for g in GA[g2:]: wo2(g)
        a.wait(vm=0)
        e("s_branch L_phase2")

    def typeB(self):
        a = self.a; e = a.e
        a.vm = []; a.lg = []
        a.label("L_typeB")
        HALO, KV, QP = 15 * SLOT, 5 * SLOT, 17 * SLOT
        buf = lambda s: 5 * (s % 3)
        def gran(s, g):
            if g < 2: self.dma_x(s, g, buf(s) + g)
            else: self.dma_w(s, (1, 2, 0)[g - 2], buf(s) + g, ("c", s))
        for g in range(5): gran(0, g)
        gran(1, 0); gran(1, 1)
        self.setup_rest(1, 240)
        l = self.lab("notag")
        e("s_lshl_b32 s50, s2, 3\ns_add_u32 s50, s50, s40\ns_cmp_eq_u32 s50, %d\ns_cbranch_scc0 %s" % (64 * 8 + 7, l))
        e("s_mov_b32 s50, 0x%x\ns_buffer_load_dword s50, s[16:19], s50\ns_waitcnt lgkmcnt(0)" % F1_OFF)
        e("s_add_u32 s50, s50, 0x%x\nv_mov_b32 v16, s50\nv_mov_b32 v17, 1\ns_mov_b64 exec, 1" % TAGC)
        e("buffer_store_dwordx2 v[16:17], off, s[36:39], 0 sc1\ns_mov_b64 exec, -1")
        a.label(l)
        e("s_barrier")
        e("v_lshrrev_b32 v16, 3, v0\nv_lshrrev_b32 v17, 4, v0\nv_and_b32 v18, 7, v0\nv_xor_b32 v17, v17, v18\nv_lshlrev_b32 v17, 4, v17\nv_lshl_add_u32 v16, v16, 11, v17")
        e("s_add_u32 s50, s44, s40\ns_and_b32 s50, s50, 7\ns_lshl_b32 s50, s50, 7\ns_lshl_b32 s51, s41, 17\ns_add_u32 s50, s50, s51\ns_sub_u32 s50, s50, 0x4000")
        e("v_add_u32 v16, s50, v16\nv_xor_b32 v17, 64, v16\nv_add_u32 v17, 0x400, v17")
        e("s_lshl_b32 s50, s40, 11\ns_add_u32 m0, s50, 0x%x" % HALO)
        a.vmem("buffer_load_dwordx4 v16, s[8:11], 0 offen lds", "halo")
        e("s_add_u32 m0, s50, 0x%x" % (HALO + 1024))
        a.vmem("buffer_load_dwordx4 v17, s[8:11], 0 offen lds", "halo")
        for g in (2, 3, 4): gran(1, g)
        e("s_and_b32 s54, s40, 1\ns_bfe_u32 s55, s40, 0x10001")
        self.setup2(54, 13, 55)
        self.stage_addr(76, 16, 54, 12)
        e("s_lshl_b32 s50, s55, 13\ns_add_u32 s50, s50, 0x%x\nv_add_u32 v79, s50, v76\nv_xor_b32 v64, 32, v79" % QP)
        e("s_mul_i32 s50, s55, 9216\ns_add_u32 s50, s50, 0x%x\nv_add_u32 v76, s50, v76\nv_xor_b32 v77, 32, v76" % (KV + 1024))
        e("v_lshrrev_b32 v88, 4, v0\nv_lshlrev_b32 v88, 2, v88\nv_and_b32 v89, 7, v0\nv_sub_u32 v88, v88, v89\nv_mov_b32 v90, 0x%x" % NEG)
        for i in range(4):
            e("v_add_u32 v89, %d, v88\nv_cmp_gt_u32 vcc, 8, v89\nv_cndmask_b32 v%d, v90, 0, vcc" % (i - 1, 80 + i))
        e("s_or_b32 s50, s41, s%d\ns_cmp_eq_u32 s50, 0\ns_cselect_b32 s50, 32, 0\nv_cmp_gt_u32 vcc, s50, v0" % sR)
        for i in range(4): e("v_cndmask_b32 v%d, v%d, v90, vcc" % (84 + i, 80 + i))
        e("s_mul_i32 s54, s%d, 9216\ns_lshl_b32 s50, s%d, 11\ns_add_u32 s54, s54, s50\ns_add_u32 s54, s54, 0x%x" % (sC, sR, KV))
        e("v_and_b32 v88, 15, v0\nv_and_b32 v89, 8, v0\nv_add_u32 v88, v88, v89\nv_lshrrev_b32 v89, 4, v0\nv_bfe_u32 v90, v0, 1, 2\nv_xor_b32 v89, v89, v90\nv_lshlrev_b32 v89, 4, v89")
        e("v_and_b32 v91, 7, v0\nv_lshl_add_u32 v91, v91, 6, v89\nv_lshl_add_u32 v88, v88, 6, v89\nv_add_u32 v88, s54, v88")
        e("s_lshl_b32 s50, s%d, 13\ns_lshl_b32 s51, s%d, 11\ns_add_u32 s50, s50, s51\ns_add_u32 s50, s50, 0x%x\nv_add_u32 v91, s50, v91" % (sC, sR, QP))
        self.tr_addr(89, 92, None, True)
        e("s_add_u32 s54, s54, 18432\nv_add_u32 v89, s54, v89\nv_xor_b32 v90, 32, v89")
        e("v_bfe_u32 v92, v0, 3, 1\nv_lshlrev_b32 v92, 6, v92\nv_and_b32 v93, 32, v0\nv_add_u32 v92, v92, v93\nv_bfe_u32 v93, v0, 4, 1\nv_lshl_add_u32 v92, v93, 3, v92")
        e("v_and_b32 v93, 7, v0\nv_add_u32 v92, v92, v93\nv_lshlrev_b32 v92, 4, v92")
        for i in range(4): e("v_mov_b32 v%d, 0x3f803f80" % (96 + i))
        QF, PO = 208, 224
        for i in range(32): e("v_mov_b32 v%d, 0" % (QF + i))
        self.stamp("1")
        def scal():
            e("s_lshl_b32 s50, s41, 2\ns_add_u32 s50, s50, s%d\ns_lshl_b32 s51, s42, 1\ns_add_u32 s51, s51, s%d" % (sR, sC))
            e("s_lshl_b32 s68, s50, 5\ns_add_u32 s68, s68, s51\ns_lshl_b32 s69, s68, %d\ns_add_u32 s69, s69, 0x%x\ns_lshl_b32 s68, s68, 11" % (self.o["fs2"], F2_OFF))
            e("s_lshl_b32 s50, s41, 2\ns_lshr_b32 s51, s42, 1\ns_add_u32 s50, s50, s51\ns_lshl_b32 s50, s50, 5\ns_and_b32 s51, s42, 1\ns_add_u32 s50, s50, s51")
            e("s_lshl_b32 s70, s50, %d\ns_add_u32 s70, s70, 0x%x\ns_cmp_eq_u32 s40, 4\ns_cselect_b32 s70, s70, 0" % (self.o["fs2"], F2_OFF + (16 << self.o["fs2"])))
            e("s_lshl_b32 s71, s41, 9\ns_lshl_b32 s51, s42, 6\ns_add_u32 s71, s71, s51\ns_add_u32 s71, s71, 0x%x" % GP_OFF)
        e("s_cmp_eq_u32 s%d, 0\ns_cbranch_scc0 L_Bh" % sC)
        st = a.state()
        RG = 148; AC = (16, 100)
        scal()
        def reads(i):
            s, j = divmod(i, 4); r = RG + 20 * (i % 3); b = buf(s)
            self.wa.at(b * SLOT, span=5 * SLOT - 64, gran=5 * SLOT)
            self.xa.at(b * SLOT, span=4096, gran=5 * SLOT)
            x = ["ds_read_b128 %s, %s" % (vr(r + 4 * h, 4), self.xa.at(b * SLOT + 4096 * h, j)) for h in range(2)]
            w = [self.wreads(b + 2 + sec, j, r + 8 + 4 * sec) for sec in range(3)]
            if self.o.get("nox"): return w[0] + w[1] + w[2]
            if self.o.get("now"): return x
            return [x[0]] + w[0] + [x[1]] + w[1] + w[2]
        def mf(k):
            r = RG + 20 * (k % 3)
            return [MF32(AC[h] + 16 * sec, r + 8 + 4 * sec, r + 4 * h, (AC[h] + 16 * sec) if k else None) for sec in range(3) for h in range(2)]
        pre = {4 * s: (lambda s=s: (self.stamp("a%d" % s), self.barrier(vm=("c", s)), self.stamp("k%d" % s))) for s in range(8)}
        NT = self.o["bd"] + 1
        self.gemm_il(32, self.o["bd"], reads, lambda k: mf(k) if k < 32 - NT else mf(k)[:2], pre, {24: [self.tag_issue]})
        self.barrier()
        def stage(sec):
            a0, a1, off = ((76, 77, 0), (76, 77, 18432), (79, 64, 0))[sec]
            o = []
            for h in range(2):
                b = AC[h] + 16 * sec
                for q, ad in enumerate((a0, a1)):
                    o += [CVT(b + i, b + 2 * i) for i in range(4 * q, 4 * q + 4)]
                    o.append(lambda t="ds_write_b128 v%d, %s offset:%d" % (ad, vr(b + 4 * q, 4), off + 2048 * h): a.lds(t))
            return o
        pend = stage(0)
        for sec in range(1, 3):
            ms = [mf(k)[2 * sec + h] for h in range(2) for k in range(32 - NT, 32)]
            per = -(-len(pend) // (len(ms) - 1))
            for q, m in enumerate(ms):
                e(m)
                if q: self.emit_items(pend[(q - 1) * per:q * per])
            pend = stage(sec)
        self.stamp("kend")
        self.emit_items(pend)
        self.get_tag()
        e("s_branch L_Bt")
        a.restore(st)
        a.label("L_Bh")
        e("s_setprio %d" % self.o.get("hprio", 2))
        e("v_xor_b32 v65, 0x8000, v1\nv_xor_b32 v66, 0x8000, v2\nv_subrev_u32 v67, 0x18000, v3\nv_xor_b32 v68, 0x8000, v4")
        e("v_and_b32 v16, 15, v0\nv_lshrrev_b32 v17, 4, v0\nv_bfe_u32 v18, v0, 1, 3\nv_xor_b32 v18, v17, v18\nv_lshlrev_b32 v18, 4, v18\nv_lshl_add_u32 v18, v16, 7, v18")
        e("v_add_u32 v10, 0x%x, v18\nv_xor_b32 v11, 64, v10" % HALO)
        e("s_lshl_b32 s50, s42, 11\nv_add_u32 v110, s50, v18\nv_xor_b32 v111, 64, v110")
        e("v_lshlrev_b32 v112, 4, v17\nv_add_u32 v112, 0x%x, v112" % GATE)
        e("v_bfe_u32 v16, v0, 2, 2\nv_lshl_add_u32 v16, v17, 3, v16\nv_lshlrev_b32 v16, 7, v16")
        e("s_lshr_b32 s50, s%d, 1\nv_bfe_u32 v17, v0, 3, 1\nv_xor_b32 v17, s50, v17\nv_lshl_add_u32 v16, v17, 6, v16" % sR)
        e("s_and_b32 s50, s%d, 1\ns_lshl_b32 s50, s50, 5\nv_and_b32 v17, 3, v0\nv_lshl_add_u32 v16, v17, 3, v16\nv_add_u32 v12, s50, v16" % sR)
        e("v_bfe_u32 v78, v0, 4, 1\nv_bfe_u32 v16, v0, 1, 2\nv_xor_b32 v78, v78, v16\ns_and_b32 s50, s%d, 1\ns_lshl_b32 s50, s50, 1\nv_xor_b32 v78, s50, v78" % sR)
        e("v_lshlrev_b32 v78, 4, v78\nv_and_b32 v16, 15, v0\nv_lshl_add_u32 v78, v16, 6, v78\nv_lshrrev_b32 v16, 5, v0\nv_lshl_add_u32 v78, v16, 3, v78")
        e("s_lshr_b32 s50, s%d, 1\ns_mul_i32 s50, s50, 9216\ns_add_u32 s50, s50, 0x%x\nv_add_u32 v78, s50, v78" % (sR, KV))
        ha = Addr(a, [12]); ga = Addr(a, [110, 111])
        def gran2(s, g):
            gran(s, g)
            if g < 2: self.dma(buf(s) + g, 65 + g, SX, sKX + s, 0, ("c", s), -4096)
            else: self.dma(buf(s) + g, 67, SW, sKW + s, 1024 * (1, 2, 0)[g - 2], ("c", s), -4096)
        FR = lambda s, kk, q: 128 + 40 * (s & 1) + 20 * kk + 4 * q
        def early(s):
            b = buf(s)
            ha.at(b * SLOT, span=4 * SLOT, gran=5 * SLOT)
            return ["ds_read_b64_tr_b16 %s, %s" % (vr(FR(s, kk, q) + 2 * tt, 2), ha.at((b + 2 + q) * SLOT + (32 * kk + 4 * tt) * 128)) for kk in range(2) for q in range(2) for tt in range(2)]
        def late(s): return ["ds_read_b128 %s, v%d offset:%d" % (vr(FR(s, kk, 2), 4), 10 + kk, s * 2048) for kk in range(2)]
        def gate_r(s):
            ga.at(buf(s) * SLOT, gran=5 * SLOT)
            l = self.lab("ngr")
            e("s_cmp_eq_u32 s40, 4\ns_cbranch_scc0 %s" % l)
            for kk in range(2): e("ds_read_b128 %s, %s" % (vr(FR(s, kk, 3), 4), ga.at(buf(s) * SLOT, kk)))
            for t in ([0, 1] if s == 1 else [s] if s else []):
                for kk in range(2): e("ds_read_b128 %s, v112 offset:%d" % (vr(FR(t, kk, 4), 4), t * 128 + kk * 64))
            a.label(l)
        def small(s):
            o = [MF16(16 + 4 * q, FR(s, kk, q), FR(s, kk, 2), (16 + 4 * q) if (s or kk) else None) for kk in range(2) for q in range(2)]
            def gt():
                l = self.lab("ng")
                e("s_cmp_eq_u32 s40, 4\ns_cbranch_scc0 %s" % l)
                for kk in range(2): e(MF16(24, FR(s, kk, 4), FR(s, kk, 3), 24 if (s or kk) else None))
                a.label(l)
            return o + [gt]
        def wo2(g):
            self.dma_wo(g); self.dma_wo(g, 68, -4096)
        def piece(s, q):
            g, p = divmod(q, 2)
            if not p: gran(s, g)
            elif g < 2: self.dma(buf(s) + g, 65 + g, SX, sKX + s, 0, ("c", s), -4096)
            else: self.dma(buf(s) + g, 67, SW, sKW + s, 1024 * (1, 2, 0)[g - 2], ("c", s), -4096)
        def wopiece(g, p): self.dma_wo(g, 68 if p else vWO, -4096 * p)
        for s in range(8):
            self.stamp("a%d" % s); a.wait(vm=("c", s)); self.stamp("w%d" % s); self.barrier(); self.stamp("k%d" % s)
            if s < 6: ld = [lambda q=q: piece(s + 2, q) for q in range(10)]
            elif s == 6: ld = [lambda q=q: wopiece(10 + q // 2, q & 1) for q in range(6)] + [lambda: None] * 4
            else: ld = [lambda q=q: wopiece(13 + q // 2, q & 1) for q in range(4)] + [lambda: None] * 6
            if s == 6: self.tag_issue()
            rd = (late(0) if s == 1 else []) + early(s) + (late(s) if s else [])
            ms = small(s - 1) if s >= 2 else []
            for q in range(10):
                ld[q]()
                for t in rd[q::10]: a.lds(t)
                if q < len(ms): self.emit_items([ms[q]])
                if q == 6: gate_r(s)
            if s == 1:
                a.wait(lg=0); self.emit_items(small(0))
        scal()
        self.barrier()
        self.emit_items(small(7))
        self.stamp("kend")
        e("s_setprio 0")
        for q in range(2):
            e(CVT(16 + 4 * q, 16 + 4 * q)); e(CVT(17 + 4 * q, 18 + 4 * q))
            a.lds("ds_write_b64 v78, %s offset:%d" % (vr(16 + 4 * q, 2), 18432 * q))
        l = self.lab("nog")
        e("s_cmp_eq_u32 s40, 4\ns_cbranch_scc0 %s" % l)
        e("v_mul_f32 v24, s52, v24\nv_exp_f32 v24, -v24\nv_add_f32 v24, 1.0, v24\nv_rcp_f32 v24, v24")
        e("v_lshlrev_b32 v25, 2, v0\ns_mov_b64 exec, 0xffff\nbuffer_store_dword v24, v25, s[16:19], s71 offen sc1\ns_mov_b64 exec, -1")
        a.label(l)
        self.get_tag()
        for g in (0, 1, 2, 3, 4, 15): wo2(g)
        a.label("L_Bt")
        self.barrier()
        self.stamp("bv3")
        KF, VF, S, O = 128, 144, 160, 176
        e("s_mov_b32 exec_lo, 0x00ff00ff\ns_mov_b32 exec_hi, 0xff00ff00")
        for u in range(4): a.lds("ds_read_b128 %s, v91 offset:%d" % (vr(QF + 4 * u, 4), 512 * u), ("q", u))
        e("s_mov_b64 exec, -1")
        for u in range(4): a.lds("ds_read_b128 %s, v88 offset:%d" % (vr(KF + 4 * u, 4), 512 * u), ("k", u))
        for u in range(4):
            for hd in range(2): a.lds("ds_read_b64_tr_b16 %s, v%d offset:%d" % (vr(VF + 4 * u + 2 * hd, 2), 89 + hd, 512 * u), "v")
        for u in range(4):
            a.wait(lg=("k", u))
            e(MF16(S + 4 * u, KF + 4 * u, QF + 4 * u, 84 if u < 2 else 80))
        self.barrier()
        M = 100
        for u in range(4): e("v_max3_f32 v%d, v%d, v%d, v%d" % (M + u, S + 4 * u, S + 4 * u + 1, S + 4 * u + 2))
        for u in range(4): e("v_max_f32 v%d, v%d, v%d" % (M + u, M + u, S + 4 * u + 3))
        e("v_permlane16_swap_b32 v100, v101\nv_permlane16_swap_b32 v102, v103\nv_max_f32 v100, v100, v101\nv_max_f32 v102, v102, v103")
        e("v_permlane32_swap_b32 v100, v102\nv_max_f32 v100, v100, v102")
        e("s_mov_b32 s52, 0x3EB8AA3B")
        e("v_mul_f32 v100, s52, v100\nv_mov_b32 v104, v100\nv_permlane32_swap_b32 v100, v104")
        e("v_mov_b32 v102, v100\nv_mov_b32 v106, v104\nv_permlane16_swap_b32 v100, v102\nv_permlane16_swap_b32 v104, v106")
        for i in range(16): e("v_fma_f32 v%d, v%d, s52, -v%d" % (S + i, S + i, M + 2 * (i // 4)))
        for i in range(16): e("v_exp_f32 v%d, v%d" % (S + i, S + i))
        for hd, mk in ((0, 0x00ff00ff), (1, 0xff00ff00)):
            e("s_mov_b32 exec_lo, 0x%x\ns_mov_b32 exec_hi, 0x%x" % (mk, mk))
            for u in range(4):
                for h in (0, 1): e(CVT(PO + 4 * u + 2 * hd + h, S + 4 * u + 2 * h))
        e("s_mov_b64 exec, -1")
        a.wait(lg=0)
        for u in range(4):
            e(MF16(O + 8 * u + 4, 96, PO + 4 * u, None)); e(MF16(O + 8 * u, VF + 4 * u, PO + 4 * u, None))
        for u in range(4): e("v_rcp_f32 v%d, v%d" % (O + 8 * u + 4, O + 8 * u + 4))
        for u in range(4):
            for h in range(4): e("v_mul_f32 v%d, v%d, v%d" % (O + 8 * u + h, O + 8 * u + h, O + 8 * u + 4))
        for u in range(4):
            for h in (0, 1): e(CVT(KF + 2 * u + h, O + 8 * u + 2 * h))
        a.vm = []
        for sp in range(2):
            for h in (0, 1): e("v_permlane16_swap_b32 v%d, v%d" % (KF + 4 * sp + h, KF + 4 * sp + 2 + h))
            a.vmem("buffer_store_dwordx4 %s, v92, s[16:19], s68 offen offset:%d sc1" % (vr(KF + 4 * sp, 4), 256 * sp), "ost")
        self.stamp("ost")
        for g in (5, 6, 7, 8, 9): self.dma_wo(g)
        self.p2setup()
        a.wait(vm="ost")
        self.flag(69)
        self.stamp("oflag")
        l = self.lab("f2")
        e("s_cmp_eq_u32 s70, 0\ns_cbranch_scc1 %s" % l)
        e("s_mov_b64 exec, 1\nbuffer_store_dword v14, off, s[16:19], s70 sc1\ns_mov_b64 exec, -1")
        e("s_waitcnt vmcnt(2)\ns_branch L_phase2")
        a.label(l)
        a.wait(vm="wo")

    def p2setup(self):
        e = self.a.e
        e("s_and_b32 s84, s40, 1\ns_bfe_u32 s54, s40, 0x10001")
        e("v_bfe_u32 v16, v0, 2, 2\nv_lshrrev_b32 v17, 5, v0\nv_lshl_add_u32 v16, v17, 2, v16\nv_lshlrev_b32 v16, 7, v16")
        e("v_bfe_u32 v17, v0, 3, 1\nv_xor_b32 v17, s54, v17\nv_lshl_add_u32 v16, v17, 6, v16")
        e("v_bfe_u32 v17, v0, 4, 1\nv_lshl_add_u32 v16, v17, 5, v16\nv_and_b32 v17, 3, v0\nv_lshl_add_u32 v9, v17, 3, v16")
        e("s_lshr_b32 s50, s40, 1\ns_lshl_b32 s50, s50, 15\nv_add_u32 v9, s50, v9\nv_xor_b32 v10, 64, v9")
        e("s_lshl_b32 s55, s45, 1\ns_add_u32 s55, s55, s84\ns_lshl_b32 s50, s55, 2\ns_lshr_b32 s51, s40, 1\ns_add_u32 s50, s50, s51\ns_lshl_b32 s50, s50, 14")
        for g in range(4):
            e("s_add_u32 s51, s45, %d\ns_and_b32 s51, s51, 3\ns_lshl_b32 s51, s51, 12\ns_add_u32 s%d, s50, s51" % (g, 64 + g))
        e("s_lshl_b32 s68, s55, %d\ns_lshl_b32 s50, s85, 18\ns_add_u32 s68, s68, s50\ns_add_u32 s68, s68, 0x%x" % (self.o["fs2"] + 5, F2_OFF))

    def phase2(self):
        a = self.a; e = a.e
        a.label("L_phase2")
        a.vm = []
        OFR = 48
        EX, BD = 16 * SLOT, 8 * SLOT
        def oloads():
            for i in range(16):
                a.vmem("buffer_load_dwordx4 %s, v13, s[16:19], s%d offen offset:%d sc1" % (vr(OFR + 4 * i, 4), 64 + i // 4, (i % 4) * 1024), ("of", i))
        def preread():
            for i in range(16):
                for t in range(2):
                    for tt in range(2):
                        a.lds("ds_read_b64_tr_b16 %s, v%d offset:%d" % (vr(XR + 8 * i + 4 * t + 2 * tt, 2), 9 + t, (16 * i + 8 * tt) * 128))
        def mfmas():
            for i in range(16):
                a.wait(vm=("of", i))
                for t in range(2): e(MF32(ACK + 16 * t, XR + 8 * i + 4 * t, OFR + 4 * i, (ACK + 16 * t) if i else None))
        e("s_cmp_eq_u32 s85, 0\ns_cbranch_scc0 L_P2A")
        st = a.state()
        e("v_and_b32 v11, 7, v0\ns_lshl_b32 s50, s54, 3\nv_add_u32 v11, s50, v11\nv_and_b32 v12, 1, v0\nv_add_u32 v12, 16, v12")
        e("v_cmp_gt_u32 vcc, 32, v0\nv_cndmask_b32 v11, v12, v11, vcc\nv_lshlrev_b32 v11, %d, v11" % self.o["fs2"])
        self.poll_issue(12, 11, 68, "p2")
        e("v_and_b32 v5, 31, v0\nv_lshlrev_b32 v5, 2, v5\ns_lshl_b32 s50, s55, 7\ns_add_u32 s50, s50, 0x%x" % GP_OFF)
        e("s_barrier")
        self.stamp("p1")
        preread()
        self.barrier()
        self.poll_check(12, 11, 68, "p2")
        self.stamp("p2poll")
        a.vmem("buffer_load_dword v6, v5, s[16:19], s50 offen sc1", "g")
        oloads()
        mfmas()
        e("s_lshl_b32 s50, s84, 7\ns_add_u32 s50, s50, 0x%x\nv_add_u32 v5, s50, v5\nv_sub_f32 v8, 1.0, v6" % GEX)
        a.lds("ds_write_b32 v5, v6")
        e("s_lshl_b32 s50, s54, 1\ns_add_u32 s50, s50, s84\ns_lshl_b32 s50, s50, 1\ns_add_u32 s50, s50, s54\ns_lshl_b32 s50, s50, 12\ns_add_u32 s50, s50, 0x%x" % BD)
        e("v_add_u32 v5, s50, v13\nv_xor_b32 v7, 0x1000, v5")
        for t in range(2):
            for i in range(16): e("v_mul_f32 v%d, v%d, v8" % (ACK + 16 * t + i, ACK + 16 * t + i))
            for i in range(4): a.lds("ds_write_b128 v%d, %s offset:%d" % (5 + 2 * t, vr(ACK + 16 * t + 4 * i, 4), 1024 * i))
        self.stamp("bdump")
        self.barrier()
        self.stamp("p3")
        e("s_branch L_fin")
        a.restore(st)
        a.label("L_P2A")
        e("v_and_b32 v11, 6, v0\ns_lshl_b32 s50, s54, 3\nv_add_u32 v11, s50, v11\nv_lshlrev_b32 v11, %d, v11" % self.o["fs2"])
        e("s_lshl_b32 s50, s84, 1\ns_add_u32 s50, s50, s54\ns_lshl_b32 s50, s50, 12\nv_add_u32 v5, s50, v13")
        e("v_add_u32 v7, 0x%x, v5\nv_xor_b32 v6, 0x1000, v7\nv_add_u32 v5, 0x%x, v5" % (EX, BD))
        e("v_and_b32 v8, 31, v0\nv_lshlrev_b32 v8, 2, v8\ns_lshl_b32 s50, s84, 7\ns_add_u32 s50, s50, 0x%x\nv_add_u32 v8, s50, v8" % GEX)
        e("v_and_b32 v1, 16, v0\nv_and_b32 v2, 7, v0\nv_lshl_add_u32 v1, v2, 1, v1\nv_bfe_u32 v2, v0, 3, 1\nv_add_u32 v1, v1, v2\nv_lshlrev_b32 v1, 10, v1")
        e("v_lshrrev_b32 v2, 5, v0\nv_lshl_add_u32 v1, v2, 4, v1")
        e("s_lshl_b32 s69, s55, 15\ns_lshl_b32 s50, s46, 7\ns_add_u32 s69, s69, s50\ns_lshl_b32 s50, s54, 6\ns_add_u32 s69, s69, s50")
        e("s_barrier")
        self.stamp("p1")
        preread()
        self.poll_issue(12, 11, 68, "p2")
        self.barrier()
        self.poll_check(12, 11, 68, "p2")
        self.stamp("p2poll")
        oloads()
        mfmas()
        for i in range(4): a.lds("ds_write_b128 v6, %s offset:%d" % (vr(ACV + 4 * i, 4), 1024 * i))
        self.stamp("bdump")
        self.barrier()
        self.stamp("p3")
        a.lds("ds_read_b32 v10, v8", "g")
        for i in range(4):
            a.lds("ds_read_b128 %s, v7 offset:%d" % (vr(48 + 4 * i, 4), 1024 * i), ("x", i))
            a.lds("ds_read_b128 %s, v5 offset:%d" % (vr(64 + 4 * i, 4), 1024 * i), ("x", i))
            a.lds("ds_read_b128 %s, v5 offset:%d" % (vr(80 + 4 * i, 4), 16384 + 1024 * i), ("x", i))
        for i in range(4):
            a.wait(lg=("x", i))
            for h in (0, 2):
                r = 4 * i + h
                e("v_pk_add_f32 %s, %s, %s" % (vr(ACK + r, 2), vr(ACK + r, 2), vr(48 + r, 2)))
                e("v_pk_add_f32 %s, %s, %s" % (vr(64 + r, 2), vr(64 + r, 2), vr(80 + r, 2)))
            for h in (0, 2):
                r = 4 * i + h
                e("v_pk_fma_f32 %s, %s, v[10:11], %s op_sel_hi:[1,0,1]" % (vr(ACK + r, 2), vr(ACK + r, 2), vr(64 + r, 2)))
            for h in (0, 1): e(CVT(96 + 2 * i + h, ACK + 4 * i + 2 * h))
            if i & 1:
                b = 96 + 4 * (i >> 1)
                e("v_permlane32_swap_b32 v%d, v%d\nv_permlane32_swap_b32 v%d, v%d" % (b, b + 2, b + 1, b + 3))
                a.vmem("buffer_store_dwordx4 %s, v1, s[28:31], s69 offen offset:%d" % (vr(b, 4), 32 * (i >> 1)))
        self.stamp("outst")
        a.label("L_fin")
        if self.stamps:
            e("s_waitcnt vmcnt(0)")
            self.stamp("end")
            e("s_waitcnt lgkmcnt(0)")
            if self.o.get("amp"):
                t0, t1 = STAMPS[0], STAMPS[1]
                e("s_cmp_eq_u32 s%d, 0\ns_cbranch_scc1 L_end" % t1)
                e("s_sub_u32 s50, s%d, s%d\ns_mul_i32 s50, s50, %d\ns_min_u32 s50, s50, 100000" % (t1, t0, self.o["amp"]))
                a.label("L_amp")
                e("s_memrealtime s[52:53]\ns_waitcnt lgkmcnt(0)\ns_sub_u32 s51, s52, s%d\ns_cmp_lt_u32 s51, s50\ns_cbranch_scc1 L_amp\ns_branch L_end" % t0)
            e("s_lshl_b32 s50, s2, 3\ns_add_u32 s50, s50, s40\ns_lshl_b32 s50, s50, 6\ns_add_u32 s50, s50, 0x%x" % STAMP_OFF)
            for i in range(12): e("v_mov_b32 v%d, s%d" % (16 + i, STAMPS[i]))
            e("s_mov_b64 exec, 1")
            for i in range(3): e("buffer_store_dwordx4 %s, off, s[16:19], s50 offset:%d" % (vr(16 + 4 * i, 4), 16 * i))
            if self.dbgout:
                e("s_cmp_eq_u32 s40, 4\ns_cbranch_scc0 L_end")
                e("v_not_b32 v28, v16\nbuffer_atomic_umax v28, off, s[36:39], 0 offset:8")
                for i in range(12): e("buffer_atomic_umax v%d, off, s[36:39], 0 offset:%d" % (16 + i, 12 + 4 * i))
        a.label("L_end")
        e("s_endpgm")

    def build(self):
        self.a.label("L_start")
        if self.stamps:
            for r in STAMPS: self.a.e("s_mov_b64 %s, 0" % sr(r, 2))
        self.setup()
        self.typeA()
        self.typeB()
        self.phase2()
        lines, added = fix_hazards(self.a.lines)
        hdr = open("cdna_kernels/%s.s.ref" % KNAME).read().split("; Override launch")[0]
        out = hdr + "; @launch grid=(256,1,1) block=(512,1,1) lds=163840\n"
        out += '.amdgcn_target "amdgcn-amd-amdhsa--gfx950"\n.text\n.globl %s_kernel\n.p2align 8\n.type %s_kernel,@function\n%s_kernel:\n' % ((KNAME,) * 3)
        out += "\n".join(("" if l.endswith(":") else "    ") + l for l in lines) + "\n"
        out += '.section .rodata,"a"\n.p2align 6\n.amdhsa_kernel %s_kernel\n' % KNAME
        out += "  .amdhsa_next_free_vgpr 256\n  .amdhsa_next_free_sgpr 102\n  .amdhsa_accum_offset 256\n  .amdhsa_group_segment_fixed_size 0\n  .amdhsa_kernarg_size 88\n"
        out += "  .amdhsa_user_sgpr_count 2\n  .amdhsa_user_sgpr_kernarg_segment_ptr 1\n  .amdhsa_system_sgpr_workgroup_id_x 1\n.end_amdhsa_kernel\n"
        return out

if __name__ == "__main__":
    stamps = 2 if "--cyc" in sys.argv else ("--stamps" in sys.argv)
    outp = [x for x in sys.argv[1:] if not x.startswith("--")][0]
    sset = [x[7:].split(",") for x in sys.argv if x.startswith("--sset=")]
    opt = dict((x[2:].split("=")[0], int(x.split("=")[1])) for x in sys.argv if x.startswith("--") and "=" in x and not x.startswith("--sset"))
    open(outp, "w").write(Gen(stamps, sset[0] if sset else None, opt).build())
```

```python
import sys
from asmlib import *

KNAME = "gated_mix__linear_kernel_hedgehog__sliding_local_dilated__prompt"
SLOT = 8192
MISC = 19 * SLOT
WPHI = MISC
GATE = MISC
GPART = MISC + 1024
GEX = MISC + 2048
MCNT = MISC + 2560
KVOP = MISC + 3072
OF_OFF = 0
KVP_OFF = 4 << 20
ZP_OFF = 5 << 20
GP_OFF = (5 << 20) + (128 << 10)
F1_OFF = (5 << 20) + (256 << 10)
F2_OFF = F1_OFF + (128 << 10)
EP_OFF = (5 << 20) + (192 << 10)
STAMP_OFF = 192 << 20
LOG2E = 0x3FB8AA3B
NEG = 0xF149F2CA
TAGC = 0x9E3779B9

SX, SW, SWS, SWOA, SWOB, SOUT, SMISC, SDBG = 8, 12, 16, 20, 24, 28, 32, 36
sW, sRB, sGRP, sTYPE, sROT, sRT, sCT, sTAG, sWL, sOFF = 40, 41, 42, 43, 44, 45, 46, 47, 48, 49
sKX, sKW, sWOO, sR, sC = 64, 72, 80, 84, 85
STAMPS = [86, 88, 90, 92, 94, 96, 98, 100, 60, 62, 58, 6]
vX0, vW, vWO = 1, 3, 4
ACK, ACV, RING, XR = 16, 32, 48, 128
WV_SLOTS = [12, 13, 17, 18, 0, 1, 2, 3]
WQ_A = [16, 4, 5, 6, 7, 3, 17, 18]

class Addr:
    def __init__(self, a, regs, base=0):
        self.a, self.regs, self.base = a, regs, base
    def rebase(self, nb):
        if nb != self.base:
            for r in self.regs:
                self.a.e("v_add_u32 v%d, 0x%x, v%d" % (r, (nb - self.base) & 0xffffffff, r))
            self.base = nb
    def at(self, off, i=0, span=0, gran=49152):
        if not (0 <= off - self.base and off + span - self.base <= 65535 - 15):
            self.rebase(off // gran * gran)
        return "v%d offset:%d" % (self.regs[i], off - self.base)

def MF32(d, a, b, c): return "v_mfma_f32_32x32x16_bf16 %s, %s, %s, %s" % (vr(d, 16), vr(a, 4), vr(b, 4), "0" if c is None else vr(c, 16))
def MF16(d, a, b, c): return "v_mfma_f32_16x16x32_bf16 %s, %s, %s, %s" % (vr(d, 4), vr(a, 4), vr(b, 4), "0" if c is None else vr(c, 4))
def CVT(d, s): return "v_cvt_pk_bf16_f32 v%d, v%d, v%d" % (d, s, s + 1)

class Gen:
    def __init__(self, stamps=False, sset=None, opt=None):
        self.a = Asm()
        self.stamps = stamps
        self.dbgout = "--dbgout" in sys.argv
        self.sset = sset or "0,k0,kend,bv3,kvst,qend,pollok,sum,ost,p2poll,p3,end".split(",")
        self.o = dict(bd=2, warm=1, pk1=2, g0n=4, g1n=8, g2n=8, fs1=7, fs2=7, sl1=2, pre=0, sent=1, h1=0, ep=0, fl=1, map=0, ini=1, hb=0, ha=0, fc=1, sl2=2, inib=0, pw=1, pa=9, pwn=4, be=0, ae=0, rotb=7, pv=0, pq=1, cpf=1)
        self.o.update(opt or {})
        self.nl = 0
    def stamp(self, name):
        if self.stamps and name in self.sset:
            self.a.e("%s %s" % ("s_memtime" if self.stamps == 2 else "s_memrealtime", sr(STAMPS[self.sset.index(name)], 2)))
    def wgtype(self, wg): return (wg >> (5 if self.o['map'] else 6)) & 1
    def lab(self, p):
        self.nl += 1
        return "L_%s_%d" % (p, self.nl)

    def dma(self, slot, vaddr, srd, sbase, add, tag, ldsadd=0):
        a = self.a
        a.e("s_add_u32 m0, s%d, 0x%x" % (sWL, (slot * SLOT + ldsadd) & 0xffffffff))
        if add:
            a.e("s_add_u32 s%d, s%d, 0x%x" % (sOFF, sbase, add & 0xffffffff)); so = "s%d" % sOFF
        else:
            so = "s%d" % sbase
        a.vmem("buffer_load_dwordx4 v%d, %s, %s offen lds" % (vaddr, sr(srd, 4), so), tag)
    def dma_x(self, s, h, slot): self.dma(slot, vX0 + h, SX, sKX + s, 0, ("c", s))
    def dma_w(self, s, sec, slot, tag): self.dma(slot, vW, SW, sKW + s, 1024 * sec, tag)
    def dma_wo(self, g, vaddr=vWO, ldsadd=0):
        self.dma(g, vaddr, SWOB if g >= 8 else SWOA, sWOO + (g & 3), ((g >> 2) & 1) * 262144, "wo", ldsadd)

    def gemm(self, n, D, reads, mfmas, pre={}, post={}, pairfrom=None):
        a = self.a
        for i in range(n + D):
            if i < n:
                if i in pre: pre[i]()
                for t in reads(i): a.lds(t, ("r", i))
                for f in post.get(i - 1000, []): f()
            k = i - D
            if k >= 0:
                kk = k + 1 if (pairfrom is not None and k >= pairfrom and k % 2 == 0 and k + 1 < n) else k
                a.wait(lg=[("r", k), ("r", kk)])
                for t in mfmas(k): a.e(t)
            for f in post.get(i, []): f()
            for f in post.get(i + 2000, []): f()

    def gemm_il(self, n, D, reads, mfmas, pre={}, post={}):
        a = self.a
        for i in range(n + D):
            k = i - D
            ms = []
            if k >= 0:
                a.wait(lg=("r", k)); ms = mfmas(k)
            if ms: a.e(ms[0])
            rs = []
            if i < n:
                if i in pre: pre[i]()
                rs = reads(i)
            nm = max(1, len(ms)); per = -(-len(rs) // nm)
            for q in range(nm):
                if q: a.e(ms[q])
                for t in rs[q * per:(q + 1) * per]: a.lds(t, ("r", i))
                if q == 0:
                    for f in post.get(i - 1000, []): f()
            for f in post.get(i, []): f()

    def barrier(self, vm=None):
        self.a.wait(vm=vm, lg=0)
        self.a.e("s_barrier")

    def kxw(self, s):
        e = self.a.e
        e("s_add_u32 s50, s44, %d\ns_and_b32 s50, s50, 7" % s)
        e("s_lshl_b32 s%d, s50, 7\ns_add_u32 s%d, s%d, s54" % (sKX + s, sKX + s, sKX + s))
        e("s_mul_i32 s%d, s50, 0x30000\ns_add_u32 s%d, s%d, s55" % (sKW + s, sKW + s, sKW + s))

    def setup(self):
        a = self.a; e = a.e
        self.stamp("0")
        e("s_cmp_ge_u32 s2, 256\ns_cbranch_scc1 L_end")
        e("s_load_dwordx8 s[24:31], s[0:1], 0")
        e("s_load_dwordx8 s[32:39], s[0:1], 40")
        e("s_load_dwordx4 s[4:7], s[0:1], 72")
        if self.o["cpf"]:
            e("s_getpc_b64 s[52:53]")
            a.label("L_pc")
            e("s_lshr_b32 s50, s2, 3\ns_lshl_b32 s50, s50, 11\nv_lshl_add_u32 v2, v0, 4, s50")
            e("v_cmp_gt_u32 vcc, 128, v0\nv_mov_b32 v3, L_end-L_pc-16\nv_cmp_gt_u32 s[50:51], v3, v2\ns_and_b64 vcc, vcc, s[50:51]")
            e("s_and_saveexec_b64 s[50:51], vcc\ns_cbranch_execz L_nopf")
            e("global_load_dwordx4 v[252:255], v2, s[52:53]")
            a.label("L_nopf")
            e("s_mov_b64 exec, s[50:51]")
        e("v_lshrrev_b32 v1, 6, v0\nv_and_b32 v0, 63, v0")
        e("s_and_b32 s50, s2, 7\ns_lshr_b32 s51, s2, 3")
        e("v_readfirstlane_b32 s%d, v1" % sW)
        if self.o["map"] == 0:
            e("s_and_b32 s41, s50, 1\ns_lshl_b32 s41, s41, 3\ns_and_b32 s54, s51, 7\ns_add_u32 s41, s41, s54")
            e("s_lshr_b32 s54, s51, 3")
            e("s_and_b32 s43, s54, 1")
            e("s_and_b32 s42, s50, 6\ns_lshr_b32 s55, s54, 1\ns_add_u32 s42, s42, s55")
            e("s_lshl_b32 s44, s54, 1\ns_add_u32 s44, s44, s41\ns_and_b32 s44, s44, 7")
            e("s_lshl_b32 s45, s50, 2\ns_add_u32 s45, s45, s54")
            e("s_and_b32 s46, s51, 7")
        else:
            e("s_and_b32 s41, s50, 3\ns_lshl_b32 s41, s41, 2\ns_and_b32 s46, s51, 3\ns_add_u32 s41, s41, s46")
            e("s_lshr_b32 s54, s51, 2")
            e("s_and_b32 s43, s54, 1")
            e("s_and_b32 s42, s50, 4\ns_lshr_b32 s55, s54, 1\ns_add_u32 s42, s42, s55")
            e("s_lshl_b32 s44, s41, 1\ns_add_u32 s44, s44, s54\ns_and_b32 s44, s44, 7")
            if self.o["rotb"] < 7:
                e("s_lshl_b32 s45, s41, %d\ns_and_b32 s45, s45, %d\ns_cmp_eq_u32 s43, 0\ns_cselect_b32 s44, s44, s45" % ((2, 1)[self.o["rotb"] == 6], self.o["rotb"]))
            e("s_lshl_b32 s45, s50, 2\ns_add_u32 s45, s45, s43\ns_and_b32 s54, s55, 2\ns_add_u32 s45, s45, s54")
            e("s_and_b32 s55, s55, 1\ns_lshl_b32 s55, s55, 2\ns_add_u32 s46, s46, s55")
        e("s_lshl_b32 s48, s40, 10")
        e("v_lshrrev_b32 v5, 3, v0\nv_lshrrev_b32 v6, 4, v0\nv_and_b32 v7, 7, v0")
        e("s_and_b32 s54, s40, 1\ns_lshl_b32 s55, s54, 2")
        e("v_add_u32 v8, s55, v6\nv_xor_b32 v8, v8, v7\nv_lshlrev_b32 v8, 4, v8")
        e("s_lshr_b32 s55, s40, 1\ns_lshl_b32 s55, s55, 4\ns_add_u32 s55, s55, s54\ns_lshl_b32 s55, s55, 10")
        e("v_lshl_add_u32 v1, v5, 11, v8\nv_add_u32 v1, s55, v1\nv_add_u32 v2, 0x10000, v1")
        e("v_and_b32 v6, 1, v6\nv_lshlrev_b32 v6, 2, v6\nv_xor_b32 v6, v6, v7\nv_lshlrev_b32 v6, 4, v6")
        e("s_lshl_b32 s55, s40, 3\nv_add_u32 v5, s55, v5")
        e("s_movk_i32 s55, 3072\nv_mad_u32_u24 v3, v5, s55, v6\nv_lshl_add_u32 v4, v5, 10, v6")
        e("v_lshlrev_b32 v13, 4, v0")
        e("s_lshl_b32 s54, s41, 17\ns_lshl_b32 s55, s42, 7")
        for s in range(2): self.kxw(s)
        e("s_and_b32 s%d, s40, 3\ns_lshr_b32 s%d, s40, 2" % (sR, sC))
        e("s_mov_b32 s10, 0x200000\ns_mov_b32 s11, 0x20000\ns_mov_b32 s14, 0x180000\ns_mov_b32 s15, 0x20000")
        e("s_cmp_eq_u32 s43, 0")
        e("s_waitcnt lgkmcnt(0)")
        self.stamp("ka")
        if self.stamps and "nv" in self.sset: e("s_mov_b32 s%d, s%d" % (STAMPS[self.sset.index("nv")], STAMPS[0]))
        e("s_mov_b32 s8, s24\ns_mov_b32 s9, s25")
        e("s_cbranch_scc0 L_typeB")
        e("s_mov_b32 s12, s26\ns_mov_b32 s13, s27")

    def setup_rest(self, typ, pf):
        a = self.a; e = a.e
        e("s_mov_b64 s[20:21], s[30:31]\ns_mov_b64 s[24:25], s[34:35]\ns_mov_b64 s[32:33], %s" % ("s[28:29]" if typ == 0 else "s[36:37]"))
        e("s_mov_b64 s[28:29], s[38:39]\ns_mov_b64 s[36:37], s[4:5]\ns_mov_b64 s[16:17], s[6:7]")
        for q in range(2, 8): self.kxw(q)
        e("s_mov_b32 s34, 0x%x\ns_mov_b32 s35, 0x20000" % (0x4000 if typ == 0 else 0x400))
        e("s_mov_b32 s18, 0x10000000\ns_mov_b32 s19, 0x20000\ns_mov_b32 s22, 0x80000\ns_mov_b32 s23, 0x20000")
        e("s_mov_b32 s26, 0x80000\ns_mov_b32 s27, 0x20000\ns_mov_b32 s30, 0x200000\ns_mov_b32 s31, 0x20000")
        e("s_mov_b32 s38, 0x100\ns_mov_b32 s39, 0x20000")
        if not pf: return
        l = self.lab("nomisc")
        e("%s\ns_cbranch_scc0 %s" % ("s_cmp_lt_u32 s40, 2" if typ == 0 else "s_cmp_eq_u32 s40, 4", l))
        if typ == 0: e("s_lshl_b32 s50, s42, 11\ns_add_u32 s50, s50, s48\nv_add_u32 v20, s50, v13")
        else: e("s_lshl_b32 s50, s44, 7\nv_add_u32 v20, s50, v13\nv_and_b32 v20, 0x3ff, v20")
        e("s_add_u32 m0, s48, 0x%x\nbuffer_load_dwordx4 v20, s[32:35], 0 offen lds" % (MISC - 4096 * typ))
        a.label(l)

    def setup2s(self):
        e = self.a.e
        e("s_mov_b32 s52, 0x%x\ns_mov_b32 s53, 0x%x" % (LOG2E, LOG2E))
        for g in range(4):
            e("s_add_u32 s50, s45, %d\ns_and_b32 s50, s50, 3\ns_lshl_b32 s50, s50, 16\ns_lshl_b32 s51, s46, 7\ns_add_u32 s%d, s50, s51" % (g, sWOO + g))

    def setup2(self, srow=sR, sh=12, scol=sC):
        e = self.a.e
        self.setup2s()
        e("v_and_b32 v16, 31, v0\nv_lshrrev_b32 v17, 5, v0\nv_bfe_u32 v18, v0, 1, 3\nv_xor_b32 v17, v17, v18\nv_lshlrev_b32 v17, 4, v17")
        e("s_lshl_b32 s50, s%d, %d\nv_lshl_add_u32 v5, v16, 7, v17\nv_add_u32 v5, s50, v5" % (srow, sh))
        e("v_xor_b32 v6, 32, v5\nv_xor_b32 v7, 64, v5\nv_xor_b32 v8, 0x60, v5")
        e("v_bfe_u32 v16, v0, 2, 2\nv_lshrrev_b32 v17, 5, v0\nv_lshl_add_u32 v16, v17, 3, v16\nv_lshlrev_b32 v16, 7, v16")
        e("v_bfe_u32 v17, v0, 3, 1\nv_xor_b32 v17, s%d, v17\nv_lshl_add_u32 v16, v17, 6, v16" % scol)
        e("v_bfe_u32 v17, v0, 4, 1\nv_lshl_add_u32 v16, v17, 5, v16\nv_and_b32 v17, 3, v0\nv_lshl_add_u32 v9, v17, 3, v16")
        self.xa = Addr(self.a, [5, 6, 7, 8]); self.wa = Addr(self.a, [9])

    def wreads(self, slot, j, r, **kw):
        return ["ds_read_b64_tr_b16 %s, %s" % (vr(r + 2 * tt, 2), self.wa.at(slot * SLOT + (16 * j + 4 * tt) * 128, **kw)) for tt in (0, 1)]

    def wpass(self, slots, acc, pre={}, post={}, D=5):
        def reads(i): return self.wreads(slots[i // 4], i % 4, RING + 4 * (i % 6))
        def mf(k): return [MF32(acc, RING + 4 * (k % 6), XR + 4 * k, acc if k else None)]
        self.gemm(32, D, reads, mf, pre, post)

    def tag_issue(self): self.a.vmem("buffer_load_dwordx2 v[14:15], off, s[36:39], 0 sc1", "tag")
    def get_tag(self):
        a = self.a; e = a.e
        ok, rt = self.lab("tagok"), self.lab("tagrt")
        a.wait(vm="tag")
        e("s_mov_b32 s51, 0")
        a.label(rt)
        e("v_readfirstlane_b32 s50, v15\nv_readfirstlane_b32 s%d, v14" % sTAG)
        e("s_add_u32 s51, s51, 1\ns_cmp_lg_u32 s50, 0\ns_cbranch_scc1 %s" % ok)
        e("s_cmp_gt_u32 s51, 0x4000\ns_cbranch_scc1 %s" % ok)
        e("s_sleep 4\nbuffer_load_dwordx2 v[14:15], off, s[36:39], 0 sc1\ns_waitcnt vmcnt(0)\ns_branch %s" % rt)
        a.label(ok)
        e("v_lshlrev_b32 v15, 2, v0")
    def flag(self, soff):
        if self.o["fl"]:
            self.a.e("s_mov_b32 exec_hi, 0")
            self.a.vmem("buffer_store_dword v14, v15, s[16:19], s%d offen sc1" % soff, "flag")
        else:
            self.a.e("s_mov_b64 exec, 1")
            self.a.vmem("buffer_store_dword v14, off, s[16:19], s%d sc1" % soff, "flag")
        self.a.e("s_mov_b64 exec, -1")
    def fclr(self, v, soff, lanes=8):
        if not self.o["fc"]: return
        self.a.e("s_mov_b64 exec, 0x%x" % ((1 << lanes) - 1))
        self.a.vmem("buffer_store_dwordx4 %s, v13, s[16:19], s%d offen sc1" % (vr(v, 4), soff), "clr")
        self.a.e("s_mov_b64 exec, -1")
    def poll_issue(self, vdst, vaddr, soff, tag):
        self.a.vmem("buffer_load_dword v%d, v%d, s[16:19], s%d offen sc1" % (vdst, vaddr, soff), tag)
    def poll_check(self, vdst, vaddr, soff, tag, sleep=2):
        a = self.a; e = a.e
        ok, rt = self.lab("pok"), self.lab("prt")
        a.wait(vm=tag)
        e("s_mov_b32 s51, 0")
        a.label(rt)
        e("v_cmp_ne_u32 vcc, s%d, v%d" % (sTAG, vdst))
        e("s_add_u32 s51, s51, 1\ns_cbranch_vccz %s" % ok)
        e("s_cmp_gt_u32 s51, 0x4000\ns_cbranch_scc1 %s" % ok)
        e("s_sleep %d\nbuffer_load_dword v%d, v%d, s[16:19], s%d offen sc1\ns_waitcnt vmcnt(0)\ns_branch %s" % (sleep, vdst, vaddr, soff, rt))
        a.label(ok)

    def verify(self, base, n, loads, tag, t):
        a = self.a; e = a.e
        ok, rt = self.lab("vok"), self.lab("vrt")
        a.wait(vm=tag)
        e("s_mov_b32 s51, 0")
        a.label(rt)
        e("v_max3_u32 v%d, v%d, v%d, v%d" % (t, base, base + 1, base + 2))
        for i in range(3, n - 1, 2): e("v_max3_u32 v%d, v%d, v%d, v%d" % (t, t, base + i, base + i + 1))
        e("v_max_u32 v%d, v%d, v%d" % (t, t, base + n - 1))
        e("v_cmp_eq_u32 vcc, -1, v%d" % t)
        e("s_cbranch_vccz %s" % ok)
        e("s_add_u32 s51, s51, 1\ns_cmp_gt_u32 s51, 0x800\ns_cbranch_scc1 %s" % ok)
        if self.stamps and "nv" in self.sset:
            q = STAMPS[self.sset.index("nv")]
            e("s_add_u32 s%d, s%d, 100" % (q, q))
        for l in loads: e(l)
        e("s_waitcnt vmcnt(0)\ns_branch %s" % rt)
        a.label(ok)

    KB, EP, T = 80, 88, 104
    def phi_pre(self):
        e = self.a.e
        for i in range(8): e(CVT(self.KB + i, ACK + 2 * i))
        e(MF32(ACK, 72, self.KB, None)); e(MF32(ACK, 76, self.KB + 4, ACK))
    def phi(self, hooks={}, nm="pk", pk=False, collect=False, pk1=False, ACK=16, pk2=False, EP=88):
        items = []
        def e(t): items.extend(t.split("\n"))
        KB, T = self.KB, self.T
        def H(n):
            items.append(lambda: self.stamp("%s%d" % (nm, n)))
            if n in hooks: items.append(hooks[n])
        H(0)
        mm = (("v_max3_f32", T), ("v_min3_f32", T + 2))
        for (op, d) in mm:
            e("%s v%d, v%d, v%d, v%d" % (op, d, ACK, ACK + 1, ACK + 2))
            e("%s v%d, v%d, v%d, v%d" % (op, d + 1, ACK + 3, ACK + 4, ACK + 5))
        for i in range(2):
            for (op, d) in mm:
                e("%s v%d, v%d, v%d, v%d" % (op, d, d, ACK + 6 + 4 * i, ACK + 7 + 4 * i))
                e("%s v%d, v%d, v%d, v%d" % (op, d + 1, d + 1, ACK + 8 + 4 * i, ACK + 9 + 4 * i))
        for (op, d) in mm: e("%s v%d, v%d, v%d, v%d" % (op, d, d, ACK + 14, ACK + 15))
        e("v_max_f32 v%d, v%d, v%d\nv_min_f32 v%d, v%d, v%d" % (T, T, T + 1, T + 2, T + 2, T + 3))
        e("v_mul_f32 v%d, s52, v%d\nv_mul_f32 v%d, s52, v%d" % (T, T, T + 2, T + 2))
        if pk or pk1:
            for i in range(8):
                e("v_pk_fma_f32 %s, %s, s[52:53], %s op_sel_hi:[1,1,0] neg_lo:[0,0,1] neg_hi:[0,0,1]" % (vr(EP + 2 * i, 2), vr(ACK + 2 * i, 2), vr(T, 2)))
            for i in range(8):
                e("v_pk_fma_f32 %s, %s, s[52:53], %s op_sel_hi:[1,1,0] neg_lo:[1,0,0] neg_hi:[1,0,0]" % (vr(ACK + 2 * i, 2), vr(ACK + 2 * i, 2), vr(T + 2, 2)))
        else:
            for i in range(16): e("v_fma_f32 v%d, v%d, s52, -v%d" % (EP + i, ACK + i, T))
            for i in range(16): e("v_fma_f32 v%d, -v%d, s52, v%d" % (ACK + i, ACK + i, T + 2))
        H(1)
        for i in range(16): e("v_exp_f32 v%d, v%d" % (EP + i, EP + i))
        H(2)
        for i in range(16): e("v_exp_f32 v%d, v%d" % (ACK + i, ACK + i))
        H(3)
        two = ((EP, KB), (ACK, KB + 4))
        pk = pk or pk2
        if pk:
            for (src, d) in two:
                e("v_pk_add_f32 %s, %s, %s" % (vr(d, 2), vr(src, 2), vr(src + 2, 2)))
                e("v_pk_add_f32 %s, %s, %s" % (vr(d + 2, 2), vr(src + 4, 2), vr(src + 6, 2)))
            for i in range(2):
                for (src, d) in two:
                    e("v_pk_add_f32 %s, %s, %s" % (vr(d, 2), vr(d, 2), vr(src + 8 + 4 * i, 2)))
                    e("v_pk_add_f32 %s, %s, %s" % (vr(d + 2, 2), vr(d + 2, 2), vr(src + 10 + 4 * i, 2)))
            for (src, d) in two: e("v_pk_add_f32 %s, %s, %s" % (vr(d, 2), vr(d, 2), vr(d + 2, 2)))
        else:
            for (src, d) in two:
                for q in range(2): e("v_add_f32 v%d, v%d, v%d" % (d + q, src + 2 * q, src + 2 * q + 1))
            for i in range(6):
                for (src, d) in two:
                    for q in range(2): e("v_add_f32 v%d, v%d, v%d" % (d + q, d + q, src + 4 + 2 * i + q))
        for (src, d) in two: e("v_add_f32 v%d, v%d, v%d" % (d, d, d + 1))
        for (src, d) in two: e("v_rcp_f32 v%d, v%d" % (d, d))
        H(4)
        for p, (src, d) in enumerate(two):
            for q in range(2):
                if pk:
                    for i in range(4 * q, 4 * q + 4): e("v_pk_mul_f32 %s, %s, %s op_sel_hi:[1,0]" % (vr(src + 2 * i, 2), vr(src + 2 * i, 2), vr(d, 2)))
                else:
                    for i in range(8 * q, 8 * q + 8): e("v_mul_f32 v%d, v%d, v%d" % (src + i, src + i, d))
                for i in range(4 * q, 4 * q + 4): e(CVT(src + i, src + 2 * i))
                H(5 + 2 * p + q)
        if collect: return items
        self.emit_items(items)

    def emit_items(self, items):
        for it in items:
            if callable(it): it()
            else: self.a.e(it)

    def spread(self, items, first, last, post, budget):
        def cost(it):
            if callable(it): return getattr(it, "cost", 0)
            if it.startswith(TRANS): return 2
            return 1.5 if it.startswith(("v_fma", "v_max3", "v_min3")) else 1
        items = list(items); credit = 0
        for i in range(first, last + 1):
            credit = min(credit, 0.5) + budget; g = []
            while items and cost(items[0]) <= credit:
                credit -= cost(items[0]); g.append(items.pop(0))
            post.setdefault(i, []).append(lambda g=g: self.emit_items(g))
        return items

    def stage_addr(self, d, t, srow=sR, sh=11):
        e = self.a.e
        e("v_and_b32 v%d, 31, v0\nv_lshrrev_b32 v%d, 5, v0\nv_bfe_u32 v%d, v0, 1, 2" % (d, t, t + 1))
        e("v_xor_b32 v%d, v%d, v%d\nv_lshlrev_b32 v%d, 4, v%d" % (t, t, t + 1, t, t))
        e("s_lshl_b32 s50, s%d, %d\nv_lshl_add_u32 v%d, v%d, 6, v%d\nv_add_u32 v%d, s50, v%d" % (srow, sh, d, d, t, d, d))

    def tr_addr(self, d, t, half_sgpr, rowskip):
        e = self.a.e
        e("v_lshrrev_b32 v%d, 2, v0" % d)
        e("v_bfe_u32 v%d, v0, 3, 2\nv_bfe_u32 v%d, v0, 1, 1\nv_xor_b32 v%d, v%d, v%d" % (t, t + 1, t, t, t + 1))
        if half_sgpr is not None:
            e("s_lshl_b32 s50, s%d, 1\nv_xor_b32 v%d, s50, v%d" % (half_sgpr, t, t))
        if rowskip:
            e("v_and_b32 v%d, 8, v%d\nv_add_u32 v%d, v%d, v%d" % (t + 1, d, d, d, t + 1))
        e("v_lshlrev_b32 v%d, 6, v%d\nv_lshl_add_u32 v%d, v%d, 4, v%d" % (d, d, d, t, d))
        e("v_and_b32 v%d, 1, v0\nv_lshl_add_u32 v%d, v%d, 3, v%d" % (t, d, t, d))

    def minit(self):
        self.a.e("v_mov_b32 v126, 0x%x\nv_mov_b32 v127, 1\nv_mov_b32 v16, 0\nv_mov_b32 v17, 0\nv_mov_b32 v18, 0\nv_mov_b32 v19, 0" % MCNT)
        self.a.lds("ds_write_b128 v126, v[16:19]"); self.a.lds("ds_write_b128 v126, v[16:19] offset:16")
    def msig(self, c):
        self.a.e("s_mov_b64 exec, 1"); self.a.lds("ds_add_u32 v126, v127 offset:%d" % (4 * c)); self.a.e("s_mov_b64 exec, -1")
    def mread(self, c): self.a.lds("ds_read_b32 v125, v126 offset:%d" % (4 * c), ("ms", c))
    def mcheck(self, c, n=4, sleep=0):
        a = self.a; e = a.e
        ok, rt = self.lab("mok"), self.lab("mrt")
        a.wait(lg=("ms", c))
        a.label(rt)
        e("v_readfirstlane_b32 s50, v125\ns_cmp_ge_u32 s50, %d\ns_cbranch_scc1 %s" % (n, ok))
        if sleep: e("s_sleep %d" % sleep)
        e("ds_read_b32 v125, v126 offset:%d\ns_waitcnt lgkmcnt(0)\ns_branch %s" % (4 * c, rt))
        a.label(ok)

    def typeA(self):
        a = self.a; e = a.e; o = self.o
        cx = lambda s, h: self.dma_x(s, h, 3 * (s & 3) + h)
        ck = lambda s: self.dma_w(s, 1, 3 * (s & 3) + 2, ("c", s))
        wv = lambda s: self.dma_w(s, 2, WV_SLOTS[s], ("wv", s))
        wq = lambda s: self.dma_w(s, 0, WQ_A[s], ("wq", s))
        if o["ini"] == 0:
            cx(0, 0); cx(0, 1); ck(0); cx(1, 0); cx(1, 1); wv(0); wq(0)
        else:
            cx(0, 0); cx(0, 1); ck(0)
            if o["ini"] == 2: ck(1)
            cx(1, 0); cx(1, 1)
        self.stamp("d1")
        self.setup_rest(0, 104)
        self.minit()
        def batch2():
            if o["ini"] == 1: ck(1)
            cx(2, 0); cx(2, 1); ck(2)
        e("s_mov_b32 s55, 0")
        self.setup2(scol=55)
        e("v_xor_b32 v10, 64, v9")
        self.wa = Addr(a, [9, 10])
        e("v_and_b32 v16, 1, v0\nv_lshlrev_b32 v16, 9, v16")
        e("v_bfe_u32 v17, v0, 2, 2\nv_lshrrev_b32 v18, 5, v0\nv_lshl_add_u32 v17, v18, 2, v17\nv_lshl_add_u32 v16, v17, 5, v16")
        e("v_bfe_u32 v17, v0, 4, 1\nv_lshl_add_u32 v16, v17, 4, v16\nv_bfe_u32 v17, v0, 1, 1\nv_lshl_add_u32 v16, v17, 3, v16")
        e("v_add_u32 v12, 0x%x, v16" % WPHI)
        e("v_lshrrev_b32 v16, 5, v0")
        e("v_xor_b32 v124, 0x8000, v4")
        self.stage_addr(20, 17)
        def wrd(slot, j, r, c):
            return ["ds_read_b64_tr_b16 %s, %s" % (vr(r + 2 * tt, 2), self.wa.at(slot * SLOT + (16 * j + 4 * tt) * 128, c)) for tt in (0, 1)]
        def wphi_r(c):
            for t in range(2): a.lds("ds_read_b64_tr_b16 %s, v12 offset:%d" % (vr(72 - 8 * c + 2 * t, 2), 1024 * c + 256 * t))
        def wphi_m(c):
            b = 72 - 8 * c
            e("v_and_b32 v125, 4, v0\nv_cmp_eq_u32 vcc, 0, v125")
            for i in range(4): e("v_cndmask_b32 v%d, v%d, 0, vcc" % (b + 4 + i, b + i))
            for i in range(4): e("v_cndmask_b32 v%d, 0, v%d, vcc" % (b + i, b + i))
        def proj():
            for c in range(2):
                kb = (80, 48)[c]
                for i in range(8): e(CVT(kb + i, 16 + 16 * c + 2 * i))
                e(MF32(16 + 16 * c, 72 - 8 * c, kb, None)); e(MF32(16 + 16 * c, 76 - 8 * c, kb + 4, 16 + 16 * c))
        def warm(t):
            if not o["warm"]: return
            l = self.lab("wm")
            e("s_lshl_b32 s50, s40, 16\ns_lshl_b32 s51, s46, 7\ns_add_u32 s50, s50, s51\nv_lshlrev_b32 v%d, 10, v0" % t)
            e("s_bitcmp1_b32 s45, 1\ns_cbranch_scc1 %s_b" % l)
            e("buffer_load_dword v%d, v%d, s[20:23], s50 offen\ns_branch %s" % (t + 1, t, l))
            a.label(l + "_b")
            a.vmem("buffer_load_dword v%d, v%d, s[24:27], s50 offen" % (t + 1, t), "warm")
            a.label(l)
        e("s_cmp_eq_u32 s%d, 0\ns_cbranch_scc0 L_AK" % sC)
        st = a.state()
        e("v_add_u32 v116, 0x%x, v20\nv_xor_b32 v117, 32, v116" % (14 * SLOT))
        e("v_and_b32 v18, 15, v0\nv_lshl_add_u32 v18, v16, 4, v18\nv_lshlrev_b32 v18, 4, v18\nv_lshlrev_b32 v17, 4, v16\nv_add_u32 v17, 0x200, v17")
        e("v_and_b32 v19, 16, v0\nv_cmp_eq_u32 vcc, 0, v19\nv_cndmask_b32 v122, v17, v18, vcc\nv_add_u32 v122, 0x%x, v122" % KVOP)
        e("s_lshl_b32 s50, s41, 2\ns_add_u32 s50, s50, s%d\ns_lshl_b32 s56, s50, 5\ns_lshl_b32 s51, s42, 1\ns_add_u32 s56, s56, s51" % sR)
        e("s_lshl_b32 s57, s56, %d\ns_add_u32 s57, s57, 0x%x\ns_lshl_b32 s56, s56, 11" % (o["fs2"], F2_OFF))
        e("v_xor_b32 v56, 0x8000, v1\nv_xor_b32 v57, 0x8000, v2\nv_add_u32 v58, 0x18000, v3")
        for i in range(4): e("v_mov_b32 v%d, -1" % (48 + i))
        self.p2lanes(17); self.p2lanesA()
        self.stamp("1")
        batch2()
        def x2(s, h): cx(s, h); self.dma(3 * (s & 3) + h, 56 + h, SX, sKX + s, 0, ("c", s), 4096)
        def w2(s, sec, slot, tag): self.dma_w(s, sec, slot, tag); self.dma(slot, 58, SW, sKW + s, 1024 * sec, tag, 4096)
        wv2 = lambda s: w2(s, 2, WV_SLOTS[s], ("wv", s))
        wq2 = lambda s: w2(s, 0, WQ_A[s], ("wq", s))
        VR = lambda t: 80 + 8 * (t % 4)
        def dreads(slots, t): return wrd(slots[t // 4], t % 4, VR(t), 0) + wrd(slots[t // 4], t % 4, VR(t) + 4, 1)
        def dmf(t): return [MF32(16 + 16 * c, VR(t) + 4 * c, XR + 4 * t, (16 + 16 * c) if t else None) for c in range(2)]
        for s in range(8):
            self.barrier(vm=("c", s)); self.stamp("k%d" % s)
            if s < 5: ld = [lambda: x2(s + 3, 0), lambda: x2(s + 3, 1), lambda: ck(s + 3)]
            elif s < 7: ld = [lambda g=g: (wv2(3 * s - 14 + g) if (3 * s - 14 + g > 1 or o["ini"] < 3) else None) for g in range(2)] + [lambda: wv(3 * s - 12)]
            else: ld = [lambda: wv2(7), lambda: None, lambda: None]
            ld[0]()
            for j in range(4): a.lds("ds_read_b128 %s, %s" % (vr(XR + 16 * s + 4 * j, 4), self.xa.at(3 * (s & 3) * SLOT, j)))
            ld[1](); ld[2]()
            if s == 7 and o["ini"]: wq2(0)
        for t in range(4):
            for r in dreads(WV_SLOTS, t): a.lds(r, ("v0", t))
        for t in range(4):
            a.wait(lg=("v0", t))
            for m in dmf(t): e(m)
            wq2(1 + t)
        wphi_r(0); wphi_r(1)
        for h in range(4): a.vmem("buffer_store_dwordx4 v[48:51], v13, s[16:19], s56 offen offset:%d sc1" % (1024 * h), "clr")
        warm(56)
        self.stamp("ae")
        self.barrier(vm=("wv", 7))
        self.stamp("bv1")
        self.gemm_il(28, 3, lambda i: dreads(WV_SLOTS, i + 4), lambda k: dmf(k + 4), {}, {})
        self.stamp("v1")
        for c in range(2):
            b = 16 + 16 * c
            for q in range(2):
                for i in range(4 * q, 4 * q + 4): e(CVT(b + i, b + 2 * i))
                a.lds("ds_write_b128 v%d, %s offset:%d" % (116 + q, vr(b + 4 * q, 4), SLOT * c))
        self.stamp("abv3")
        self.barrier(vm="clr")
        self.stamp("bv3")
        for q in range(5, 8): wq2(q)
        self.tag_issue()
        self.p2scal()
        self.stamp("q0")
        post = {13: [lambda: (a.wait(vm=("wq", 7)), self.msig(2))], 17: [lambda: self.mread(2)], 33: [self.get_tag]}
        post[21] = [lambda: e("v_and_b32 v125, 4, v0\nv_cmp_eq_u32 vcc, 0, v125")]
        for q in range(8):
            b = 64 + 8 * (q // 4) + q % 4
            post[22 + q] = [lambda b=b: e("v_cndmask_b32 v%d, v%d, 0, vcc\nv_cndmask_b32 v%d, 0, v%d, vcc" % (b + 4, b, b, b))]
        self.gemm_il(32, 3, lambda i: dreads(WQ_A, i), dmf, {20: lambda: (self.mcheck(2), self.stamp("q3"))}, post)
        self.stamp("qend")
        self.msig(0)
        proj()
        for c in range(2):
            ep = (88, 128)[c]
            self.phi(nm="pq%d" % c, pk=True, ACK=16 + 16 * c, EP=ep)
            if c: self.mread(3)
            for b in (ep, 16 + 16 * c):
                for i in range(4): e("v_permlane32_swap_b32 v%d, v%d" % (b + i, b + 4 + i))
        self.stamp("asum")
        self.mcheck(3)
        self.stamp("sum")
        for i in range(8): a.lds("ds_read_b128 %s, v122 offset:%d" % (vr(144 + 4 * i, 4), 576 * i), ("o", i))
        if o["ha"] == 0: self.flag(57)
        for h in range(4):
            a.wait(lg=("o", 2 * h + 1))
            D = 176 + 16 * h; c, hd = divmod(h, 2)
            e(MF32(D, 144 + 8 * h, (88, 128)[c] + 4 * hd, None)); e(MF32(D, 148 + 8 * h, 16 + 16 * c + 4 * hd, D))
        a.vm = []
        for h in range(4):
            D = 176 + 16 * h
            if o["ha"] == 1 + h: self.flag(57)
            e("v_add_f32 v%d, 0x358637bd, v%d\nv_rcp_f32 v%d, v%d" % (D + 8, D + 8, D + 8, D + 8))
            if h < 2:
                for i in range(8): e("v_mul_f32 v%d, v%d, v%d" % (D + i, D + i, D + 8))
            else:
                for i in range(4): e("v_pk_mul_f32 %s, %s, %s op_sel_hi:[1,0]" % (vr(D + 2 * i, 2), vr(D + 2 * i, 2), vr(D + 8, 2)))
            for i in range(4): e(CVT(D + 12 + i, D + 2 * i))
            a.vmem("buffer_store_dwordx4 %s, v13, s[16:19], s56 offen offset:%d sc1" % (vr(D + 12, 4), 1024 * h), "ost")
        self.stamp("ost")
        if o["ha"] == 5: self.flag(57)
        e("s_branch L_P2A2")
        a.restore(st); self.xa.base = 0; self.wa.base = 0
        a.label("L_AK")
        e("v_lshlrev_b32 v18, 4, v16\nv_xor_b32 v20, v20, v18\nv_lshl_add_u32 v20, v16, 13, v20\nv_add_u32 v112, 0x%x, v20" % (8 * SLOT))
        e("v_xor_b32 v113, 16, v112\nv_xor_b32 v114, 32, v112\nv_xor_b32 v115, 48, v112")
        e("v_and_b32 v17, 15, v0\nv_lshrrev_b32 v18, 4, v0\nv_lshlrev_b32 v121, 4, v17\nv_lshl_add_u32 v116, v18, 3, v121\nv_lshl_add_u32 v121, v18, 10, v121")
        e("s_mul_i32 s50, s%d, 1152\ns_add_u32 s50, s50, 0x%x\nv_add_u32 v116, s50, v116" % (sR, KVOP))
        e("v_bfe_u32 v117, v0, 1, 1\nv_mul_u32_u24 v117, 576, v117\nv_and_b32 v19, 1, v0\nv_lshl_add_u32 v117, v19, 4, v117\nv_lshl_add_u32 v117, v18, 3, v117\ns_add_u32 s50, s50, 512\nv_add_u32 v117, s50, v117")
        e("v_lshlrev_b32 v19, 4, v19\nv_mov_b32 v18, 0x3f80\nv_lshlrev_b32 v18, v19, v18\nv_lshrrev_b32 v17, 1, v17")
        for i in range(4): e("v_cmp_eq_u32 vcc, %d, v17\nv_cndmask_b32 v%d, 0, v18, vcc" % (i, 56 + i))
        e("v_and_b32 v123, 15, v0\nv_lshlrev_b32 v123, %d, v123\nv_subrev_u32 v11, 0x18000, v3" % o["fs1"])
        e("s_lshl_b32 s50, s42, 2\ns_add_u32 s50, s50, s%d" % sR)
        e("s_lshl_b32 s4, s50, %d\ns_add_u32 s4, s4, 0x%x\ns_lshl_b32 s5, s50, 14\ns_add_u32 s5, s5, 0x%x\ns_lshl_b32 s43, s50, 11\ns_add_u32 s43, s43, 0x%x" % (o["fs1"] + 4, F1_OFF, KVP_OFF, ZP_OFF))
        e("s_lshl_b32 s50, s50, 4\ns_add_u32 s50, s50, s41")
        e("s_lshl_b32 s3, s50, %d\ns_add_u32 s3, s3, 0x%x" % (o["fs1"], F1_OFF))
        e("s_lshl_b32 s54, s50, 10\ns_add_u32 s54, s54, 0x%x\ns_lshl_b32 s55, s50, 7\ns_add_u32 s55, s55, 0x%x" % (KVP_OFF, ZP_OFF))
        self.tr_addr(118, 17, None, False)
        e("s_and_b32 s50, s%d, 1\ns_lshl_b32 s50, s50, 5\nv_xor_b32 v119, s50, v118" % sR)
        e("s_lshr_b32 s50, s%d, 1\ns_lshl_b32 s50, s50, 13\ns_add_u32 s50, s50, 0x%x\nv_add_u32 v119, s50, v119" % (sR, 14 * SLOT))
        e("s_lshl_b32 s50, s%d, 13\ns_add_u32 s50, s50, 0x%x\nv_add_u32 v118, s50, v118\nv_xor_b32 v122, 32, v118" % (sR, 8 * SLOT))
        for i in range(4): e("v_mov_b32 v%d, 0x3f803f80" % (60 + i))
        e("v_and_b32 v120, 3, v0\nv_bfe_u32 v17, v0, 2, 1\nv_lshl_add_u32 v120, v17, 3, v120\nv_bfe_u32 v17, v0, 3, 1\nv_lshl_add_u32 v120, v17, 2, v120")
        e("v_bfe_u32 v17, v0, 4, 1\nv_lshl_add_u32 v17, v17, 1, v16\nv_lshl_add_u32 v120, v17, 4, v120\nv_lshlrev_b32 v120, 4, v120\nv_lshlrev_b32 v108, 4, v17")
        for i in range(4): e("v_mov_b32 v%d, -1" % (200 + i))
        e("v_and_b32 v111, 0x3c0, v13\nv_add_u32 v111, v111, v13")
        e("v_and_b32 v17, 15, v0\nv_xor_b32 v18, 1, v17\nv_cmp_eq_u32 vcc, s41, v17\nv_cndmask_b32 v17, v17, v18, vcc\nv_lshlrev_b32 v123, %d, v17" % o["fs1"])
        if True:
            e("s_lshl_b32 s50, s41, 2\ns_add_u32 s50, s50, s%d\ns_lshl_b32 s57, s50, 5\ns_lshl_b32 s51, s42, 1\ns_add_u32 s57, s57, s51" % sR)
            e("s_lshl_b32 s57, s57, %d\ns_add_u32 s57, s57, 0x%x" % (o["fs2"], F2_OFF))
        e("v_mov_b32 v204, s55\nv_mov_b32 v17, s3\nv_mov_b32 v18, s57\nv_cmp_lt_u32 vcc, 7, v0\nv_cndmask_b32 v204, v204, v17, vcc")
        e("v_cmp_lt_u32 vcc, 15, v0\nv_cndmask_b32 v204, v204, v18, vcc\nv_and_b32 v17, 0x70, v13\nv_add_u32 v204, v204, v17")
        e("s_setprio 1")
        self.stamp("1")
        batch2()
        KR = lambda t: 128 + 12 * (t % 6)
        def reads(i):
            s, j = divmod(i, 4); b = 3 * (s & 3)
            return ["ds_read_b128 %s, %s" % (vr(KR(i), 4), self.xa.at(b * SLOT, j))] + wrd(b + 2, j, KR(i) + 4, 0) + wrd(b + 2, j, KR(i) + 8, 1)
        def mf(k): return [MF32(16 + 16 * c, KR(k) + 4 + 4 * c, KR(k), (16 + 16 * c) if k else None) for c in range(2)]
        def pwa():
            e("s_and_b32 s50, s40, 1\ns_cmp_eq_u32 s50, 0\ns_cselect_b32 s50, s%d, s%d\ns_and_b32 s51, s40, 2\ns_lshl_b32 s51, s51, 10\ns_add_u32 s50, s50, s51" % (sKW, sKW + 1))
            e("v_mul_u32_u24 v205, 3072, v0")
            a.vmem("buffer_load_dword v206, v205, s[12:15], s50 offen", "pw")
        if o["pa"] == -1: pwa()
        extra = {2: lambda: (wphi_r(0), wphi_r(1)), 3: lambda: wphi_m(0), 4: lambda: wphi_m(1)}
        for s in range(8):
            self.barrier(vm=("c", s)); self.stamp("k%d" % s)
            pend = (mf(4 * s - 2) + mf(4 * s - 1)) if s else [None] * 4
            for j in range(4):
                if pend[j]: e(pend[j])
                for t in reads(4 * s + j): a.lds(t, ("r", j))
            for j in range(4 if s == 7 else 2):
                a.wait(lg=("r", j))
                for m in mf(4 * s + j): e(m)
                if j == 1 and s in (3, 4) and o["ini"] in (1, 2): self.dma(WV_SLOTS[0], 11 if s == 4 else vW, SW, sKW, 2048, ("c", 7), -4096 * (s - 3))
                if j == 0 and s < 5: ck(s + 3)
                if j == 0 and 5 <= s < 7: wv(3 * s - 12)
            if s in extra: extra[s]()
            if s == o["pa"]: pwa()
        self.stamp("kend")
        proj()
        def ebar():
            self.stamp("ae")
            a.wait(vm=("wv", 6))
            e("s_barrier")
            self.stamp("bv1")
            e("s_setprio 0")
        EPK = (88, 128)
        def phi_write(c, ch):
            a.lds("ds_write_b128 v%d, %s offset:%d" % (112 + ch, vr((EPK[c], 16 + 16 * c)[ch >> 1] + 4 * (ch & 1), 4), 2 * SLOT * c))
        its = [self.phi({5 + ch: (lambda c=c, ch=ch: phi_write(c, ch)) for ch in range(4)}, nm="pk%d" % c, ACK=16 + 16 * c, EP=EPK[c], collect=True, pk1=(c < o["pk1"])) for c in range(2)]
        cut = [[q for q, it in enumerate(x) if isinstance(it, str) and it.startswith("v_exp")][0] for x in its]
        def kclr():
            self.tag_issue()
            a.vmem("buffer_store_dwordx4 v[200:203], v13, s[16:19], s54 offen sc1", "clr")
            e("s_mov_b64 exec, 0xffffff")
            a.vmem("buffer_store_dwordx4 v[200:203], v204, s[16:19], 0 offen sc1", "clr")
            e("s_mov_b64 exec, -1")
            warm(109)
        def wq57():
            for q in range(5, 8):
                wq(q); self.dma(WQ_A[q], 11, SW, sKW + q, 0, ("wq", q), -4096)
        if o["pk1"] == 2: seq = its[0][:cut[0]] + its[1][:cut[1]] + [kclr, ebar] + its[0][cut[0]:] + [self.get_tag] + its[1][cut[1]:]
        else: seq = its[0][:cut[0]] + [kclr, ebar] + its[0][cut[0]:] + [self.get_tag] + its[1]
        self.emit_items(seq)
        if o["pre"]: self.msig(1); self.mread(1)
        self.stamp("pend")
        if o["pre"]: self.mcheck(1, 4, 1)
        else:
            a.wait(vm="clr")
            if o["h1"] == 0: self.flag(3)
            self.stamp("abv3"); self.barrier(); self.stamp("bv3")
            if o["h1"] == 1: self.flag(3)
        e("s_setprio 1")
        PH, VV = 144, 176
        for m in range(4):
            for f in range(2):
                for t in range(2): a.lds("ds_read_b64_tr_b16 %s, v%d offset:%d" % (vr(PH + 8 * m + 4 * f + 2 * t, 2), (118, 122)[f], m * 2048 + t * 1024), ("k", m))
            if not o["pre"]:
                for t in range(2): a.lds("ds_read_b64_tr_b16 %s, v119 offset:%d" % (vr(VV + 4 * m + 2 * t, 2), m * 2048 + t * 1024), ("k", m))
        def pack(b, vaddr, soff, mask):
            e(CVT(b, b)); e(CVT(b + 1, b + 2)); e(CVT(b + 2, b + 4)); e(CVT(b + 3, b + 6))
            e("v_permlane16_swap_b32 v%d, v%d\nv_permlane16_swap_b32 v%d, v%d" % (b, b + 2, b + 1, b + 3))
            if mask: e("s_mov_b32 exec_lo, 0x10001\ns_mov_b32 exec_hi, 0x10001")
            a.vmem("buffer_store_dwordx4 %s, v%d, s[16:19], s%d offen sc1" % (vr(b, 4), vaddr, soff), "kvst")
            if mask: e("s_mov_b64 exec, -1")
        def zm(m):
            for f in range(2): e(MF16(48 + 4 * f, PH + 8 * m + 4 * f, 60, (48 + 4 * f) if m else None))
        def km(m):
            for f in range(2): e(MF16(16 + 4 * f, PH + 8 * m + 4 * f, VV + 4 * m, (16 + 4 * f) if m else None))
        if o["pre"]:
            for m in range(4):
                a.wait(lg=("k", m)); zm(m)
            pack(48, 108, 55, True)
            self.stamp("abv3")
            e("s_barrier")
            self.stamp("bv3")
            for m in range(4):
                for t in range(2): a.lds("ds_read_b64_tr_b16 %s, v119 offset:%d" % (vr(VV + 4 * m + 2 * t, 2), m * 2048 + t * 1024), ("k", m))
            for m in range(4):
                a.wait(lg=("k", m)); km(m)
            pack(16, 120, 54, False)
        else:
            for m in range(4):
                a.wait(lg=("k", m)); km(m); zm(m)
            pack(16, 120, 54, False); pack(48, 108, 55, True)
        self.stamp("kvst")
        e("s_setprio 0")
        def wo2(g): self.dma_wo(g); self.dma_wo(g, 124, -4096)
        self.msig(5)
        self.mread(5)
        GW = (12, 13, 8, 9, 10, 11, 14, 15, 0, 1, 2); n0, n1, n2 = o["g0n"], o["g1n"], o["g2n"]
        assert n2 >= 8
        for q, g in enumerate(GW[:n1]):
            if q == 2: self.mcheck(5, 4, 1)
            if q == n0:
                self.stamp("q2"); self.poll_issue(110, 123, 4, "p1")
            wo2(g)
        a.wait(vm="p1"); self.stamp("p1st")
        self.poll_check(110, 123, 4, "p1", o["sl1"])
        if self.stamps and "np" in self.sset: e("s_lshl_b32 s50, s51, 7\ns_add_u32 s%d, s%d, s50" % (STAMPS[self.sset.index("np")], STAMPS[0]))
        self.stamp("pollok")
        zl = "buffer_load_dwordx4 v[32:35], v111, s[16:19], s43 offen sc1"
        a.vmem(zl, "z")
        for g in range(4): e("s_add_u32 s%d, s5, %d" % (64 + g, 4096 * g))
        kl = lambda i: "buffer_load_dwordx4 %s, v121, s[16:19], s%d offen offset:%d sc1" % (vr(XR + 4 * i, 4), 64 + i // 4, (i % 4) * 256)
        for i in range(16): a.vmem(kl(i), ("kp", i))
        self.stamp("bi")
        for g in GW[n1:n2]: wo2(g)
        self.p2scal(); self.p2lanes(40)
        if o["be"]: self.pollB_issue()
        e("s_setprio 1")
        self.verify(32, 4, [zl], "z", 125)
        a.wait(vm="z")
        e(MF16(36, 56, 32, None))
        for i in range(16):
            if i % 4 == 0: self.verify(XR + 4 * i, 16, [kl(q) for q in range(i, i + 4)], ("kp", i + 3), 125)
            a.wait(vm=("kp", i))
            e(MF16(16 + 4 * (i % 4), 56, XR + 4 * i, (16 + 4 * (i % 4)) if i >= 4 else None))
            if i == 7:
                for k in (4, 8):
                    for q in range(4): e("v_add_f32_dpp v%d, v%d, v%d row_ror:%d row_mask:0xf bank_mask:0xf" % (36 + q, 36 + q, 36 + q, k))
                e(CVT(36, 36)); e(CVT(37, 38))
        self.stamp("bl")
        e("s_mov_b32 exec_hi, 0")
        a.lds("ds_write_b64 v117, v[36:37]")
        for q in range(4):
            e(CVT(16 + 4 * q, 16 + 4 * q)); e(CVT(17 + 4 * q, 18 + 4 * q))
            a.lds("ds_write_b64 v116, %s offset:%d" % (vr(16 + 4 * q, 2), 576 * (q >> 1) + 256 * (q & 1)))
        e("s_mov_b64 exec, -1\ns_setprio 0")
        self.msig(3)
        self.stamp("asum")
        a.wait(vm=0); self.msig(4)
        self.mread(0)
        if o["be"]: self.bearly()
        for g in GW[n2:]: wo2(g)
        self.mcheck(0, 4, 1)
        self.mread(4)
        for g in (3, 4, 5, 6, 7): wo2(g)
        if not o["be"]:
            self.pollB_issue(); e("s_mov_b32 s70, 0")
        self.mcheck(4)
        e("s_branch L_P2B")

    def typeB(self):
        a = self.a; e = a.e
        a.vm = []; a.lg = []
        a.label("L_typeB")
        self.stamp("tb")
        HALO, KV, QP = 15 * SLOT, 0, 17 * SLOT
        buf = lambda s: 5 * ((s + 2) % 3)
        def gran(s, g):
            if g < 2: self.dma_x(s, g, buf(s) + g)
            else: self.dma_w(s, (1, 2, 0)[g - 2], buf(s) + g, ("c", s))
        ini = self.o["inib"]
        def pwb(lo=0, n=4):
            l = self.lab("pw")
            e("s_sub_u32 s50, s40, %d\ns_cmp_lt_u32 s50, %d\ns_cbranch_scc0 %s" % (lo, n, l))
            if self.o["map"]: e("s_and_b32 s50, s41, 3\ns_lshl_b32 s50, s50, 1\ns_and_b32 s51, s40, 1\ns_add_u32 s50, s50, s51\ns_mul_i32 s50, s50, 0x30000")
            else: e("s_bitcmp1_b32 s40, 0\ns_cbranch_scc1 %s\ns_and_b32 s50, s41, 7\ns_mul_i32 s50, s50, 0x30000" % l)
            e("s_lshl_b32 s51, s42, 7\ns_add_u32 s50, s50, s51\ns_and_b32 s51, s40, 2\ns_lshl_b32 s51, s51, 10\ns_add_u32 s50, s50, s51")
            e("v_mul_u32_u24 v249, 3072, v0\nbuffer_load_dword v248, v249, s[56:59], s50 offen")
            a.label(l)
        e("s_mov_b32 s12, s32\ns_mov_b32 s13, s33")
        e("v_xor_b32 v65, 0x8000, v1\nv_xor_b32 v66, 0x8000, v2\nv_add_u32 v67, 0x18000, v3")
        def piece(s, q, d):
            g, p = divmod(q, 2)
            if not p: gran(s, g)
            elif g < 2: self.dma(buf(s) + g, 65 + g, SX, sKX + s, 0, ("c", s), d)
            else: self.dma(buf(s) + g, 67, SW, sKW + s, 1024 * (1, 2, 0)[g - 2], ("c", s), d)
        def second():
            if self.o["pw"] == 3: pwb(4, 4)
            for q in (range(4, 10) if ini else range(10)): piece(1, q, -4096)
            e("v_lshrrev_b32 v16, 3, v0\nv_lshrrev_b32 v17, 4, v0\nv_and_b32 v18, 7, v0\nv_xor_b32 v17, v17, v18\nv_lshlrev_b32 v17, 4, v17\nv_lshl_add_u32 v16, v16, 11, v17")
            e("s_add_u32 s50, s44, s40\ns_and_b32 s50, s50, 7\ns_lshl_b32 s50, s50, 7\ns_lshl_b32 s51, s41, 17\ns_add_u32 s50, s50, s51\ns_sub_u32 s50, s50, 0x4000")
            e("v_add_u32 v16, s50, v16\nv_xor_b32 v17, 64, v16\nv_add_u32 v17, 0x400, v17\nv_xor_b32 v18, 0x200, v16\nv_xor_b32 v19, 0x200, v17")
            e("s_lshl_b32 s50, s40, 11")
            for q in range(4):
                e("s_add_u32 m0, s50, 0x%x" % (HALO + 1024 * (q & 1) - 8192 * (q >> 1)))
                a.vmem("buffer_load_dwordx4 v%d, s[8:11], 0 offen lds" % (16 + q), ("c", 1))
            for q in (range(4) if ini else []): piece(1, q, -4096)
            if self.o["pw"] == 1: pwb(4, 4)
        def publish():
            l = self.lab("notag")
            e("s_lshl_b32 s50, s2, 3\ns_add_u32 s50, s50, s40\ns_cmp_eq_u32 s50, %d\ns_cbranch_scc0 %s" % ((32 if self.o['map'] else 64) * 8 + 3, l))
            e("s_waitcnt lgkmcnt(0)")
            e("s_add_u32 s50, s3, 0x%x\ns_and_b32 s50, s50, 0x7fffffff\nv_mov_b32 v16, s50\nv_mov_b32 v17, 1\ns_mov_b64 exec, 1" % TAGC)
            e("buffer_store_dwordx2 v[16:17], off, s[36:39], 0 sc1\ns_mov_b32 s50, 0x%x\nbuffer_store_dword v16, off, s[16:19], s50\ns_mov_b64 exec, -1" % EP_OFF)
            a.label(l)
        QF, PO = 208, 224
        def consts():
            e("v_lshrrev_b32 v88, 4, v0\nv_lshlrev_b32 v88, 2, v88\nv_and_b32 v89, 7, v0\nv_sub_u32 v88, v88, v89\nv_mov_b32 v90, 0x%x" % NEG)
            for i in range(4):
                e("v_add_u32 v89, %d, v88\nv_cmp_gt_u32 vcc, 8, v89\nv_cndmask_b32 v%d, v90, 0, vcc" % (i - 1, 80 + i))
            e("s_or_b32 s50, s41, s%d\ns_cmp_eq_u32 s50, 0\ns_cselect_b32 s50, 32, 0\nv_cmp_gt_u32 vcc, s50, v0" % sR)
            for i in range(4): e("v_cndmask_b32 v%d, v%d, v90, vcc" % (84 + i, 80 + i))
            e("s_mul_i32 s43, s%d, 9216\ns_lshl_b32 s50, s%d, 11\ns_add_u32 s43, s43, s50\ns_add_u32 s43, s43, 0x%x" % (sC, sR, KV))
            e("v_and_b32 v88, 15, v0\nv_and_b32 v89, 8, v0\nv_add_u32 v88, v88, v89\nv_lshrrev_b32 v89, 4, v0\nv_bfe_u32 v90, v0, 1, 2\nv_xor_b32 v89, v89, v90\nv_lshlrev_b32 v89, 4, v89")
            e("v_and_b32 v91, 7, v0\nv_lshl_add_u32 v91, v91, 6, v89\nv_lshl_add_u32 v88, v88, 6, v89\nv_add_u32 v88, s43, v88")
            e("s_lshl_b32 s50, s%d, 13\ns_lshl_b32 s51, s%d, 11\ns_add_u32 s50, s50, s51\ns_add_u32 s50, s50, 0x%x\nv_add_u32 v91, s50, v91" % (sC, sR, QP))
            self.tr_addr(89, 92, None, True)
            e("s_add_u32 s43, s43, 18432\nv_add_u32 v89, s43, v89\nv_xor_b32 v90, 32, v89")
            e("v_bfe_u32 v92, v0, 3, 1\nv_lshlrev_b32 v92, 6, v92\nv_and_b32 v93, 32, v0\nv_add_u32 v92, v92, v93\nv_bfe_u32 v93, v0, 4, 1\nv_lshl_add_u32 v92, v93, 3, v92")
            e("v_and_b32 v93, 7, v0\nv_add_u32 v92, v92, v93\nv_lshlrev_b32 v92, 4, v92")
            for i in range(4): e("v_mov_b32 v%d, 0x3f803f80" % (96 + i))
            for i in range(32): e("v_mov_b32 v%d, 0" % (QF + i))

        def consts_items():
            n = len(a.lines); consts(); it = a.lines[n:]; del a.lines[n:]
            return it
        def scal():
            e("s_lshl_b32 s50, s41, 2\ns_add_u32 s50, s50, s%d\ns_lshl_b32 s51, s42, 1\ns_add_u32 s51, s51, s%d" % (sR, sC))
            e("s_lshl_b32 s68, s50, 5\ns_add_u32 s68, s68, s51\ns_lshl_b32 s69, s68, %d\ns_add_u32 s69, s69, 0x%x\ns_add_u32 s68, s68, 16\ns_lshl_b32 s68, s68, 11" % (self.o["fs2"], F2_OFF + (256 << 10)))
            e("s_lshl_b32 s50, s41, 2\ns_lshr_b32 s51, s42, 1\ns_add_u32 s50, s50, s51\ns_lshl_b32 s50, s50, 5\ns_and_b32 s51, s42, 1\ns_add_u32 s50, s50, s51")
            e("s_lshl_b32 s70, s50, %d\ns_add_u32 s70, s70, 0x%x\ns_cmp_eq_u32 s40, 4\ns_cselect_b32 s70, s70, 0" % (self.o["fs2"], F2_OFF + (256 << 10) + (16 << self.o["fs2"])))
            e("s_lshl_b32 s67, s41, 9\ns_lshl_b32 s51, s42, 6\ns_add_u32 s67, s67, s51\ns_add_u32 s67, s67, 0x%x" % GP_OFF)
        RG = 148; AC = (16, 100)
        e("s_cmp_eq_u32 s%d, 0\ns_cbranch_scc0 L_Bh" % sC)
        for q in range(10): piece(0, q, 4096)
        e("s_barrier")
        self.stamp("d1")
        self.setup_rest(1, 0)
        l = self.lab("notl")
        e("s_lshl_b32 s50, s2, 3\ns_add_u32 s50, s50, s40\ns_cmp_eq_u32 s50, %d\ns_cbranch_scc0 %s" % ((32 if self.o['map'] else 64) * 8 + 3, l))
        e("s_mov_b32 s50, 0x%x\ns_buffer_load_dword s3, s[16:19], s50" % EP_OFF)
        a.label(l)
        e("s_and_b32 s54, s40, 1\ns_bfe_u32 s55, s40, 0x10001")
        self.setup2(54, 13, 55)
        self.stage_addr(76, 16, 54, 12)
        e("s_lshl_b32 s50, s55, 13\ns_add_u32 s50, s50, 0x%x\nv_add_u32 v79, s50, v76\nv_xor_b32 v64, 32, v79" % QP)
        e("s_mul_i32 s50, s55, 9216\ns_add_u32 s50, s50, 0x%x\nv_add_u32 v76, s50, v76\nv_xor_b32 v77, 32, v76" % (KV + 1024))
        e("v_mov_b32 v126, 0x%x\nv_mov_b32 v127, 1" % MCNT)
        consts(); scal()
        def reads(i):
            s, j = divmod(i, 4); r = RG + 20 * (i % 3); b = buf(s)
            self.wa.at(b * SLOT, span=5 * SLOT - 64, gran=5 * SLOT)
            self.xa.at(b * SLOT, span=4096, gran=5 * SLOT)
            x = ["ds_read_b128 %s, %s" % (vr(r + 4 * h, 4), self.xa.at(b * SLOT + 4096 * h, j)) for h in range(2)]
            w = [self.wreads(b + 2 + sec, j, r + 8 + 4 * sec) for sec in range(3)]
            if self.o.get("nox"): return w[0] + w[1] + w[2]
            if self.o.get("now"): return x
            return [x[0]] + w[0] + [x[1]] + w[1] + w[2]
        def mf(k):
            r = RG + 20 * (k % 3)
            return [MF32(AC[h] + 16 * sec, r + 8 + 4 * sec, r + 4 * h, (AC[h] + 16 * sec) if k else None) for sec in range(3) for h in range(2)]
        pre = {4 * s: (lambda s=s: (self.stamp("a%d" % s), self.barrier(), self.stamp("k%d" % s))) for s in range(1, 8)}
        self.stamp("1")
        a.wait(vm=0); self.msig(7); publish(); self.mread(7); self.mcheck(7); self.stamp("k0")
        NT = self.o["bd"] + 1
        self.gemm_il(32, self.o["bd"], reads, lambda k: mf(k) if k < 32 - NT else mf(k)[:2], pre, {24: [self.tag_issue]})
        self.stamp("a8")
        self.barrier()
        self.stamp("k8")
        def stage(sec):
            a0, a1, off = ((76, 77, 0), (76, 77, 18432), (79, 64, 0))[sec]
            o = []
            for h in range(2):
                b = AC[h] + 16 * sec
                for q, ad in enumerate((a0, a1)):
                    o += [CVT(b + i, b + 2 * i) for i in range(4 * q, 4 * q + 4)]
                    o.append(lambda t="ds_write_b128 v%d, %s offset:%d" % (ad, vr(b + 4 * q, 4), off + 2048 * h): a.lds(t))
            return o
        pend = stage(0)
        for sec in range(1, 3):
            ms = [mf(k)[2 * sec + h] for h in range(2) for k in range(32 - NT, 32)]
            per = -(-len(pend) // (len(ms) - 1))
            for q, m in enumerate(ms):
                e(m)
                if q: self.emit_items(pend[(q - 1) * per:q * per])
            pend = stage(sec)
        self.stamp("kend")
        self.emit_items(pend)
        self.get_tag()
        e("s_branch L_Bt")
        a.vm = []; a.lg = []
        a.label("L_Bh")
        e("s_mov_b32 s56, s26\ns_mov_b32 s57, s27\ns_mov_b32 s58, 0x180000\ns_mov_b32 s59, 0x20000\nv_subrev_u32 v67, 0x18000, v3")
        self.minit()
        self.setup_rest(1, 240)
        e("v_and_b32 v16, 15, v0\nv_lshrrev_b32 v17, 4, v0\nv_bfe_u32 v18, v0, 1, 3\nv_xor_b32 v18, v17, v18\nv_lshlrev_b32 v18, 4, v18\nv_lshl_add_u32 v18, v16, 7, v18")
        e("v_add_u32 v10, 0x%x, v18\nv_xor_b32 v11, 64, v10" % HALO)
        e("s_lshl_b32 s50, s42, 11\nv_add_u32 v110, s50, v18\nv_xor_b32 v111, 64, v110")
        e("v_lshlrev_b32 v112, 4, v17\nv_add_u32 v112, 0x%x, v112" % GATE)
        e("v_bfe_u32 v16, v0, 2, 2\nv_lshl_add_u32 v16, v17, 3, v16\nv_lshlrev_b32 v16, 7, v16")
        e("s_lshr_b32 s50, s%d, 1\nv_bfe_u32 v17, v0, 3, 1\nv_xor_b32 v17, s50, v17\nv_lshl_add_u32 v16, v17, 6, v16" % sR)
        e("s_and_b32 s50, s%d, 1\ns_lshl_b32 s50, s50, 5\nv_and_b32 v17, 3, v0\nv_lshl_add_u32 v16, v17, 3, v16\nv_add_u32 v12, s50, v16" % sR)
        e("v_bfe_u32 v78, v0, 4, 1\nv_bfe_u32 v16, v0, 1, 2\nv_xor_b32 v78, v78, v16\ns_and_b32 s50, s%d, 1\ns_lshl_b32 s50, s50, 1\nv_xor_b32 v78, s50, v78" % sR)
        e("v_lshlrev_b32 v78, 4, v78\nv_and_b32 v16, 15, v0\nv_lshl_add_u32 v78, v16, 6, v78\nv_lshrrev_b32 v16, 5, v0\nv_lshl_add_u32 v78, v16, 3, v78")
        e("s_lshr_b32 s50, s%d, 1\ns_mul_i32 s50, s50, 9216\ns_add_u32 s50, s50, 0x%x\nv_add_u32 v78, s50, v78" % (sR, KV))
        self.barrier()
        second()
        self.stamp("d1")
        CI = consts_items(); cuts = [0]
        for q in range(1, 5):
            p = len(CI) * q // 5
            while "vcc" in CI[p] or "scc" in CI[p] or "s50" in CI[p] or "s51" in CI[p] or "cselect" in CI[p]: p += 1
            cuts.append(p)
        cuts.append(len(CI))
        e("s_setprio %d" % self.o.get("hprio", 2))
        ha = Addr(a, [12]); ga = Addr(a, [110, 111])
        def gran2(s, g):
            gran(s, g)
            if g < 2: self.dma(buf(s) + g, 65 + g, SX, sKX + s, 0, ("c", s), -4096)
            else: self.dma(buf(s) + g, 67, SW, sKW + s, 1024 * (1, 2, 0)[g - 2], ("c", s), -4096)
        FR = lambda s, kk, q: 128 + 40 * (s & 1) + 20 * kk + 4 * q
        def early(s):
            b = buf(s)
            ha.at(b * SLOT, span=4 * SLOT, gran=5 * SLOT)
            return ["ds_read_b64_tr_b16 %s, %s" % (vr(FR(s, kk, q) + 2 * tt, 2), ha.at((b + 2 + q) * SLOT + (32 * kk + 4 * tt) * 128)) for kk in range(2) for q in range(2) for tt in range(2)]
        def late(s): return ["ds_read_b128 %s, v%d offset:%d" % (vr(FR(s, kk, 2), 4), 10 + kk, s * 2048) for kk in range(2)]
        def gate_r(s):
            ga.at(buf(s) * SLOT, gran=5 * SLOT)
            l = self.lab("ngr")
            e("s_cmp_eq_u32 s40, 4\ns_cbranch_scc0 %s" % l)
            for kk in range(2): e("ds_read_b128 %s, %s" % (vr(FR(s, kk, 3), 4), ga.at(buf(s) * SLOT, kk)))
            for t in ([0, 1] if s == 1 else [s] if s else []):
                for kk in range(2): e("ds_read_b128 %s, v112 offset:%d" % (vr(FR(t, kk, 4), 4), t * 128 + kk * 64))
            a.label(l)
        def small(s):
            o = [MF16(16 + 4 * q, FR(s, kk, q), FR(s, kk, 2), (16 + 4 * q) if (s or kk) else None) for kk in range(2) for q in range(2)]
            def gt():
                l = self.lab("ng")
                e("s_cmp_eq_u32 s40, 4\ns_cbranch_scc0 %s" % l)
                for kk in range(2): e(MF16(24, FR(s, kk, 4), FR(s, kk, 3), 24 if (s or kk) else None))
                a.label(l)
            return o + [gt]
        def wo2(g):
            self.dma_wo(g); self.dma_wo(g, 68, -4096)
        def clr(q): a.vmem("buffer_store_dwordx4 v[244:247], v13, s[16:19], s71 offen offset:%d sc1" % (1024 * q), "clr")
        def fcl():
            e("s_sub_u32 s50, s69, 128")
            self.fclr(244, 50, 16)
        def wopiece(g, p): self.dma_wo(g, 68 if p else vWO, -4096 * p)
        for s in range(8):
            if s == 0:
                self.stamp("1")
                self.mread(7); self.mcheck(7, 4, 1)
            else:
                self.barrier(vm=("c", s))
            self.stamp("k%d" % s)
            if s < 6: ld = [lambda q=q: piece(s + 2, q, -4096) for q in range(10)]
            elif s == 6: ld = [lambda: (clr(0), clr(1)), lambda: (clr(2), clr(3)), fcl, lambda: None] + [lambda q=q: wopiece(9 - q // 2, q & 1) for q in range(6)]
            else: ld = [lambda q=q: wopiece(10 + q // 2, q & 1) for q in range(8)] + [lambda: None] * 2
            if s == 6:
                self.tag_issue(); scal()
                for i in range(4): e("v_mov_b32 v%d, -1" % (244 + i))
                e("s_sub_u32 s71, s68, 2048")
            rd = (late(0) if s == 1 else []) + early(s) + (late(s) if s else [])
            ms = small(s - 1) if s >= 2 else []
            for q in range(10):
                ld[q]()
                for t in rd[q::10]: a.lds(t)
                if q < len(ms): self.emit_items([ms[q]])
                if q == 6: gate_r(s)
            if s == 1:
                a.wait(lg=0); self.emit_items(small(0))
            if 1 <= s <= 5: self.emit_items(CI[cuts[s - 1]:cuts[s]])
            if s == 0: self.setup2s(); e("v_xor_b32 v68, 0x8000, v4")
            if self.o["pw"] == 5 and s == self.o["pv"]: pwb(6, 2)
            if self.o["pw"] == 5 and s == self.o["pq"]: pwb(4, 2)
        self.stamp("a8")
        self.barrier()
        self.stamp("k8")
        self.emit_items(small(7))

        self.stamp("kend")
        e("s_setprio 0")
        for q in range(2):
            e(CVT(16 + 4 * q, 16 + 4 * q)); e(CVT(17 + 4 * q, 18 + 4 * q))
            a.lds("ds_write_b64 v78, %s offset:%d" % (vr(16 + 4 * q, 2), 18432 * q))
        l = self.lab("nog")
        e("s_cmp_eq_u32 s40, 4\ns_cbranch_scc0 %s" % l)
        self.fclr(244, 70)
        if self.o["fc"]: a.vm.pop()
        e("v_mul_f32 v24, s52, v24\nv_exp_f32 v24, -v24\nv_add_f32 v24, 1.0, v24\nv_rcp_f32 v24, v24")
        e("v_lshlrev_b32 v25, 2, v0\ns_mov_b64 exec, 0xffff\nbuffer_store_dword v24, v25, s[16:19], s67 offen sc1\ns_mov_b64 exec, -1")
        a.label(l)
        self.get_tag()
        for g in (14, 15, 5, 6): wo2(g)
        a.wait(vm="clr")
        a.label("L_Bt")
        self.stamp("abv3")
        self.barrier()
        self.stamp("bv3")
        KF, VF, S, O = 128, 144, 160, 176
        e("s_mov_b32 exec_lo, 0x00ff00ff\ns_mov_b32 exec_hi, 0xff00ff00")
        for u in range(4): a.lds("ds_read_b128 %s, v91 offset:%d" % (vr(QF + 4 * u, 4), 512 * u), ("q", u))
        e("s_mov_b64 exec, -1")
        for u in range(4): a.lds("ds_read_b128 %s, v88 offset:%d" % (vr(KF + 4 * u, 4), 512 * u), ("k", u))
        for u in range(4):
            for hd in range(2): a.lds("ds_read_b64_tr_b16 %s, v%d offset:%d" % (vr(VF + 4 * u + 2 * hd, 2), 89 + hd, 512 * u), "v")
        for u in range(4):
            a.wait(lg=("k", u))
            e(MF16(S + 4 * u, KF + 4 * u, QF + 4 * u, 84 if u < 2 else 80))
        self.stamp("at1")
        l = self.lab("f2")
        e("s_cmp_eq_u32 s70, 0\ns_cbranch_scc1 %s\ns_waitcnt vmcnt(8)" % l)
        self.flag(70); a.vm.pop()
        a.label(l)
        if self.o["hb"] == 0: self.flag(69)
        M = 100
        for u in range(4): e("v_max3_f32 v%d, v%d, v%d, v%d" % (M + u, S + 4 * u, S + 4 * u + 1, S + 4 * u + 2))
        for u in range(4): e("v_max_f32 v%d, v%d, v%d" % (M + u, M + u, S + 4 * u + 3))
        e("v_permlane16_swap_b32 v100, v101\nv_permlane16_swap_b32 v102, v103\nv_max_f32 v100, v100, v101\nv_max_f32 v102, v102, v103")
        e("v_permlane32_swap_b32 v100, v102\nv_max_f32 v100, v100, v102")
        e("s_mov_b32 s52, 0x3EB8AA3B")
        e("v_mul_f32 v100, s52, v100\nv_mov_b32 v104, v100\nv_permlane32_swap_b32 v100, v104")
        e("v_mov_b32 v102, v100\nv_mov_b32 v106, v104\nv_permlane16_swap_b32 v100, v102\nv_permlane16_swap_b32 v104, v106")
        for i in range(16): e("v_fma_f32 v%d, v%d, s52, -v%d" % (S + i, S + i, M + 2 * (i // 4)))
        if self.o["hb"] == 1: self.flag(69)
        self.stamp("at2")
        for i in range(16): e("v_exp_f32 v%d, v%d" % (S + i, S + i))
        for hd, mk in ((0, 0x00ff00ff), (1, 0xff00ff00)):
            e("s_mov_b32 exec_lo, 0x%x\ns_mov_b32 exec_hi, 0x%x" % (mk, mk))
            for u in range(4):
                for h in (0, 1): e(CVT(PO + 4 * u + 2 * hd + h, S + 4 * u + 2 * h))
        e("s_mov_b64 exec, -1")
        a.wait(lg=0)
        for u in range(4):
            e(MF16(O + 8 * u + 4, 96, PO + 4 * u, None)); e(MF16(O + 8 * u, VF + 4 * u, PO + 4 * u, None))
        if self.o["hb"] == 2: self.flag(69)
        self.stamp("at3")
        for u in range(4): e("v_rcp_f32 v%d, v%d" % (O + 8 * u + 4, O + 8 * u + 4))
        for u in range(4):
            for h in range(4): e("v_mul_f32 v%d, v%d, v%d" % (O + 8 * u + h, O + 8 * u + h, O + 8 * u + 4))
        for u in range(4):
            for h in (0, 1): e(CVT(KF + 2 * u + h, O + 8 * u + 2 * h))
        a.vm = []
        for sp in range(2):
            for h in (0, 1): e("v_permlane16_swap_b32 v%d, v%d" % (KF + 4 * sp + h, KF + 4 * sp + 2 + h))
            a.vmem("buffer_store_dwordx4 %s, v92, s[16:19], s68 offen offset:%d sc1" % (vr(KF + 4 * sp, 4), 256 * sp), "ost")
        self.stamp("ost")
        e("s_waitcnt vmcnt(3)\ns_barrier")
        for g in range(5): self.dma_wo(g)
        e("v_mov_b32 v126, 0x%x\nv_mov_b32 v127, 1" % MCNT)
        self.p2scal(); self.p2lanes(17)
        e("s_mov_b32 s70, 0\ns_cmp_eq_u32 s%d, 0\ns_cbranch_scc1 L_P2A" % sC)
        self.pollB_issue()

    def p2scal(self):
        e = self.a.e
        e("s_and_b32 s84, s40, 1\ns_bfe_u32 s54, s40, 0x10001")
        e("s_lshl_b32 s55, s45, 1\ns_add_u32 s55, s55, s84\ns_lshl_b32 s50, s55, 2\ns_lshr_b32 s51, s40, 1\ns_add_u32 s50, s50, s51\ns_lshl_b32 s50, s50, 14")
        for g in range(4):
            e("s_add_u32 s51, s45, %d\ns_and_b32 s51, s51, 3\ns_lshl_b32 s51, s51, 12\ns_add_u32 s%d, s50, s51" % (g, 72 + g))
        e("s_lshl_b32 s68, s55, %d\ns_lshl_b32 s50, s85, 18\ns_add_u32 s68, s68, s50\ns_add_u32 s68, s68, 0x%x" % (self.o["fs2"] + 5, F2_OFF))
        e("s_lshl_b32 s76, s55, 15\ns_lshl_b32 s50, s46, 7\ns_add_u32 s76, s76, s50\ns_lshl_b32 s50, s54, 6\ns_add_u32 s76, s76, s50")
    def p2lanes(self, t):
        e = lambda x: self.a.e(x.replace("vA", "v%d" % t).replace("vB", "v%d" % (t + 1)))
        e("s_bfe_u32 s51, s40, 0x10001")
        e("v_bfe_u32 vA, v0, 2, 2\nv_lshrrev_b32 vB, 5, v0\nv_lshl_add_u32 vA, vB, 2, vA\nv_lshlrev_b32 vA, 7, vA")
        e("v_bfe_u32 vB, v0, 3, 1\nv_xor_b32 vB, s51, vB\nv_lshl_add_u32 vA, vB, 6, vA")
        e("v_bfe_u32 vB, v0, 4, 1\nv_lshl_add_u32 vA, vB, 5, vA\nv_and_b32 vB, 3, v0\nv_lshl_add_u32 v112, vB, 3, vA")
        e("s_lshr_b32 s50, s40, 1\ns_lshl_b32 s50, s50, 15\nv_add_u32 v112, s50, v112\nv_xor_b32 v113, 64, v112")
    def p2lanesA(self):
        e = self.a.e
        EX, BD = 16 * SLOT, 8 * SLOT
        e("s_bfe_u32 s51, s40, 0x10001\ns_lshl_b32 s50, s51, 3")
        e("v_and_b32 v114, 6, v0\nv_add_u32 v114, s50, v114\nv_lshlrev_b32 v114, %d, v114" % self.o["fs2"])
        e("s_and_b32 s50, s40, 1\ns_lshl_b32 s50, s50, 1\ns_add_u32 s50, s50, s51\ns_lshl_b32 s50, s50, 12\nv_add_u32 v115, s50, v13")
        e("v_add_u32 v119, 0x%x, v115\nv_xor_b32 v118, 0x1000, v119\nv_add_u32 v115, 0x%x, v115" % (EX, BD))
        e("v_and_b32 v120, 31, v0\nv_lshlrev_b32 v120, 2, v120\ns_and_b32 s50, s40, 1\ns_lshl_b32 s50, s50, 7\ns_add_u32 s50, s50, 0x%x\nv_add_u32 v120, s50, v120" % GEX)
        e("v_and_b32 v121, 16, v0\nv_and_b32 v123, 7, v0\nv_lshl_add_u32 v121, v123, 1, v121\nv_bfe_u32 v123, v0, 3, 1\nv_add_u32 v121, v121, v123\nv_lshlrev_b32 v121, 10, v121")
        e("v_lshrrev_b32 v123, 5, v0\nv_lshl_add_u32 v121, v123, 4, v121")

    def pollB_issue(self):
        e = self.a.e
        e("v_and_b32 v11, 7, v0\ns_lshl_b32 s50, s54, 3\nv_add_u32 v11, s50, v11\nv_and_b32 v12, 1, v0\nv_add_u32 v12, 16, v12")
        e("v_cmp_gt_u32 vcc, 32, v0\nv_cndmask_b32 v11, v12, v11, vcc\nv_lshlrev_b32 v11, %d, v11" % self.o["fs2"])
        self.poll_issue(12, 11, 68, "p2")
        e("v_and_b32 v5, 31, v0\nv_lshlrev_b32 v5, 2, v5\ns_lshl_b32 s69, s55, 7\ns_add_u32 s69, s69, 0x%x" % GP_OFF)

    def ol(self, i): return "buffer_load_dwordx4 %s, v13, s[16:19], s%d offen offset:%d sc1" % (vr(48 + 4 * i, 4), 72 + i // 4, (i % 4) * 1024)
    def bearly(self):
        e = self.a.e; l = self.lab("be")
        e("v_cmp_ne_u32 vcc, s%d, v12\ns_mov_b32 s70, 0\ns_cbranch_vccnz %s\ns_mov_b32 s70, 1" % (sTAG, l))
        self.stamp("p2poll")
        e("buffer_load_dword v6, v5, s[16:19], s69 offen sc1")
        for i in range(16): e(self.ol(i))
        self.a.label(l)

    def phase2(self):
        a = self.a; e = a.e
        a.vm = []; a.lg = []
        OFR = 48
        EX, BD = 16 * SLOT, 8 * SLOT
        ol = self.ol
        def oloads():
            for i in range(16): a.vmem(ol(i), ("of", i))
        def preread():
            for i in range(16):
                for t in range(2):
                    for tt in range(2):
                        a.lds("ds_read_b64_tr_b16 %s, v%d offset:%d" % (vr(XR + 8 * i + 4 * t + 2 * tt, 2), 112 + t, (16 * i + 8 * tt) * 128))
        def mfmas(check=False):
            for i in range(16):
                if check and i % 4 == 0: self.verify(OFR + 4 * i, 16, [ol(q) for q in range(i, i + 4)], ("of", i + 3), 12)
                a.wait(vm=("of", i))
                for t in range(2): e(MF32(ACK + 16 * t, XR + 8 * i + 4 * t, OFR + 4 * i, (ACK + 16 * t) if i else None))
        a.label("L_P2B")
        preread()
        a.wait(vm=0, lg=0)
        self.msig(6)
        self.stamp("p1")
        e("s_cmp_eq_u32 s70, 1\ns_cbranch_scc1 L_P2B_go")
        self.poll_check(12, 11, 68, None, self.o["sl2"])
        self.stamp("p2poll")
        a.vmem("buffer_load_dword v6, v5, s[16:19], s69 offen sc1", "g")
        oloads()
        a.label("L_P2B_go")
        self.mread(6)
        mfmas(True)
        e("s_lshl_b32 s50, s84, 7\ns_add_u32 s50, s50, 0x%x\nv_add_u32 v5, s50, v5\nv_sub_f32 v8, 1.0, v6" % GEX)
        self.mcheck(6, 8, 1)
        a.lds("ds_write_b32 v5, v6")
        e("s_lshl_b32 s50, s54, 1\ns_add_u32 s50, s50, s84\ns_lshl_b32 s50, s50, 1\ns_add_u32 s50, s50, s54\ns_lshl_b32 s50, s50, 12\ns_add_u32 s50, s50, 0x%x" % BD)
        e("v_add_u32 v5, s50, v13\nv_xor_b32 v7, 0x1000, v5")
        for t in range(2):
            for i in range(16): e("v_mul_f32 v%d, v%d, v8" % (ACK + 16 * t + i, ACK + 16 * t + i))
            for i in range(4): a.lds("ds_write_b128 v%d, %s offset:%d" % (5 + 2 * t, vr(ACK + 16 * t + 4 * i, 4), 1024 * i))
        self.stamp("bdump")
        self.barrier()
        self.stamp("p3")
        e("s_branch L_fin")
        a.vm = []; a.lg = []
        a.label("L_P2A")
        self.p2lanesA()
        e("s_waitcnt vmcnt(0)")
        a.label("L_P2A2")
        self.poll_issue(12, 114, 68, "p2")
        self.msig(6)
        if self.o["ae"]:
            a.wait(vm="p2")
            e("v_cmp_ne_u32 vcc, s%d, v12\ns_mov_b32 s70, 0\ns_cbranch_vccnz L_P2A_w\ns_mov_b32 s70, 1" % sTAG)
            self.stamp("p2poll")
            oloads(); a.vm = []
            a.label("L_P2A_w")
        else: e("s_mov_b32 s70, 0")
        self.mread(6); self.mcheck(6, 8, 1)
        self.stamp("p1")
        preread()
        e("s_cmp_eq_u32 s70, 1\ns_cbranch_scc1 L_P2A_go")
        self.poll_check(12, 114, 68, "p2", self.o["sl2"])
        self.stamp("p2poll")
        oloads()
        a.label("L_P2A_go")
        a.wait(lg=0)
        mfmas(True)
        for i in range(4): a.lds("ds_write_b128 v118, %s offset:%d" % (vr(ACV + 4 * i, 4), 1024 * i))
        self.stamp("bdump")
        self.barrier()
        self.stamp("p3")
        a.lds("ds_read_b32 v10, v120", "g")
        for i in range(4):
            a.lds("ds_read_b128 %s, v119 offset:%d" % (vr(48 + 4 * i, 4), 1024 * i), ("x", i))
            a.lds("ds_read_b128 %s, v115 offset:%d" % (vr(64 + 4 * i, 4), 1024 * i), ("x", i))
            a.lds("ds_read_b128 %s, v115 offset:%d" % (vr(80 + 4 * i, 4), 16384 + 1024 * i), ("x", i))
        for i in range(4):
            a.wait(lg=("x", i))
            for h in (0, 2):
                r = 4 * i + h
                e("v_pk_add_f32 %s, %s, %s" % (vr(ACK + r, 2), vr(ACK + r, 2), vr(48 + r, 2)))
                e("v_pk_add_f32 %s, %s, %s" % (vr(64 + r, 2), vr(64 + r, 2), vr(80 + r, 2)))
            for h in (0, 2):
                r = 4 * i + h
                e("v_pk_fma_f32 %s, %s, v[10:11], %s op_sel_hi:[1,0,1]" % (vr(ACK + r, 2), vr(ACK + r, 2), vr(64 + r, 2)))
            for h in (0, 1): e(CVT(96 + 2 * i + h, ACK + 4 * i + 2 * h))
            if i & 1:
                b = 96 + 4 * (i >> 1)
                e("v_permlane32_swap_b32 v%d, v%d\nv_permlane32_swap_b32 v%d, v%d" % (b, b + 2, b + 1, b + 3))
                a.vmem("buffer_store_dwordx4 %s, v121, s[28:31], s76 offen offset:%d" % (vr(b, 4), 32 * (i >> 1)))
        self.stamp("outst")
        a.label("L_fin")
        if self.stamps:
            e("s_waitcnt vmcnt(0)")
            self.stamp("end")
            e("s_waitcnt lgkmcnt(0)")
            if self.o.get("amp"):
                t0, t1 = STAMPS[0], STAMPS[1]
                e("s_cmp_eq_u32 s%d, 0\ns_cbranch_scc1 L_end" % t1)
                e("s_sub_u32 s50, s%d, s%d\ns_mul_i32 s50, s50, %d\ns_min_u32 s50, s50, 100000" % (t1, t0, self.o["amp"]))
                a.label("L_amp")
                e("s_memrealtime s[52:53]\ns_waitcnt lgkmcnt(0)\ns_sub_u32 s51, s52, s%d\ns_cmp_lt_u32 s51, s50\ns_cbranch_scc1 L_amp\ns_branch L_end" % t0)
            e("s_lshl_b32 s50, s2, 3\ns_add_u32 s50, s50, s40\ns_lshl_b32 s50, s50, 6\ns_add_u32 s50, s50, 0x%x" % STAMP_OFF)
            for i in range(12): e("v_mov_b32 v%d, s%d" % (16 + i, STAMPS[i]))
            e("s_mov_b64 exec, 1")
            for i in range(3): e("buffer_store_dwordx4 %s, off, s[16:19], s50 offset:%d" % (vr(16 + 4 * i, 4), 16 * i))
            if self.dbgout:
                e("s_cmp_eq_u32 s40, 4\ns_cbranch_scc0 L_end")
                e("v_not_b32 v28, v16\nbuffer_atomic_umax v28, off, s[36:39], 0 offset:8")
                for i in range(12): e("buffer_atomic_umax v%d, off, s[36:39], 0 offset:%d" % (16 + i, 12 + 4 * i))
        a.label("L_end")
        e("s_endpgm")

    def build(self):
        self.a.label("L_start")
        if self.stamps:
            for r in STAMPS: self.a.e("s_mov_b64 %s, 0" % sr(r, 2))
        self.setup()
        self.typeA()
        self.typeB()
        self.phase2()
        lines, added = fix_hazards(self.a.lines)
        hdr = open("cdna_kernels/%s.s.ref" % KNAME).read().split("; Override launch")[0]
        out = hdr + "; @launch grid=(256,1,1) block=(512,1,1) lds=163840\n"
        out += '.amdgcn_target "amdgcn-amd-amdhsa--gfx950"\n.text\n.globl %s_kernel\n.p2align 8\n.type %s_kernel,@function\n%s_kernel:\n' % ((KNAME,) * 3)
        out += "\n".join(("" if l.endswith(":") else "    ") + l for l in lines) + "\n"
        out += '.section .rodata,"a"\n.p2align 6\n.amdhsa_kernel %s_kernel\n' % KNAME
        out += "  .amdhsa_next_free_vgpr 256\n  .amdhsa_next_free_sgpr 102\n  .amdhsa_accum_offset 256\n  .amdhsa_group_segment_fixed_size 0\n  .amdhsa_kernarg_size 88\n"
        out += "  .amdhsa_user_sgpr_count 2\n  .amdhsa_user_sgpr_kernarg_segment_ptr 1\n  .amdhsa_system_sgpr_workgroup_id_x 1\n.end_amdhsa_kernel\n"
        return out

if __name__ == "__main__":
    stamps = 2 if "--cyc" in sys.argv else ("--stamps" in sys.argv)
    outp = [x for x in sys.argv[1:] if not x.startswith("--")][0]
    sset = [x[7:].split(",") for x in sys.argv if x.startswith("--sset=")]
    opt = dict((x[2:].split("=")[0], int(x.split("=")[1])) for x in sys.argv if x.startswith("--") and "=" in x and not x.startswith("--sset"))
    open(outp, "w").write(Gen(stamps, sset[0] if sset else None, opt).build())
```

```python
import sys
from asmlib import *

KNAME = "gated_mix__linear_kernel_hedgehog__sliding_local_dilated__prompt"
SLOT = 8192
MISC = 19 * SLOT
WPHI = MISC
GATE = MISC
GPART = MISC + 1024
GEX = MISC + 2048
MCNT = MISC + 2560
KVOP = MISC + 3072
OF_OFF = 0
KVP_OFF = 4 << 20
ZP_OFF = 5 << 20
GP_OFF = (5 << 20) + (128 << 10)
F1_OFF = (5 << 20) + (256 << 10)
F2_OFF = F1_OFF + (128 << 10)
EP_OFF = (5 << 20) + (192 << 10)
STAMP_OFF = 192 << 20
LOG2E = 0x3FB8AA3B
NEG = 0xF149F2CA
TAGC = 0x9E3779B9

SX, SW, SWS, SWOA, SWOB, SOUT, SMISC, SDBG = 8, 12, 16, 20, 24, 28, 32, 36
sW, sRB, sGRP, sTYPE, sROT, sRT, sCT, sTAG, sWL, sOFF = 40, 41, 42, 43, 44, 45, 46, 47, 48, 49
sKX, sKW, sWOO, sR, sC = 64, 72, 80, 84, 85
STAMPS = [86, 88, 90, 92, 94, 96, 98, 100, 60, 62, 58, 6]
vX0, vW, vWO = 1, 3, 4
ACK, ACV, RING, XR = 16, 32, 48, 128
WV_SLOTS = [12, 13, 17, 18, 0, 1, 2, 3]
WQ_A = [16, 4, 5, 6, 7, 3, 17, 18]

class Addr:
    def __init__(self, a, regs, base=0):
        self.a, self.regs, self.base = a, regs, base
    def rebase(self, nb):
        if nb != self.base:
            for r in self.regs:
                self.a.e("v_add_u32 v%d, 0x%x, v%d" % (r, (nb - self.base) & 0xffffffff, r))
            self.base = nb
    def at(self, off, i=0, span=0, gran=49152):
        if not (0 <= off - self.base and off + span - self.base <= 65535 - 15):
            self.rebase(off // gran * gran)
        return "v%d offset:%d" % (self.regs[i], off - self.base)

def MF32(d, a, b, c): return "v_mfma_f32_32x32x16_bf16 %s, %s, %s, %s" % (vr(d, 16), vr(a, 4), vr(b, 4), "0" if c is None else vr(c, 16))
def MF16(d, a, b, c): return "v_mfma_f32_16x16x32_bf16 %s, %s, %s, %s" % (vr(d, 4), vr(a, 4), vr(b, 4), "0" if c is None else vr(c, 4))
def CVT(d, s): return "v_cvt_pk_bf16_f32 v%d, v%d, v%d" % (d, s, s + 1)

class Gen:
    def __init__(self, stamps=False, sset=None, opt=None):
        self.a = Asm()
        self.stamps = stamps
        self.dbgout = "--dbgout" in sys.argv
        self.sset = sset or "0,k0,kend,bv3,kvst,qend,pollok,sum,ost,p2poll,p3,end".split(",")
        self.o = dict(bd=2, warm=2, pk1=2, g0n=4, g1n=8, g2n=8, fs1=7, fs2=7, sl1=2, pre=0, sent=1, h1=0, ep=0, fl=1, map=0, ini=1, hb=0, ha=0, fc=1, sl2=2, inib=0, pw=1, pa=9, pwn=4, be=0, ae=0, rotb=7, pv=0, pq=1, cpf=1, lw=5, le=0, pwx=1, own=0, nb=1, w6=8, wp=0)
        self.o.update(opt or {})
        self.nl = 0
    def stamp(self, name):
        if self.stamps and name in self.sset:
            self.a.e("%s %s" % ("s_memtime" if self.stamps == 2 else "s_memrealtime", sr(STAMPS[self.sset.index(name)], 2)))
    def wgtype(self, wg): return (wg >> (5 if self.o['map'] else 6)) & 1
    def lab(self, p):
        self.nl += 1
        return "L_%s_%d" % (p, self.nl)

    def dma(self, slot, vaddr, srd, sbase, add, tag, ldsadd=0):
        a = self.a
        a.e("s_add_u32 m0, s%d, 0x%x" % (sWL, (slot * SLOT + ldsadd) & 0xffffffff))
        if add:
            a.e("s_add_u32 s%d, s%d, 0x%x" % (sOFF, sbase, add & 0xffffffff)); so = "s%d" % sOFF
        else:
            so = "s%d" % sbase
        a.vmem("buffer_load_dwordx4 v%d, %s, %s offen lds" % (vaddr, sr(srd, 4), so), tag)
    def dma_x(self, s, h, slot): self.dma(slot, vX0 + h, SX, sKX + s, 0, ("c", s))
    def dma_w(self, s, sec, slot, tag): self.dma(slot, vW, SW, sKW + s, 1024 * sec, tag)
    def dma_wo(self, g, vaddr=vWO, ldsadd=0):
        self.dma(g, vaddr, SWOB if g >= 8 else SWOA, sWOO + (g & 3), ((g >> 2) & 1) * 262144, "wo", ldsadd)

    def gemm(self, n, D, reads, mfmas, pre={}, post={}, pairfrom=None):
        a = self.a
        for i in range(n + D):
            if i < n:
                if i in pre: pre[i]()
                for t in reads(i): a.lds(t, ("r", i))
                for f in post.get(i - 1000, []): f()
            k = i - D
            if k >= 0:
                kk = k + 1 if (pairfrom is not None and k >= pairfrom and k % 2 == 0 and k + 1 < n) else k
                a.wait(lg=[("r", k), ("r", kk)])
                for t in mfmas(k): a.e(t)
            for f in post.get(i, []): f()
            for f in post.get(i + 2000, []): f()

    def gemm_il(self, n, D, reads, mfmas, pre={}, post={}):
        a = self.a
        for i in range(n + D):
            k = i - D
            ms = []
            if k >= 0:
                a.wait(lg=("r", k)); ms = mfmas(k)
            if ms: a.e(ms[0])
            rs = []
            if i < n:
                if i in pre: pre[i]()
                rs = reads(i)
            nm = max(1, len(ms)); per = -(-len(rs) // nm)
            for q in range(nm):
                if q: a.e(ms[q])
                for t in rs[q * per:(q + 1) * per]: a.lds(t, ("r", i))
                if q == 0:
                    for f in post.get(i - 1000, []): f()
            for f in post.get(i, []): f()

    def barrier(self, vm=None):
        self.a.wait(vm=vm, lg=0)
        self.a.e("s_barrier")

    def kxw(self, s):
        e = self.a.e
        e("s_add_u32 s50, s44, %d\ns_and_b32 s50, s50, 7" % s)
        e("s_lshl_b32 s%d, s50, 7\ns_add_u32 s%d, s%d, s54" % (sKX + s, sKX + s, sKX + s))
        e("s_mul_i32 s%d, s50, 0x30000\ns_add_u32 s%d, s%d, s55" % (sKW + s, sKW + s, sKW + s))

    def setup(self):
        a = self.a; e = a.e
        self.stamp("0")
        e("s_cmp_ge_u32 s2, 256\ns_cbranch_scc1 L_end")
        e("s_load_dwordx8 s[24:31], s[0:1], 0")
        e("s_load_dwordx8 s[32:39], s[0:1], 40")
        e("s_load_dwordx4 s[4:7], s[0:1], 72")
        if self.o["cpf"]:
            e("s_getpc_b64 s[52:53]")
            a.label("L_pc")
            e("s_lshr_b32 s50, s2, 3\ns_lshl_b32 s50, s50, 11\nv_lshl_add_u32 v2, v0, 4, s50")
            e("v_cmp_gt_u32 vcc, 128, v0\nv_mov_b32 v3, L_end-L_pc-16\nv_cmp_gt_u32 s[50:51], v3, v2\ns_and_b64 vcc, vcc, s[50:51]")
            e("s_and_saveexec_b64 s[50:51], vcc\ns_cbranch_execz L_nopf")
            e("global_load_dwordx4 v[252:255], v2, s[52:53]")
            a.label("L_nopf")
            e("s_mov_b64 exec, s[50:51]")
        e("v_lshrrev_b32 v1, 6, v0\nv_and_b32 v0, 63, v0")
        e("s_and_b32 s50, s2, 7\ns_lshr_b32 s51, s2, 3")
        e("v_readfirstlane_b32 s%d, v1" % sW)
        if self.o["map"] == 0:
            e("s_and_b32 s41, s50, 1\ns_lshl_b32 s41, s41, 3\ns_and_b32 s54, s51, 7\ns_add_u32 s41, s41, s54")
            e("s_lshr_b32 s54, s51, 3")
            e("s_and_b32 s43, s54, 1")
            e("s_and_b32 s42, s50, 6\ns_lshr_b32 s55, s54, 1\ns_add_u32 s42, s42, s55")
            e("s_lshl_b32 s44, s54, 1\ns_add_u32 s44, s44, s41\ns_and_b32 s44, s44, 7")
            e("s_lshl_b32 s45, s50, 2\ns_add_u32 s45, s45, s54")
            e("s_and_b32 s46, s51, 7")
        else:
            e("s_and_b32 s41, s50, 3\ns_lshl_b32 s41, s41, 2\ns_and_b32 s46, s51, 3\ns_add_u32 s41, s41, s46")
            e("s_lshr_b32 s54, s51, 2")
            e("s_and_b32 s43, s54, 1")
            e("s_and_b32 s42, s50, 4\ns_lshr_b32 s55, s54, 1\ns_add_u32 s42, s42, s55")
            e("s_lshl_b32 s44, s41, 1\ns_add_u32 s44, s44, s54\ns_and_b32 s44, s44, 7")
            if self.o["rotb"] < 7:
                e("s_lshl_b32 s45, s41, %d\ns_and_b32 s45, s45, %d\ns_cmp_eq_u32 s43, 0\ns_cselect_b32 s44, s44, s45" % ((2, 1)[self.o["rotb"] == 6], self.o["rotb"]))
            e("s_lshl_b32 s45, s50, 2\ns_add_u32 s45, s45, s43\ns_and_b32 s54, s55, 2\ns_add_u32 s45, s45, s54")
            e("s_and_b32 s55, s55, 1\ns_lshl_b32 s55, s55, 2\ns_add_u32 s46, s46, s55")
        e("s_lshl_b32 s48, s40, 10")
        e("v_lshrrev_b32 v5, 3, v0\nv_lshrrev_b32 v6, 4, v0\nv_and_b32 v7, 7, v0")
        e("s_and_b32 s54, s40, 1\ns_lshl_b32 s55, s54, 2")
        e("v_add_u32 v8, s55, v6\nv_xor_b32 v8, v8, v7\nv_lshlrev_b32 v8, 4, v8")
        e("s_lshr_b32 s55, s40, 1\ns_lshl_b32 s55, s55, 4\ns_add_u32 s55, s55, s54\ns_lshl_b32 s55, s55, 10")
        e("v_lshl_add_u32 v1, v5, 11, v8\nv_add_u32 v1, s55, v1\nv_add_u32 v2, 0x10000, v1")
        e("v_and_b32 v6, 1, v6\nv_lshlrev_b32 v6, 2, v6\nv_xor_b32 v6, v6, v7\nv_lshlrev_b32 v6, 4, v6")
        e("s_lshl_b32 s55, s40, 3\nv_add_u32 v5, s55, v5")
        e("s_movk_i32 s55, 3072\nv_mad_u32_u24 v3, v5, s55, v6\nv_lshl_add_u32 v4, v5, 10, v6")
        e("v_lshlrev_b32 v13, 4, v0")
        e("s_lshl_b32 s54, s41, 17\ns_lshl_b32 s55, s42, 7")
        for s in range(2): self.kxw(s)
        e("s_and_b32 s%d, s40, 3\ns_lshr_b32 s%d, s40, 2" % (sR, sC))
        e("s_mov_b32 s10, 0x200000\ns_mov_b32 s11, 0x20000\ns_mov_b32 s14, 0x180000\ns_mov_b32 s15, 0x20000")
        e("s_cmp_eq_u32 s43, 0")
        e("s_waitcnt lgkmcnt(0)")
        self.stamp("ka")
        if self.stamps and "nv" in self.sset: e("s_mov_b32 s%d, s%d" % (STAMPS[self.sset.index("nv")], STAMPS[0]))
        e("s_mov_b32 s8, s24\ns_mov_b32 s9, s25")
        e("s_cbranch_scc0 L_typeB")
        e("s_mov_b32 s12, s26\ns_mov_b32 s13, s27")

    def setup_rest(self, typ, pf):
        a = self.a; e = a.e
        e("s_mov_b64 s[20:21], s[30:31]\ns_mov_b64 s[24:25], s[34:35]\ns_mov_b64 s[32:33], %s" % ("s[28:29]" if typ == 0 else "s[36:37]"))
        e("s_mov_b64 s[28:29], s[38:39]\ns_mov_b64 s[36:37], s[4:5]\ns_mov_b64 s[16:17], s[6:7]")
        for q in range(2, 8): self.kxw(q)
        e("s_mov_b32 s34, 0x%x\ns_mov_b32 s35, 0x20000" % (0x4000 if typ == 0 else 0x400))
        e("s_mov_b32 s18, 0x10000000\ns_mov_b32 s19, 0x20000\ns_mov_b32 s22, 0x80000\ns_mov_b32 s23, 0x20000")
        e("s_mov_b32 s26, 0x80000\ns_mov_b32 s27, 0x20000\ns_mov_b32 s30, 0x200000\ns_mov_b32 s31, 0x20000")
        e("s_mov_b32 s38, 0x100\ns_mov_b32 s39, 0x20000")
        if not pf: return
        l = self.lab("nomisc")
        e("%s\ns_cbranch_scc0 %s" % ("s_cmp_lt_u32 s40, 2" if typ == 0 else "s_cmp_eq_u32 s40, 4", l))
        if typ == 0: e("s_lshl_b32 s50, s42, 11\ns_add_u32 s50, s50, s48\nv_add_u32 v20, s50, v13")
        else: e("s_lshl_b32 s50, s44, 7\nv_add_u32 v20, s50, v13\nv_and_b32 v20, 0x3ff, v20")
        e("s_add_u32 m0, s48, 0x%x\nbuffer_load_dwordx4 v20, s[32:35], 0 offen lds" % (MISC - 4096 * typ))
        a.label(l)

    def setup2s(self):
        e = self.a.e
        e("s_mov_b32 s52, 0x%x\ns_mov_b32 s53, 0x%x" % (LOG2E, LOG2E))
        for g in range(4):
            e("s_add_u32 s50, s45, %d\ns_and_b32 s50, s50, 3\ns_lshl_b32 s50, s50, 16\ns_lshl_b32 s51, s46, 7\ns_add_u32 s%d, s50, s51" % (g, sWOO + g))

    def setup2(self, srow=sR, sh=12, scol=sC):
        e = self.a.e
        self.setup2s()
        e("v_and_b32 v16, 31, v0\nv_lshrrev_b32 v17, 5, v0\nv_bfe_u32 v18, v0, 1, 3\nv_xor_b32 v17, v17, v18\nv_lshlrev_b32 v17, 4, v17")
        e("s_lshl_b32 s50, s%d, %d\nv_lshl_add_u32 v5, v16, 7, v17\nv_add_u32 v5, s50, v5" % (srow, sh))
        e("v_xor_b32 v6, 32, v5\nv_xor_b32 v7, 64, v5\nv_xor_b32 v8, 0x60, v5")
        e("v_bfe_u32 v16, v0, 2, 2\nv_lshrrev_b32 v17, 5, v0\nv_lshl_add_u32 v16, v17, 3, v16\nv_lshlrev_b32 v16, 7, v16")
        e("v_bfe_u32 v17, v0, 3, 1\nv_xor_b32 v17, s%d, v17\nv_lshl_add_u32 v16, v17, 6, v16" % scol)
        e("v_bfe_u32 v17, v0, 4, 1\nv_lshl_add_u32 v16, v17, 5, v16\nv_and_b32 v17, 3, v0\nv_lshl_add_u32 v9, v17, 3, v16")
        self.xa = Addr(self.a, [5, 6, 7, 8]); self.wa = Addr(self.a, [9])

    def wreads(self, slot, j, r, **kw):
        return ["ds_read_b64_tr_b16 %s, %s" % (vr(r + 2 * tt, 2), self.wa.at(slot * SLOT + (16 * j + 4 * tt) * 128, **kw)) for tt in (0, 1)]

    def wpass(self, slots, acc, pre={}, post={}, D=5):
        def reads(i): return self.wreads(slots[i // 4], i % 4, RING + 4 * (i % 6))
        def mf(k): return [MF32(acc, RING + 4 * (k % 6), XR + 4 * k, acc if k else None)]
        self.gemm(32, D, reads, mf, pre, post)

    def tag_issue(self): self.a.vmem("buffer_load_dwordx2 v[14:15], off, s[36:39], 0 sc1", "tag")
    def get_tag(self):
        a = self.a; e = a.e
        ok, rt = self.lab("tagok"), self.lab("tagrt")
        a.wait(vm="tag")
        e("s_mov_b32 s51, 0")
        a.label(rt)
        e("v_readfirstlane_b32 s50, v15\nv_readfirstlane_b32 s%d, v14" % sTAG)
        e("s_add_u32 s51, s51, 1\ns_cmp_lg_u32 s50, 0\ns_cbranch_scc1 %s" % ok)
        e("s_cmp_gt_u32 s51, 0x10000\ns_cbranch_scc1 %s" % ok)
        e("s_sleep 4\nbuffer_load_dwordx2 v[14:15], off, s[36:39], 0 sc1\ns_waitcnt vmcnt(0)\ns_branch %s" % rt)
        a.label(ok)
        e("v_lshlrev_b32 v15, 2, v0")
    def flag(self, soff):
        if self.o["fl"]:
            self.a.e("s_mov_b32 exec_hi, 0")
            self.a.vmem("buffer_store_dword v14, v15, s[16:19], s%d offen sc1" % soff, "flag")
        else:
            self.a.e("s_mov_b64 exec, 1")
            self.a.vmem("buffer_store_dword v14, off, s[16:19], s%d sc1" % soff, "flag")
        self.a.e("s_mov_b64 exec, -1")
    def fclr(self, v, soff, lanes=8):
        if not self.o["fc"]: return
        self.a.e("s_mov_b64 exec, 0x%x" % ((1 << lanes) - 1))
        self.a.vmem("buffer_store_dwordx4 %s, v13, s[16:19], s%d offen sc1" % (vr(v, 4), soff), "clr")
        self.a.e("s_mov_b64 exec, -1")
    def poll_issue(self, vdst, vaddr, soff, tag):
        self.a.vmem("buffer_load_dword v%d, v%d, s[16:19], s%d offen sc1" % (vdst, vaddr, soff), tag)
    def poll_check(self, vdst, vaddr, soff, tag, sleep=2):
        a = self.a; e = a.e
        ok, rt = self.lab("pok"), self.lab("prt")
        a.wait(vm=tag)
        e("s_mov_b32 s51, 0")
        a.label(rt)
        e("v_cmp_ne_u32 vcc, s%d, v%d" % (sTAG, vdst))
        e("s_add_u32 s51, s51, 1\ns_cbranch_vccz %s" % ok)
        e("s_cmp_gt_u32 s51, 0x10000\ns_cbranch_scc1 %s" % ok)
        e("s_sleep %d\nbuffer_load_dword v%d, v%d, s[16:19], s%d offen sc1\ns_waitcnt vmcnt(0)\ns_branch %s" % (sleep, vdst, vaddr, soff, rt))
        a.label(ok)

    def verify(self, base, n, loads, tag, t):
        a = self.a; e = a.e
        ok, rt = self.lab("vok"), self.lab("vrt")
        a.wait(vm=tag)
        e("s_mov_b32 s51, 0")
        a.label(rt)
        e("v_max3_u32 v%d, v%d, v%d, v%d" % (t, base, base + 1, base + 2))
        for i in range(3, n - 1, 2): e("v_max3_u32 v%d, v%d, v%d, v%d" % (t, t, base + i, base + i + 1))
        e("v_max_u32 v%d, v%d, v%d" % (t, t, base + n - 1))
        e("v_cmp_eq_u32 vcc, -1, v%d" % t)
        e("s_cbranch_vccz %s" % ok)
        e("s_add_u32 s51, s51, 1\ns_cmp_gt_u32 s51, 0x10000\ns_cbranch_scc1 %s" % ok)
        if self.stamps and "nv" in self.sset:
            q = STAMPS[self.sset.index("nv")]
            e("s_add_u32 s%d, s%d, 100" % (q, q))
        for l in loads: e(l)
        e("s_waitcnt vmcnt(0)\ns_branch %s" % rt)
        a.label(ok)

    KB, EP, T = 80, 88, 104
    def phi_pre(self):
        e = self.a.e
        for i in range(8): e(CVT(self.KB + i, ACK + 2 * i))
        e(MF32(ACK, 72, self.KB, None)); e(MF32(ACK, 76, self.KB + 4, ACK))
    def phi(self, hooks={}, nm="pk", pk=False, collect=False, pk1=False, ACK=16, pk2=False, EP=88):
        items = []
        def e(t): items.extend(t.split("\n"))
        KB, T = self.KB, self.T
        def H(n):
            items.append(lambda: self.stamp("%s%d" % (nm, n)))
            if n in hooks: items.append(hooks[n])
        H(0)
        mm = (("v_max3_f32", T), ("v_min3_f32", T + 2))
        for (op, d) in mm:
            e("%s v%d, v%d, v%d, v%d" % (op, d, ACK, ACK + 1, ACK + 2))
            e("%s v%d, v%d, v%d, v%d" % (op, d + 1, ACK + 3, ACK + 4, ACK + 5))
        for i in range(2):
            for (op, d) in mm:
                e("%s v%d, v%d, v%d, v%d" % (op, d, d, ACK + 6 + 4 * i, ACK + 7 + 4 * i))
                e("%s v%d, v%d, v%d, v%d" % (op, d + 1, d + 1, ACK + 8 + 4 * i, ACK + 9 + 4 * i))
        for (op, d) in mm: e("%s v%d, v%d, v%d, v%d" % (op, d, d, ACK + 14, ACK + 15))
        e("v_max_f32 v%d, v%d, v%d\nv_min_f32 v%d, v%d, v%d" % (T, T, T + 1, T + 2, T + 2, T + 3))
        e("v_mul_f32 v%d, s52, v%d\nv_mul_f32 v%d, s52, v%d" % (T, T, T + 2, T + 2))
        if pk or pk1:
            for i in range(8):
                e("v_pk_fma_f32 %s, %s, s[52:53], %s op_sel_hi:[1,1,0] neg_lo:[0,0,1] neg_hi:[0,0,1]" % (vr(EP + 2 * i, 2), vr(ACK + 2 * i, 2), vr(T, 2)))
            for i in range(8):
                e("v_pk_fma_f32 %s, %s, s[52:53], %s op_sel_hi:[1,1,0] neg_lo:[1,0,0] neg_hi:[1,0,0]" % (vr(ACK + 2 * i, 2), vr(ACK + 2 * i, 2), vr(T + 2, 2)))
        else:
            for i in range(16): e("v_fma_f32 v%d, v%d, s52, -v%d" % (EP + i, ACK + i, T))
            for i in range(16): e("v_fma_f32 v%d, -v%d, s52, v%d" % (ACK + i, ACK + i, T + 2))
        H(1)
        for i in range(16): e("v_exp_f32 v%d, v%d" % (EP + i, EP + i))
        H(2)
        for i in range(16): e("v_exp_f32 v%d, v%d" % (ACK + i, ACK + i))
        H(3)
        two = ((EP, KB), (ACK, KB + 4))
        pk = pk or pk2
        if pk:
            for (src, d) in two:
                e("v_pk_add_f32 %s, %s, %s" % (vr(d, 2), vr(src, 2), vr(src + 2, 2)))
                e("v_pk_add_f32 %s, %s, %s" % (vr(d + 2, 2), vr(src + 4, 2), vr(src + 6, 2)))
            for i in range(2):
                for (src, d) in two:
                    e("v_pk_add_f32 %s, %s, %s" % (vr(d, 2), vr(d, 2), vr(src + 8 + 4 * i, 2)))
                    e("v_pk_add_f32 %s, %s, %s" % (vr(d + 2, 2), vr(d + 2, 2), vr(src + 10 + 4 * i, 2)))
            for (src, d) in two: e("v_pk_add_f32 %s, %s, %s" % (vr(d, 2), vr(d, 2), vr(d + 2, 2)))
        else:
            for (src, d) in two:
                for q in range(2): e("v_add_f32 v%d, v%d, v%d" % (d + q, src + 2 * q, src + 2 * q + 1))
            for i in range(6):
                for (src, d) in two:
                    for q in range(2): e("v_add_f32 v%d, v%d, v%d" % (d + q, d + q, src + 4 + 2 * i + q))
        for (src, d) in two: e("v_add_f32 v%d, v%d, v%d" % (d, d, d + 1))
        for (src, d) in two: e("v_rcp_f32 v%d, v%d" % (d, d))
        H(4)
        for p, (src, d) in enumerate(two):
            for q in range(2):
                if pk:
                    for i in range(4 * q, 4 * q + 4): e("v_pk_mul_f32 %s, %s, %s op_sel_hi:[1,0]" % (vr(src + 2 * i, 2), vr(src + 2 * i, 2), vr(d, 2)))
                else:
                    for i in range(8 * q, 8 * q + 8): e("v_mul_f32 v%d, v%d, v%d" % (src + i, src + i, d))
                for i in range(4 * q, 4 * q + 4): e(CVT(src + i, src + 2 * i))
                H(5 + 2 * p + q)
        if collect: return items
        self.emit_items(items)

    def emit_items(self, items):
        for it in items:
            if callable(it): it()
            else: self.a.e(it)

    def spread(self, items, first, last, post, budget):
        def cost(it):
            if callable(it): return getattr(it, "cost", 0)
            if it.startswith(TRANS): return 2
            return 1.5 if it.startswith(("v_fma", "v_max3", "v_min3")) else 1
        items = list(items); credit = 0
        for i in range(first, last + 1):
            credit = min(credit, 0.5) + budget; g = []
            while items and cost(items[0]) <= credit:
                credit -= cost(items[0]); g.append(items.pop(0))
            post.setdefault(i, []).append(lambda g=g: self.emit_items(g))
        return items

    def stage_addr(self, d, t, srow=sR, sh=11):
        e = self.a.e
        e("v_and_b32 v%d, 31, v0\nv_lshrrev_b32 v%d, 5, v0\nv_bfe_u32 v%d, v0, 1, 2" % (d, t, t + 1))
        e("v_xor_b32 v%d, v%d, v%d\nv_lshlrev_b32 v%d, 4, v%d" % (t, t, t + 1, t, t))
        e("s_lshl_b32 s50, s%d, %d\nv_lshl_add_u32 v%d, v%d, 6, v%d\nv_add_u32 v%d, s50, v%d" % (srow, sh, d, d, t, d, d))

    def tr_addr(self, d, t, half_sgpr, rowskip):
        e = self.a.e
        e("v_lshrrev_b32 v%d, 2, v0" % d)
        e("v_bfe_u32 v%d, v0, 3, 2\nv_bfe_u32 v%d, v0, 1, 1\nv_xor_b32 v%d, v%d, v%d" % (t, t + 1, t, t, t + 1))
        if half_sgpr is not None:
            e("s_lshl_b32 s50, s%d, 1\nv_xor_b32 v%d, s50, v%d" % (half_sgpr, t, t))
        if rowskip:
            e("v_and_b32 v%d, 8, v%d\nv_add_u32 v%d, v%d, v%d" % (t + 1, d, d, d, t + 1))
        e("v_lshlrev_b32 v%d, 6, v%d\nv_lshl_add_u32 v%d, v%d, 4, v%d" % (d, d, d, t, d))
        e("v_and_b32 v%d, 1, v0\nv_lshl_add_u32 v%d, v%d, 3, v%d" % (t, d, t, d))

    def minit(self):
        self.a.e("v_mov_b32 v126, 0x%x\nv_mov_b32 v127, 1\nv_mov_b32 v16, 0\nv_mov_b32 v17, 0\nv_mov_b32 v18, 0\nv_mov_b32 v19, 0" % MCNT)
        self.a.lds("ds_write_b128 v126, v[16:19]"); self.a.lds("ds_write_b128 v126, v[16:19] offset:16")
    def msig(self, c):
        self.a.e("s_mov_b64 exec, 1"); self.a.lds("ds_add_u32 v126, v127 offset:%d" % (4 * c)); self.a.e("s_mov_b64 exec, -1")
    def mread(self, c): self.a.lds("ds_read_b32 v125, v126 offset:%d" % (4 * c), ("ms", c))
    def mcheck(self, c, n=4, sleep=0):
        a = self.a; e = a.e
        ok, rt = self.lab("mok"), self.lab("mrt")
        a.wait(lg=("ms", c))
        a.label(rt)
        e("v_readfirstlane_b32 s50, v125\ns_cmp_ge_u32 s50, %d\ns_cbranch_scc1 %s" % (n, ok))
        if sleep: e("s_sleep %d" % sleep)
        e("ds_read_b32 v125, v126 offset:%d\ns_waitcnt lgkmcnt(0)\ns_branch %s" % (4 * c, rt))
        a.label(ok)

    def typeA(self):
        a = self.a; e = a.e; o = self.o
        cx = lambda s, h: self.dma_x(s, h, 3 * (s & 3) + h)
        ck = lambda s: self.dma_w(s, 1, 3 * (s & 3) + 2, ("c", s))
        wv = lambda s: self.dma_w(s, 2, WV_SLOTS[s], ("wv", s))
        wq = lambda s: self.dma_w(s, 0, WQ_A[s], ("wq", s))
        if o["ini"] == 0:
            cx(0, 0); cx(0, 1); ck(0); cx(1, 0); cx(1, 1); wv(0); wq(0)
        else:
            cx(0, 0); cx(0, 1); ck(0)
            if o["ini"] == 2: ck(1)
            cx(1, 0); cx(1, 1)
            if o["own"] == 3: wv(0); wq(0)
        self.stamp("d1")
        self.setup_rest(0, 104)
        self.minit()
        def batch2():
            if o["own"] == 2: wv(0); wq(0)
            if o["ini"] == 1: ck(1)
            cx(2, 0); cx(2, 1); ck(2)
            if o["own"] == 1: wv(0); wq(0)
        e("s_mov_b32 s55, 0")
        self.setup2(scol=55)
        e("v_xor_b32 v10, 64, v9")
        self.wa = Addr(a, [9, 10])
        e("v_and_b32 v16, 1, v0\nv_lshlrev_b32 v16, 9, v16")
        e("v_bfe_u32 v17, v0, 2, 2\nv_lshrrev_b32 v18, 5, v0\nv_lshl_add_u32 v17, v18, 2, v17\nv_lshl_add_u32 v16, v17, 5, v16")
        e("v_bfe_u32 v17, v0, 4, 1\nv_lshl_add_u32 v16, v17, 4, v16\nv_bfe_u32 v17, v0, 1, 1\nv_lshl_add_u32 v16, v17, 3, v16")
        e("v_add_u32 v12, 0x%x, v16" % WPHI)
        e("v_lshrrev_b32 v16, 5, v0")
        e("v_xor_b32 v124, 0x8000, v4")
        self.stage_addr(20, 17)
        def wrd(slot, j, r, c):
            return ["ds_read_b64_tr_b16 %s, %s" % (vr(r + 2 * tt, 2), self.wa.at(slot * SLOT + (16 * j + 4 * tt) * 128, c)) for tt in (0, 1)]
        def wphi_r(c):
            for t in range(2): a.lds("ds_read_b64_tr_b16 %s, v12 offset:%d" % (vr(72 - 8 * c + 2 * t, 2), 1024 * c + 256 * t))
        def wphi_m(c):
            b = 72 - 8 * c
            e("v_and_b32 v125, 4, v0\nv_cmp_eq_u32 vcc, 0, v125")
            for i in range(4): e("v_cndmask_b32 v%d, v%d, 0, vcc" % (b + 4 + i, b + i))
            for i in range(4): e("v_cndmask_b32 v%d, 0, v%d, vcc" % (b + i, b + i))
        def proj():
            for c in range(2):
                kb = (80, 48)[c]
                for i in range(8): e(CVT(kb + i, 16 + 16 * c + 2 * i))
                e(MF32(16 + 16 * c, 72 - 8 * c, kb, None)); e(MF32(16 + 16 * c, 76 - 8 * c, kb + 4, 16 + 16 * c))
        def warm(t, n=1):
            if not o["warm"]: return
            l = self.lab("wm")
            if o["warm"] == 1: e("s_lshl_b32 s50, s40, 16\ns_lshl_b32 s51, s46, 7\ns_add_u32 s50, s50, s51\nv_lshlrev_b32 v%d, 10, v0" % t)
            else: e("s_lshl_b32 s50, s40, 13\ns_lshl_b32 s51, s46, 16\ns_add_u32 s50, s50, s51\nv_lshlrev_b32 v%d, 7, v0" % t)
            e("s_bitcmp1_b32 s45, 1\ns_cbranch_scc1 %s_b" % l)
            for srd in ("s[20:23]", "s[24:27]"):
                for q in range(n):
                    if q: e("s_xor_b32 s50, s50, 0x8000")
                    e("buffer_load_dword v%d, v%d, %s, s50 offen" % (t + 1, t, srd))
                if srd == "s[20:23]":
                    e("s_branch %s" % l); a.label(l + "_b")
            a.vm += ["warm"] * n
            a.label(l)
        e("s_cmp_eq_u32 s%d, 0\ns_cbranch_scc0 L_AK" % sC)
        st = a.state()
        e("v_add_u32 v116, 0x%x, v20\nv_xor_b32 v117, 32, v116" % (14 * SLOT))
        e("v_and_b32 v18, 15, v0\nv_lshl_add_u32 v18, v16, 4, v18\nv_lshlrev_b32 v18, 4, v18\nv_lshlrev_b32 v17, 4, v16\nv_add_u32 v17, 0x200, v17")
        e("v_and_b32 v19, 16, v0\nv_cmp_eq_u32 vcc, 0, v19\nv_cndmask_b32 v122, v17, v18, vcc\nv_add_u32 v122, 0x%x, v122" % KVOP)
        e("s_lshl_b32 s50, s41, 2\ns_add_u32 s50, s50, s%d\ns_lshl_b32 s56, s50, 5\ns_lshl_b32 s51, s42, 1\ns_add_u32 s56, s56, s51" % sR)
        e("s_lshl_b32 s57, s56, %d\ns_add_u32 s57, s57, 0x%x\ns_lshl_b32 s56, s56, 11" % (o["fs2"], F2_OFF))
        e("v_xor_b32 v56, 0x8000, v1\nv_xor_b32 v57, 0x8000, v2\nv_add_u32 v58, 0x18000, v3")
        for i in range(4): e("v_mov_b32 v%d, -1" % (48 + i))
        self.p2lanes(17); self.p2lanesA()
        self.stamp("1")
        batch2()
        def x2(s, h): cx(s, h); self.dma(3 * (s & 3) + h, 56 + h, SX, sKX + s, 0, ("c", s), 4096)
        def w2(s, sec, slot, tag): self.dma_w(s, sec, slot, tag); self.dma(slot, 58, SW, sKW + s, 1024 * sec, tag, 4096)
        wv2 = lambda s: w2(s, 2, WV_SLOTS[s], ("wv", s))
        wq2 = lambda s: w2(s, 0, WQ_A[s], ("wq", s))
        VR = lambda t: 80 + 8 * (t % 4)
        def dreads(slots, t): return wrd(slots[t // 4], t % 4, VR(t), 0) + wrd(slots[t // 4], t % 4, VR(t) + 4, 1)
        def dmf(t): return [MF32(16 + 16 * c, VR(t) + 4 * c, XR + 4 * t, (16 + 16 * c) if t else None) for c in range(2)]
        for s in range(8):
            self.barrier(vm=("c", s)); self.stamp("k%d" % s)
            if s < 5: ld = [lambda: x2(s + 3, 0), lambda: x2(s + 3, 1), lambda: ck(s + 3)]
            elif s < 7: ld = [lambda g=g: (wv2(3 * s - 14 + g) if (3 * s - 14 + g > 1 or o["ini"] < 3) else None) for g in range(2)] + [lambda: wv(3 * s - 12)]
            else: ld = [lambda: wv2(7), lambda: None, lambda: None]
            ld[0]()
            for j in range(4): a.lds("ds_read_b128 %s, %s" % (vr(XR + 16 * s + 4 * j, 4), self.xa.at(3 * (s & 3) * SLOT, j)))
            ld[1](); ld[2]()
            if s == 7 and not o["own"]: wq2(0)
        for t in range(4):
            for r in dreads(WV_SLOTS, t): a.lds(r, ("v0", t))
        for t in range(4):
            a.wait(lg=("v0", t))
            for m in dmf(t): e(m)
            wq2(1 + t)
        self.stamp("v0")
        wphi_r(0); wphi_r(1)
        for h in range(4): a.vmem("buffer_store_dwordx4 v[48:51], v13, s[16:19], s56 offen offset:%d sc1" % (1024 * h), "clr")
        if o["wp"] == 0: warm(56)
        self.stamp("ae")
        self.barrier(vm=("wv", 7))
        self.stamp("bv1")
        if o["wp"] == 1: warm(56)
        self.gemm_il(28, 3, lambda i: dreads(WV_SLOTS, i + 4), lambda k: dmf(k + 4), {}, {})
        self.stamp("v1")
        for c in range(2):
            b = 16 + 16 * c
            for q in range(2):
                for i in range(4 * q, 4 * q + 4): e(CVT(b + i, b + 2 * i))
                a.lds("ds_write_b128 v%d, %s offset:%d" % (116 + q, vr(b + 4 * q, 4), SLOT * c))
        self.stamp("abv3")
        if o["nb"]:
            self.msig(1); a.wait(vm=("wq", 4)); self.msig(7); self.mread(7); self.mcheck(7)
        else: self.barrier(vm=("wq", 4))
        self.stamp("bv3")
        for q in range(5, 8): wq2(q)
        self.tag_issue()
        self.stamp("q0")
        post = {13: [lambda: (self.stamp("q1"), a.wait(vm=("wq", 7)), self.stamp("q2m"), self.msig(2))], 17: [lambda: self.mread(2)], 33: [self.get_tag, self.p2scal]}
        post[21] = [lambda: e("v_and_b32 v125, 4, v0\nv_cmp_eq_u32 vcc, 0, v125")]
        for q in range(8):
            b = 64 + 8 * (q // 4) + q % 4
            post[22 + q] = [lambda b=b: e("v_cndmask_b32 v%d, v%d, 0, vcc\nv_cndmask_b32 v%d, 0, v%d, vcc" % (b + 4, b, b, b))]
        self.gemm_il(32, 3, lambda i: dreads(WQ_A, i), dmf, {20: lambda: (self.mcheck(2), self.stamp("q3"))}, post)
        self.stamp("qend")
        self.msig(0)
        proj()
        for c in range(2):
            ep = (88, 128)[c]
            self.phi(nm="pq%d" % c, pk=True, ACK=16 + 16 * c, EP=ep)
            if c: self.mread(3)
            for b in (ep, 16 + 16 * c):
                for i in range(4): e("v_permlane32_swap_b32 v%d, v%d" % (b + i, b + 4 + i))
        self.stamp("asum")
        self.mcheck(3)
        self.stamp("sum")
        for i in range(8): a.lds("ds_read_b128 %s, v122 offset:%d" % (vr(144 + 4 * i, 4), 576 * i), ("o", i))
        if o["ha"] == 0: self.flag(57)
        for h in range(4):
            a.wait(lg=("o", 2 * h + 1))
            D = 176 + 16 * h; c, hd = divmod(h, 2)
            e(MF32(D, 144 + 8 * h, (88, 128)[c] + 4 * hd, None)); e(MF32(D, 148 + 8 * h, 16 + 16 * c + 4 * hd, D))
        a.vm = []
        for h in range(4):
            D = 176 + 16 * h
            if o["ha"] == 1 + h: self.flag(57)
            e("v_add_f32 v%d, 0x358637bd, v%d\nv_rcp_f32 v%d, v%d" % (D + 8, D + 8, D + 8, D + 8))
            if h < 2:
                for i in range(8): e("v_mul_f32 v%d, v%d, v%d" % (D + i, D + i, D + 8))
            else:
                for i in range(4): e("v_pk_mul_f32 %s, %s, %s op_sel_hi:[1,0]" % (vr(D + 2 * i, 2), vr(D + 2 * i, 2), vr(D + 8, 2)))
            for i in range(4): e(CVT(D + 12 + i, D + 2 * i))
            a.vmem("buffer_store_dwordx4 %s, v13, s[16:19], s56 offen offset:%d sc1" % (vr(D + 12, 4), 1024 * h), "ost")
        self.stamp("ost")
        if o["ha"] == 5: self.flag(57)
        e("s_branch L_P2A2")
        a.restore(st); self.xa.base = 0; self.wa.base = 0
        a.label("L_AK")
        e("v_lshlrev_b32 v18, 4, v16\nv_xor_b32 v20, v20, v18\nv_lshl_add_u32 v20, v16, 13, v20\nv_add_u32 v112, 0x%x, v20" % (8 * SLOT))
        e("v_xor_b32 v113, 16, v112\nv_xor_b32 v114, 32, v112\nv_xor_b32 v115, 48, v112")
        e("v_and_b32 v17, 15, v0\nv_lshrrev_b32 v18, 4, v0\nv_lshlrev_b32 v121, 4, v17\nv_lshl_add_u32 v116, v18, 3, v121\nv_lshl_add_u32 v121, v18, 10, v121")
        e("s_mul_i32 s50, s%d, 1152\ns_add_u32 s50, s50, 0x%x\nv_add_u32 v116, s50, v116" % (sR, KVOP))
        e("v_bfe_u32 v117, v0, 1, 1\nv_mul_u32_u24 v117, 576, v117\nv_and_b32 v19, 1, v0\nv_lshl_add_u32 v117, v19, 4, v117\nv_lshl_add_u32 v117, v18, 3, v117\ns_add_u32 s50, s50, 512\nv_add_u32 v117, s50, v117")
        e("v_lshlrev_b32 v19, 4, v19\nv_mov_b32 v18, 0x3f80\nv_lshlrev_b32 v18, v19, v18\nv_lshrrev_b32 v17, 1, v17")
        for i in range(4): e("v_cmp_eq_u32 vcc, %d, v17\nv_cndmask_b32 v%d, 0, v18, vcc" % (i, 56 + i))
        e("v_and_b32 v123, 15, v0\nv_lshlrev_b32 v123, %d, v123\nv_subrev_u32 v11, 0x18000, v3" % o["fs1"])
        e("s_lshl_b32 s50, s42, 2\ns_add_u32 s50, s50, s%d" % sR)
        e("s_lshl_b32 s4, s50, %d\ns_add_u32 s4, s4, 0x%x\ns_lshl_b32 s5, s50, 14\ns_add_u32 s5, s5, 0x%x\ns_lshl_b32 s43, s50, 11\ns_add_u32 s43, s43, 0x%x" % (o["fs1"] + 4, F1_OFF, KVP_OFF, ZP_OFF))
        e("s_lshl_b32 s50, s50, 4\ns_add_u32 s50, s50, s41")
        e("s_lshl_b32 s3, s50, %d\ns_add_u32 s3, s3, 0x%x" % (o["fs1"], F1_OFF))
        e("s_lshl_b32 s54, s50, 10\ns_add_u32 s54, s54, 0x%x\ns_lshl_b32 s55, s50, 7\ns_add_u32 s55, s55, 0x%x" % (KVP_OFF, ZP_OFF))
        self.tr_addr(118, 17, None, False)
        e("s_and_b32 s50, s%d, 1\ns_lshl_b32 s50, s50, 5\nv_xor_b32 v119, s50, v118" % sR)
        e("s_lshr_b32 s50, s%d, 1\ns_lshl_b32 s50, s50, 13\ns_add_u32 s50, s50, 0x%x\nv_add_u32 v119, s50, v119" % (sR, 14 * SLOT))
        e("s_lshl_b32 s50, s%d, 13\ns_add_u32 s50, s50, 0x%x\nv_add_u32 v118, s50, v118\nv_xor_b32 v122, 32, v118" % (sR, 8 * SLOT))
        for i in range(4): e("v_mov_b32 v%d, 0x3f803f80" % (60 + i))
        e("v_and_b32 v120, 3, v0\nv_bfe_u32 v17, v0, 2, 1\nv_lshl_add_u32 v120, v17, 3, v120\nv_bfe_u32 v17, v0, 3, 1\nv_lshl_add_u32 v120, v17, 2, v120")
        e("v_bfe_u32 v17, v0, 4, 1\nv_lshl_add_u32 v17, v17, 1, v16\nv_lshl_add_u32 v120, v17, 4, v120\nv_lshlrev_b32 v120, 4, v120\nv_lshlrev_b32 v108, 4, v17")
        for i in range(4): e("v_mov_b32 v%d, -1" % (200 + i))
        e("v_and_b32 v111, 0x3c0, v13\nv_add_u32 v111, v111, v13")
        e("v_and_b32 v17, 15, v0\nv_xor_b32 v18, 1, v17\nv_cmp_eq_u32 vcc, s41, v17\nv_cndmask_b32 v17, v17, v18, vcc\nv_lshlrev_b32 v123, %d, v17" % o["fs1"])
        if True:
            e("s_lshl_b32 s50, s41, 2\ns_add_u32 s50, s50, s%d\ns_lshl_b32 s57, s50, 5\ns_lshl_b32 s51, s42, 1\ns_add_u32 s57, s57, s51" % sR)
            e("s_lshl_b32 s57, s57, %d\ns_add_u32 s57, s57, 0x%x" % (o["fs2"], F2_OFF))
        e("v_mov_b32 v204, s55\nv_mov_b32 v17, s3\nv_mov_b32 v18, s57\nv_cmp_lt_u32 vcc, 7, v0\nv_cndmask_b32 v204, v204, v17, vcc")
        e("v_cmp_lt_u32 vcc, 15, v0\nv_cndmask_b32 v204, v204, v18, vcc\nv_and_b32 v17, 0x70, v13\nv_add_u32 v204, v204, v17")
        e("s_setprio 1")
        self.stamp("1")
        batch2()
        KR = lambda t: 128 + 12 * (t % 6)
        def reads(i):
            s, j = divmod(i, 4); b = 3 * (s & 3)
            return ["ds_read_b128 %s, %s" % (vr(KR(i), 4), self.xa.at(b * SLOT, j))] + wrd(b + 2, j, KR(i) + 4, 0) + wrd(b + 2, j, KR(i) + 8, 1)
        def mf(k): return [MF32(16 + 16 * c, KR(k) + 4 + 4 * c, KR(k), (16 + 16 * c) if k else None) for c in range(2)]
        def pwa():
            e("s_and_b32 s50, s40, 1\ns_cmp_eq_u32 s50, 0\ns_cselect_b32 s50, s%d, s%d\ns_and_b32 s51, s40, 2\ns_lshl_b32 s51, s51, 10\ns_add_u32 s50, s50, s51" % (sKW, sKW + 1))
            e("v_mul_u32_u24 v205, 3072, v0")
            a.vmem("buffer_load_dword v206, v205, s[12:15], s50 offen", "pw")
        if o["pa"] == -1: pwa()
        extra = {2: lambda: (wphi_r(0), wphi_r(1)), 3: lambda: wphi_m(0), 4: lambda: wphi_m(1)}
        for s in range(8):
            self.barrier(vm=("c", s)); self.stamp("k%d" % s)
            pend = (mf(4 * s - 2) + mf(4 * s - 1)) if s else [None] * 4
            for j in range(4):
                if pend[j]: e(pend[j])
                for t in reads(4 * s + j): a.lds(t, ("r", j))
            for j in range(4 if s == 7 else 2):
                a.wait(lg=("r", j))
                for m in mf(4 * s + j): e(m)
                if j == 1 and s in (3, 4) and not o["own"]: self.dma(WV_SLOTS[0], 11 if s == 4 else vW, SW, sKW, 2048, ("c", 7), -4096 * (s - 3))
                if j == 0 and s < 5: ck(s + 3)
                if j == 0 and 5 <= s < 7: wv(3 * s - 12)
            if s in extra: extra[s]()
            if s == o["pa"]: pwa()
        self.stamp("kend")
        proj()
        def ebar():
            self.stamp("ae")
            a.wait(vm=("wv", 6))
            e("s_barrier")
            self.stamp("bv1")
            e("s_setprio 0")
            if o["wp"] == 1: warm(109)
            if o["wp"] == 2: warm(109, 2)
        EPK = (88, 128)
        def phi_write(c, ch):
            a.lds("ds_write_b128 v%d, %s offset:%d" % (112 + ch, vr((EPK[c], 16 + 16 * c)[ch >> 1] + 4 * (ch & 1), 4), 2 * SLOT * c))
        its = [self.phi({5 + ch: (lambda c=c, ch=ch: phi_write(c, ch)) for ch in range(4)}, nm="pk%d" % c, ACK=16 + 16 * c, EP=EPK[c], collect=True, pk1=(c < o["pk1"])) for c in range(2)]
        cut = [[q for q, it in enumerate(x) if isinstance(it, str) and it.startswith("v_exp")][0] for x in its]
        def kclr():
            self.stamp("v0")
            self.tag_issue()
            a.vmem("buffer_store_dwordx4 v[200:203], v13, s[16:19], s54 offen sc1", "clr")
            e("s_mov_b64 exec, 0xffffff")
            a.vmem("buffer_store_dwordx4 v[200:203], v204, s[16:19], 0 offen sc1", "clr")
            e("s_mov_b64 exec, -1")
            if o["wp"] == 0: warm(109)
        def wq57():
            for q in range(5, 8):
                wq(q); self.dma(WQ_A[q], 11, SW, sKW + q, 0, ("wq", q), -4096)
        if o["pk1"] == 2: seq = its[0][:cut[0]] + its[1][:cut[1]] + [kclr, ebar] + its[0][cut[0]:] + [self.get_tag] + its[1][cut[1]:]
        else: seq = its[0][:cut[0]] + [kclr, ebar] + its[0][cut[0]:] + [self.get_tag] + its[1]
        self.emit_items(seq)
        if o["pre"]: self.msig(1); self.mread(1)
        self.stamp("pend")
        if o["pre"]: self.mcheck(1, 4, 1)
        else:
            if o["nb"]: self.msig(1)
            a.wait(vm="clr")
            if o["h1"] == 0: self.flag(3)
            self.stamp("abv3")
            if o["nb"]:
                e("s_setprio 1"); self.mread(1); self.mcheck(1, 8)
            else: self.barrier()
            self.stamp("bv3")
            if o["h1"] == 1: self.flag(3)
        e("s_setprio 1")
        PH, VV = 144, 176
        for m in range(4):
            for f in range(2):
                for t in range(2): a.lds("ds_read_b64_tr_b16 %s, v%d offset:%d" % (vr(PH + 8 * m + 4 * f + 2 * t, 2), (118, 122)[f], m * 2048 + t * 1024), ("k", m))
            if not o["pre"]:
                for t in range(2): a.lds("ds_read_b64_tr_b16 %s, v119 offset:%d" % (vr(VV + 4 * m + 2 * t, 2), m * 2048 + t * 1024), ("k", m))
        def pack(b, vaddr, soff, mask):
            e(CVT(b, b)); e(CVT(b + 1, b + 2)); e(CVT(b + 2, b + 4)); e(CVT(b + 3, b + 6))
            e("v_permlane16_swap_b32 v%d, v%d\nv_permlane16_swap_b32 v%d, v%d" % (b, b + 2, b + 1, b + 3))
            if mask: e("s_mov_b32 exec_lo, 0x10001\ns_mov_b32 exec_hi, 0x10001")
            a.vmem("buffer_store_dwordx4 %s, v%d, s[16:19], s%d offen sc1" % (vr(b, 4), vaddr, soff), "kvst")
            if mask: e("s_mov_b64 exec, -1")
        def zm(m):
            for f in range(2): e(MF16(48 + 4 * f, PH + 8 * m + 4 * f, 60, (48 + 4 * f) if m else None))
        def km(m):
            for f in range(2): e(MF16(16 + 4 * f, PH + 8 * m + 4 * f, VV + 4 * m, (16 + 4 * f) if m else None))
        if o["pre"]:
            for m in range(4):
                a.wait(lg=("k", m)); zm(m)
            pack(48, 108, 55, True)
            self.stamp("abv3")
            e("s_barrier")
            self.stamp("bv3")
            for m in range(4):
                for t in range(2): a.lds("ds_read_b64_tr_b16 %s, v119 offset:%d" % (vr(VV + 4 * m + 2 * t, 2), m * 2048 + t * 1024), ("k", m))
            for m in range(4):
                a.wait(lg=("k", m)); km(m)
            pack(16, 120, 54, False)
        else:
            for m in range(4):
                a.wait(lg=("k", m)); km(m); zm(m)
            pack(16, 120, 54, False); pack(48, 108, 55, True)
        self.stamp("kvst")
        e("s_setprio 0")
        def wo2(g): self.dma_wo(g); self.dma_wo(g, 124, -4096)
        self.msig(5)
        self.mread(5)
        GW = (12, 13, 8, 9, 10, 11, 14, 15, 0, 1, 2); n0, n1, n2 = o["g0n"], o["g1n"], o["g2n"]
        assert n2 >= 8
        for q, g in enumerate(GW[:n1]):
            if q == 2: self.mcheck(5, 4, 1)
            if q == n0:
                self.stamp("q2"); self.poll_issue(110, 123, 4, "p1")
            wo2(g)
        a.wait(vm="p1"); self.stamp("p1st")
        self.poll_check(110, 123, 4, "p1", o["sl1"])
        if self.stamps and "np" in self.sset: e("s_lshl_b32 s50, s51, 7\ns_add_u32 s%d, s%d, s50" % (STAMPS[self.sset.index("np")], STAMPS[0]))
        self.stamp("pollok")
        zl = "buffer_load_dwordx4 v[32:35], v111, s[16:19], s43 offen sc1"
        a.vmem(zl, "z")
        for g in range(4): e("s_add_u32 s%d, s5, %d" % (64 + g, 4096 * g))
        kl = lambda i: "buffer_load_dwordx4 %s, v121, s[16:19], s%d offen offset:%d sc1" % (vr(XR + 4 * i, 4), 64 + i // 4, (i % 4) * 256)
        for i in range(16): a.vmem(kl(i), ("kp", i))
        self.stamp("bi")
        for g in GW[n1:n2]: wo2(g)
        if o["le"]:
            self.mread(0); self.mcheck(0, 4, 1)
            for g in (3, 4, 5, 6, 7)[5 - o["le"]:]: wo2(g)
        self.p2scal(); self.p2lanes(40)
        if o["be"]: self.pollB_issue()
        e("s_setprio 1")
        self.verify(32, 4, [zl], "z", 125)
        a.wait(vm="z")
        e(MF16(36, 56, 32, None))
        for i in range(16):
            if i % 4 == 0: self.verify(XR + 4 * i, 16, [kl(q) for q in range(i, i + 4)], ("kp", i + 3), 125)
            a.wait(vm=("kp", i))
            e(MF16(16 + 4 * (i % 4), 56, XR + 4 * i, (16 + 4 * (i % 4)) if i >= 4 else None))
            if i == 7:
                for k in (4, 8):
                    for q in range(4): e("v_add_f32_dpp v%d, v%d, v%d row_ror:%d row_mask:0xf bank_mask:0xf" % (36 + q, 36 + q, 36 + q, k))
                e(CVT(36, 36)); e(CVT(37, 38))
        self.stamp("bl")
        e("s_mov_b32 exec_hi, 0")
        a.lds("ds_write_b64 v117, v[36:37]")
        for q in range(4):
            e(CVT(16 + 4 * q, 16 + 4 * q)); e(CVT(17 + 4 * q, 18 + 4 * q))
            a.lds("ds_write_b64 v116, %s offset:%d" % (vr(16 + 4 * q, 2), 576 * (q >> 1) + 256 * (q & 1)))
        e("s_mov_b64 exec, -1\ns_setprio 0")
        self.msig(3)
        self.stamp("asum")
        a.wait(vm=0); self.msig(4)
        self.mread(0)
        if o["be"]: self.bearly()
        for g in GW[n2:]: wo2(g)
        self.mcheck(0, 4, 1)
        for g in (3, 4, 5, 6, 7)[:5 - o["le"]][:o["lw"]]: wo2(g)
        if o["lw"] < 5:
            self.mread(6); self.mcheck(6, 4, 1)
        self.mread(4)
        for g in (3, 4, 5, 6, 7)[:5 - o["le"]][o["lw"]:]: wo2(g)
        if not o["be"]:
            self.pollB_issue(); e("s_mov_b32 s70, 0")
        self.mcheck(4)
        e("s_branch L_P2B")

    def typeB(self):
        a = self.a; e = a.e
        a.vm = []; a.lg = []
        a.label("L_typeB")
        self.stamp("tb")
        HALO, KV, QP = 15 * SLOT, 0, 17 * SLOT
        buf = lambda s: 5 * ((s + 2) % 3)
        def gran(s, g):
            if g < 2: self.dma_x(s, g, buf(s) + g)
            else: self.dma_w(s, (1, 2, 0)[g - 2], buf(s) + g, ("c", s))
        ini = self.o["inib"]
        def pwb(lo=0, n=4):
            l = self.lab("pw")
            e("s_sub_u32 s50, s40, %d\ns_cmp_lt_u32 s50, %d\ns_cbranch_scc0 %s" % (lo, n, l))
            if self.o["map"]: e("s_and_b32 s50, s41, 3\ns_lshl_b32 s50, s50, 1\ns_and_b32 s51, s40, 1\ns_add_u32 s50, s50, s51\ns_mul_i32 s50, s50, 0x30000")
            else: e("s_bitcmp1_b32 s40, 0\ns_cbranch_scc1 %s\ns_and_b32 s50, s41, 7\ns_mul_i32 s50, s50, 0x30000" % l)
            e("s_lshl_b32 s51, s42, 7\ns_add_u32 s50, s50, s51\ns_and_b32 s51, s40, 2\ns_lshl_b32 s51, s51, 10\ns_add_u32 s50, s50, s51")
            e("v_mul_u32_u24 v249, 3072, v0")
            if self.o["pwx"]: e("v_add_u32 v249, s50, v249\nv_and_b32 v248, 1, v0\nv_lshlrev_b32 v248, 7, v248\nv_xor_b32 v249, v249, v248\ns_mov_b32 s50, 0")
            e("buffer_load_dword v248, v249, s[56:59], s50 offen")
            a.label(l)
        e("s_mov_b32 s12, s32\ns_mov_b32 s13, s33")
        e("v_xor_b32 v65, 0x8000, v1\nv_xor_b32 v66, 0x8000, v2\nv_add_u32 v67, 0x18000, v3")
        def piece(s, q, d):
            g, p = divmod(q, 2)
            if not p: gran(s, g)
            elif g < 2: self.dma(buf(s) + g, 65 + g, SX, sKX + s, 0, ("c", s), d)
            else: self.dma(buf(s) + g, 67, SW, sKW + s, 1024 * (1, 2, 0)[g - 2], ("c", s), d)
        def second():
            if self.o["pw"] == 3: pwb(4, 4)
            for q in (range(4, 10) if ini else range(10)): piece(1, q, -4096)
            e("v_lshrrev_b32 v16, 3, v0\nv_lshrrev_b32 v17, 4, v0\nv_and_b32 v18, 7, v0\nv_xor_b32 v17, v17, v18\nv_lshlrev_b32 v17, 4, v17\nv_lshl_add_u32 v16, v16, 11, v17")
            e("s_add_u32 s50, s44, s40\ns_and_b32 s50, s50, 7\ns_lshl_b32 s50, s50, 7\ns_lshl_b32 s51, s41, 17\ns_add_u32 s50, s50, s51\ns_sub_u32 s50, s50, 0x4000")
            e("v_add_u32 v16, s50, v16\nv_xor_b32 v17, 64, v16\nv_add_u32 v17, 0x400, v17\nv_xor_b32 v18, 0x200, v16\nv_xor_b32 v19, 0x200, v17")
            e("s_lshl_b32 s50, s40, 11")
            for q in range(4):
                e("s_add_u32 m0, s50, 0x%x" % (HALO + 1024 * (q & 1) - 8192 * (q >> 1)))
                a.vmem("buffer_load_dwordx4 v%d, s[8:11], 0 offen lds" % (16 + q), ("c", 1))
            for q in (range(4) if ini else []): piece(1, q, -4096)
            if self.o["pw"] == 1: pwb(4, 4)
        def publish():
            l = self.lab("notag")
            e("s_lshl_b32 s50, s2, 3\ns_add_u32 s50, s50, s40\ns_cmp_eq_u32 s50, %d\ns_cbranch_scc0 %s" % ((32 if self.o['map'] else 64) * 8 + 3, l))
            e("s_waitcnt lgkmcnt(0)")
            e("s_add_u32 s50, s3, 0x%x\ns_and_b32 s50, s50, 0x7fffffff\nv_mov_b32 v16, s50\nv_mov_b32 v17, 1\ns_mov_b64 exec, 1" % TAGC)
            e("buffer_store_dwordx2 v[16:17], off, s[36:39], 0 sc1\ns_mov_b32 s50, 0x%x\nbuffer_store_dword v16, off, s[16:19], s50\ns_mov_b64 exec, -1" % EP_OFF)
            a.label(l)
        QF, PO = 208, 224
        def consts():
            e("v_lshrrev_b32 v88, 4, v0\nv_lshlrev_b32 v88, 2, v88\nv_and_b32 v89, 7, v0\nv_sub_u32 v88, v88, v89\nv_mov_b32 v90, 0x%x" % NEG)
            for i in range(4):
                e("v_add_u32 v89, %d, v88\nv_cmp_gt_u32 vcc, 8, v89\nv_cndmask_b32 v%d, v90, 0, vcc" % (i - 1, 80 + i))
            e("s_or_b32 s50, s41, s%d\ns_cmp_eq_u32 s50, 0\ns_cselect_b32 s50, 32, 0\nv_cmp_gt_u32 vcc, s50, v0" % sR)
            for i in range(4): e("v_cndmask_b32 v%d, v%d, v90, vcc" % (84 + i, 80 + i))
            e("s_mul_i32 s43, s%d, 9216\ns_lshl_b32 s50, s%d, 11\ns_add_u32 s43, s43, s50\ns_add_u32 s43, s43, 0x%x" % (sC, sR, KV))
            e("v_and_b32 v88, 15, v0\nv_and_b32 v89, 8, v0\nv_add_u32 v88, v88, v89\nv_lshrrev_b32 v89, 4, v0\nv_bfe_u32 v90, v0, 1, 2\nv_xor_b32 v89, v89, v90\nv_lshlrev_b32 v89, 4, v89")
            e("v_and_b32 v91, 7, v0\nv_lshl_add_u32 v91, v91, 6, v89\nv_lshl_add_u32 v88, v88, 6, v89\nv_add_u32 v88, s43, v88")
            e("s_lshl_b32 s50, s%d, 13\ns_lshl_b32 s51, s%d, 11\ns_add_u32 s50, s50, s51\ns_add_u32 s50, s50, 0x%x\nv_add_u32 v91, s50, v91" % (sC, sR, QP))
            self.tr_addr(89, 92, None, True)
            e("s_add_u32 s43, s43, 18432\nv_add_u32 v89, s43, v89\nv_xor_b32 v90, 32, v89")
            e("v_bfe_u32 v92, v0, 3, 1\nv_lshlrev_b32 v92, 6, v92\nv_and_b32 v93, 32, v0\nv_add_u32 v92, v92, v93\nv_bfe_u32 v93, v0, 4, 1\nv_lshl_add_u32 v92, v93, 3, v92")
            e("v_and_b32 v93, 7, v0\nv_add_u32 v92, v92, v93\nv_lshlrev_b32 v92, 4, v92")
            for i in range(4): e("v_mov_b32 v%d, 0x3f803f80" % (96 + i))
            for i in range(32): e("v_mov_b32 v%d, 0" % (QF + i))

        def consts_items():
            n = len(a.lines); consts(); it = a.lines[n:]; del a.lines[n:]
            return it
        def scal():
            e("s_lshl_b32 s50, s41, 2\ns_add_u32 s50, s50, s%d\ns_lshl_b32 s51, s42, 1\ns_add_u32 s51, s51, s%d" % (sR, sC))
            e("s_lshl_b32 s54, s50, 5\ns_add_u32 s54, s54, s51\ns_lshl_b32 s55, s54, %d\ns_add_u32 s55, s55, 0x%x\ns_add_u32 s54, s54, 16\ns_lshl_b32 s54, s54, 11" % (self.o["fs2"], F2_OFF + (256 << 10)))
            e("s_lshl_b32 s50, s41, 2\ns_lshr_b32 s51, s42, 1\ns_add_u32 s50, s50, s51\ns_lshl_b32 s50, s50, 5\ns_and_b32 s51, s42, 1\ns_add_u32 s50, s50, s51")
            e("s_lshl_b32 s4, s50, %d\ns_add_u32 s4, s4, 0x%x\ns_cmp_eq_u32 s40, 4\ns_cselect_b32 s4, s4, 0" % (self.o["fs2"], F2_OFF + (256 << 10) + (16 << self.o["fs2"])))
            e("s_lshl_b32 s5, s41, 9\ns_lshl_b32 s51, s42, 6\ns_add_u32 s5, s5, s51\ns_add_u32 s5, s5, 0x%x" % GP_OFF)
        RG = 148; AC = (16, 100)
        e("s_cmp_eq_u32 s%d, 0\ns_cbranch_scc0 L_Bh" % sC)
        for q in range(10): piece(0, q, 4096)
        e("s_barrier")
        self.stamp("d1")
        self.setup_rest(1, 0)
        l = self.lab("notl")
        e("s_lshl_b32 s50, s2, 3\ns_add_u32 s50, s50, s40\ns_cmp_eq_u32 s50, %d\ns_cbranch_scc0 %s" % ((32 if self.o['map'] else 64) * 8 + 3, l))
        e("s_mov_b32 s50, 0x%x\ns_buffer_load_dword s3, s[16:19], s50" % EP_OFF)
        a.label(l)
        e("s_and_b32 s54, s40, 1\ns_bfe_u32 s55, s40, 0x10001")
        self.setup2(54, 13, 55)
        self.stage_addr(76, 16, 54, 12)
        e("s_lshl_b32 s50, s55, 13\ns_add_u32 s50, s50, 0x%x\nv_add_u32 v79, s50, v76\nv_xor_b32 v64, 32, v79" % QP)
        e("s_mul_i32 s50, s55, 9216\ns_add_u32 s50, s50, 0x%x\nv_add_u32 v76, s50, v76\nv_xor_b32 v77, 32, v76" % (KV + 1024))
        e("v_mov_b32 v126, 0x%x\nv_mov_b32 v127, 1" % MCNT)
        consts(); scal()
        def reads(i):
            s, j = divmod(i, 4); r = RG + 20 * (i % 3); b = buf(s)
            self.wa.at(b * SLOT, span=5 * SLOT - 64, gran=5 * SLOT)
            self.xa.at(b * SLOT, span=4096, gran=5 * SLOT)
            x = ["ds_read_b128 %s, %s" % (vr(r + 4 * h, 4), self.xa.at(b * SLOT + 4096 * h, j)) for h in range(2)]
            w = [self.wreads(b + 2 + sec, j, r + 8 + 4 * sec) for sec in range(3)]
            if self.o.get("nox"): return w[0] + w[1] + w[2]
            if self.o.get("now"): return x
            return [x[0]] + w[0] + [x[1]] + w[1] + w[2]
        def mf(k):
            r = RG + 20 * (k % 3)
            return [MF32(AC[h] + 16 * sec, r + 8 + 4 * sec, r + 4 * h, (AC[h] + 16 * sec) if k else None) for sec in range(3) for h in range(2)]
        pre = {4 * s: (lambda s=s: (self.stamp("a%d" % s), self.barrier(), self.stamp("k%d" % s))) for s in range(1, 8)}
        self.stamp("1")
        a.wait(vm=0); self.msig(7); publish(); self.mread(7); self.mcheck(7); self.stamp("k0")
        NT = self.o["bd"] + 1
        self.gemm_il(32, self.o["bd"], reads, lambda k: mf(k) if k < 32 - NT else mf(k)[:2], pre, {24: [self.tag_issue]})
        self.stamp("a8")
        self.barrier()
        self.stamp("k8")
        def stage(sec):
            a0, a1, off = ((76, 77, 0), (76, 77, 18432), (79, 64, 0))[sec]
            o = []
            for h in range(2):
                b = AC[h] + 16 * sec
                for q, ad in enumerate((a0, a1)):
                    o += [CVT(b + i, b + 2 * i) for i in range(4 * q, 4 * q + 4)]
                    o.append(lambda t="ds_write_b128 v%d, %s offset:%d" % (ad, vr(b + 4 * q, 4), off + 2048 * h): a.lds(t))
            return o
        pend = stage(0)
        for sec in range(1, 3):
            ms = [mf(k)[2 * sec + h] for h in range(2) for k in range(32 - NT, 32)]
            per = -(-len(pend) // (len(ms) - 1))
            for q, m in enumerate(ms):
                e(m)
                if q: self.emit_items(pend[(q - 1) * per:q * per])
            pend = stage(sec)
        self.stamp("kend")
        self.emit_items(pend)
        self.get_tag()
        e("s_branch L_Bt")
        a.vm = []; a.lg = []
        a.label("L_Bh")
        e("s_mov_b32 s56, s26\ns_mov_b32 s57, s27\ns_mov_b32 s58, 0x180000\ns_mov_b32 s59, 0x20000\nv_subrev_u32 v67, 0x18000, v3")
        self.minit()
        self.setup_rest(1, 240)
        e("v_and_b32 v16, 15, v0\nv_lshrrev_b32 v17, 4, v0\nv_bfe_u32 v18, v0, 1, 3\nv_xor_b32 v18, v17, v18\nv_lshlrev_b32 v18, 4, v18\nv_lshl_add_u32 v18, v16, 7, v18")
        e("v_add_u32 v10, 0x%x, v18\nv_xor_b32 v11, 64, v10" % HALO)
        e("s_lshl_b32 s50, s42, 11\nv_add_u32 v110, s50, v18\nv_xor_b32 v111, 64, v110")
        e("v_lshlrev_b32 v112, 4, v17\nv_add_u32 v112, 0x%x, v112" % GATE)
        e("v_bfe_u32 v16, v0, 2, 2\nv_lshl_add_u32 v16, v17, 3, v16\nv_lshlrev_b32 v16, 7, v16")
        e("s_lshr_b32 s50, s%d, 1\nv_bfe_u32 v17, v0, 3, 1\nv_xor_b32 v17, s50, v17\nv_lshl_add_u32 v16, v17, 6, v16" % sR)
        e("s_and_b32 s50, s%d, 1\ns_lshl_b32 s50, s50, 5\nv_and_b32 v17, 3, v0\nv_lshl_add_u32 v16, v17, 3, v16\nv_add_u32 v12, s50, v16" % sR)
        e("v_bfe_u32 v78, v0, 4, 1\nv_bfe_u32 v16, v0, 1, 2\nv_xor_b32 v78, v78, v16\ns_and_b32 s50, s%d, 1\ns_lshl_b32 s50, s50, 1\nv_xor_b32 v78, s50, v78" % sR)
        e("v_lshlrev_b32 v78, 4, v78\nv_and_b32 v16, 15, v0\nv_lshl_add_u32 v78, v16, 6, v78\nv_lshrrev_b32 v16, 5, v0\nv_lshl_add_u32 v78, v16, 3, v78")
        e("s_lshr_b32 s50, s%d, 1\ns_mul_i32 s50, s50, 9216\ns_add_u32 s50, s50, 0x%x\nv_add_u32 v78, s50, v78" % (sR, KV))
        self.barrier()
        second()
        self.stamp("d1")
        CI = consts_items(); cuts = [0]
        for q in range(1, 4):
            p = len(CI) * q // 4
            while "vcc" in CI[p] or "scc" in CI[p] or "s50" in CI[p] or "s51" in CI[p] or "cselect" in CI[p]: p += 1
            cuts.append(p)
        cuts.append(len(CI))
        e("s_setprio %d" % self.o.get("hprio", 2))
        ha = Addr(a, [12]); ga = Addr(a, [110, 111])
        def gran2(s, g):
            gran(s, g)
            if g < 2: self.dma(buf(s) + g, 65 + g, SX, sKX + s, 0, ("c", s), -4096)
            else: self.dma(buf(s) + g, 67, SW, sKW + s, 1024 * (1, 2, 0)[g - 2], ("c", s), -4096)
        FR = lambda s, kk, q: 128 + 40 * (s & 1) + 20 * kk + 4 * q
        def early(s):
            b = buf(s)
            ha.at(b * SLOT, span=4 * SLOT, gran=5 * SLOT)
            return ["ds_read_b64_tr_b16 %s, %s" % (vr(FR(s, kk, q) + 2 * tt, 2), ha.at((b + 2 + q) * SLOT + (32 * kk + 4 * tt) * 128)) for kk in range(2) for q in range(2) for tt in range(2)]
        def late(s): return ["ds_read_b128 %s, v%d offset:%d" % (vr(FR(s, kk, 2), 4), 10 + kk, s * 2048) for kk in range(2)]
        def gate_r(s):
            ga.at(buf(s) * SLOT, gran=5 * SLOT)
            l = self.lab("ngr")
            e("s_cmp_eq_u32 s40, 4\ns_cbranch_scc0 %s" % l)
            for kk in range(2): e("ds_read_b128 %s, %s" % (vr(FR(s, kk, 3), 4), ga.at(buf(s) * SLOT, kk)))
            for t in ([0, 1] if s == 1 else [s] if s else []):
                for kk in range(2): e("ds_read_b128 %s, v112 offset:%d" % (vr(FR(t, kk, 4), 4), t * 128 + kk * 64))
            a.label(l)
        def small(s):
            o = [MF16(16 + 4 * q, FR(s, kk, q), FR(s, kk, 2), (16 + 4 * q) if (s or kk) else None) for kk in range(2) for q in range(2)]
            def gt():
                l = self.lab("ng")
                e("s_cmp_eq_u32 s40, 4\ns_cbranch_scc0 %s" % l)
                for kk in range(2): e(MF16(24, FR(s, kk, 4), FR(s, kk, 3), 24 if (s or kk) else None))
                a.label(l)
            return o + [gt]
        def wo2(g):
            self.dma_wo(g); self.dma_wo(g, 68, -4096)
        def clr(q): a.vmem("buffer_store_dwordx4 v[244:247], v13, s[16:19], s3 offen offset:%d sc1" % (1024 * q), "clr")
        def fcl():
            e("s_sub_u32 s50, s55, 128")
            self.fclr(244, 50, 16)
        def wopiece(g, p): self.dma_wo(g, 68 if p else vWO, -4096 * p)
        for s in range(8):
            if s == 0:
                self.stamp("1")
                self.mread(7); self.mcheck(7, 4, 1)
            else:
                self.barrier(vm=("c", s))
            self.stamp("k%d" % s)
            if s < 6: ld = [lambda q=q: piece(s + 2, q, -4096) for q in range(10)]
            elif s == 6: ld = [lambda q=q: wopiece(9 - q // 2, q & 1) for q in range(self.o["w6"])] + [lambda: None] * (10 - self.o["w6"])
            else: ld = [lambda q=q: wopiece(10 + q // 2, q & 1) for q in range(8)] + [lambda: None] * 2
            if s == 6: self.tag_issue()
            rd = (late(0) if s == 1 else []) + early(s) + (late(s) if s else [])
            ms = small(s - 1) if s >= 2 else []
            for q in range(10):
                ld[q]()
                for t in rd[q::10]: a.lds(t)
                if q < len(ms): self.emit_items([ms[q]])
                if q == 6: gate_r(s)
            if s == 1:
                a.wait(lg=0); self.emit_items(small(0))
            if 1 <= s <= 4: self.emit_items(CI[cuts[s - 1]:cuts[s]])
            if s == 0:
                self.setup2s(); e("v_xor_b32 v68, 0x8000, v4"); scal()
                for i in range(4): e("v_mov_b32 v%d, -1" % (244 + i))
                e("s_sub_u32 s3, s54, 2048")
            if s == 5:
                for q in range(4): clr(q)
                fcl()
            if self.o["pw"] == 5 and s == self.o["pv"]: pwb(6, 2)
            if self.o["pw"] == 5 and s == self.o["pq"]: pwb(4, 2)
        self.stamp("a8")
        self.barrier()
        self.stamp("k8")
        self.emit_items(small(7))

        self.stamp("kend")
        e("s_setprio 0")
        for q in range(2):
            e(CVT(16 + 4 * q, 16 + 4 * q)); e(CVT(17 + 4 * q, 18 + 4 * q))
            a.lds("ds_write_b64 v78, %s offset:%d" % (vr(16 + 4 * q, 2), 18432 * q))
        l = self.lab("nog")
        e("s_cmp_eq_u32 s40, 4\ns_cbranch_scc0 %s" % l)
        self.fclr(244, 4)
        if self.o["fc"]: a.vm.pop()
        e("v_mul_f32 v24, s52, v24\nv_exp_f32 v24, -v24\nv_add_f32 v24, 1.0, v24\nv_rcp_f32 v24, v24")
        e("v_lshlrev_b32 v25, 2, v0\ns_mov_b64 exec, 0xffff\nbuffer_store_dword v24, v25, s[16:19], s5 offen sc1\ns_mov_b64 exec, -1")
        a.label(l)
        self.get_tag()
        for g in (14, 15, 5, 6)[:7 - self.o['w6'] // 2]: wo2(g)
        a.wait(vm="clr")
        a.label("L_Bt")
        self.stamp("abv3")
        self.barrier()
        self.stamp("bv3")
        KF, VF, S, O = 128, 144, 160, 176
        e("s_mov_b32 exec_lo, 0x00ff00ff\ns_mov_b32 exec_hi, 0xff00ff00")
        for u in range(4): a.lds("ds_read_b128 %s, v91 offset:%d" % (vr(QF + 4 * u, 4), 512 * u), ("q", u))
        e("s_mov_b64 exec, -1")
        for u in range(4): a.lds("ds_read_b128 %s, v88 offset:%d" % (vr(KF + 4 * u, 4), 512 * u), ("k", u))
        for u in range(4):
            for hd in range(2): a.lds("ds_read_b64_tr_b16 %s, v%d offset:%d" % (vr(VF + 4 * u + 2 * hd, 2), 89 + hd, 512 * u), "v")
        for u in range(4):
            a.wait(lg=("k", u))
            e(MF16(S + 4 * u, KF + 4 * u, QF + 4 * u, 84 if u < 2 else 80))
        self.stamp("at1")
        l = self.lab("f2")
        e("s_cmp_eq_u32 s4, 0\ns_cbranch_scc1 %s\ns_waitcnt vmcnt(%d)" % (l, 14 - self.o["w6"]))
        self.flag(4); a.vm.pop()
        a.label(l)
        if self.o["hb"] == 0: self.flag(55)
        M = 100
        for u in range(4): e("v_max3_f32 v%d, v%d, v%d, v%d" % (M + u, S + 4 * u, S + 4 * u + 1, S + 4 * u + 2))
        for u in range(4): e("v_max_f32 v%d, v%d, v%d" % (M + u, M + u, S + 4 * u + 3))
        e("v_permlane16_swap_b32 v100, v101\nv_permlane16_swap_b32 v102, v103\nv_max_f32 v100, v100, v101\nv_max_f32 v102, v102, v103")
        e("v_permlane32_swap_b32 v100, v102\nv_max_f32 v100, v100, v102")
        e("s_mov_b32 s52, 0x3EB8AA3B")
        e("v_mul_f32 v100, s52, v100\nv_mov_b32 v104, v100\nv_permlane32_swap_b32 v100, v104")
        e("v_mov_b32 v102, v100\nv_mov_b32 v106, v104\nv_permlane16_swap_b32 v100, v102\nv_permlane16_swap_b32 v104, v106")
        for i in range(16): e("v_fma_f32 v%d, v%d, s52, -v%d" % (S + i, S + i, M + 2 * (i // 4)))
        if self.o["hb"] == 1: self.flag(55)
        self.stamp("at2")
        for i in range(16): e("v_exp_f32 v%d, v%d" % (S + i, S + i))
        for hd, mk in ((0, 0x00ff00ff), (1, 0xff00ff00)):
            e("s_mov_b32 exec_lo, 0x%x\ns_mov_b32 exec_hi, 0x%x" % (mk, mk))
            for u in range(4):
                for h in (0, 1): e(CVT(PO + 4 * u + 2 * hd + h, S + 4 * u + 2 * h))
        e("s_mov_b64 exec, -1")
        a.wait(lg=0)
        for u in range(4):
            e(MF16(O + 8 * u + 4, 96, PO + 4 * u, None)); e(MF16(O + 8 * u, VF + 4 * u, PO + 4 * u, None))
        if self.o["hb"] == 2: self.flag(55)
        self.stamp("at3")
        for u in range(4): e("v_rcp_f32 v%d, v%d" % (O + 8 * u + 4, O + 8 * u + 4))
        for u in range(4):
            for h in range(4): e("v_mul_f32 v%d, v%d, v%d" % (O + 8 * u + h, O + 8 * u + h, O + 8 * u + 4))
        for u in range(4):
            for h in (0, 1): e(CVT(KF + 2 * u + h, O + 8 * u + 2 * h))
        a.vm = []
        for sp in range(2):
            for h in (0, 1): e("v_permlane16_swap_b32 v%d, v%d" % (KF + 4 * sp + h, KF + 4 * sp + 2 + h))
            a.vmem("buffer_store_dwordx4 %s, v92, s[16:19], s54 offen offset:%d sc1" % (vr(KF + 4 * sp, 4), 256 * sp), "ost")
        self.stamp("ost")
        e("s_waitcnt vmcnt(3)\ns_barrier")
        for g in range(5): self.dma_wo(g)
        e("v_mov_b32 v126, 0x%x\nv_mov_b32 v127, 1" % MCNT)
        self.p2scal(); self.p2lanes(17)
        e("s_mov_b32 s70, 0\ns_cmp_eq_u32 s%d, 0\ns_cbranch_scc1 L_P2A" % sC)
        self.pollB_issue()

    def p2scal(self):
        e = self.a.e
        e("s_and_b32 s84, s40, 1\ns_bfe_u32 s54, s40, 0x10001")
        e("s_lshl_b32 s55, s45, 1\ns_add_u32 s55, s55, s84\ns_lshl_b32 s50, s55, 2\ns_lshr_b32 s51, s40, 1\ns_add_u32 s50, s50, s51\ns_lshl_b32 s50, s50, 14")
        for g in range(4):
            e("s_add_u32 s51, s45, %d\ns_and_b32 s51, s51, 3\ns_lshl_b32 s51, s51, 12\ns_add_u32 s%d, s50, s51" % (g, 72 + g))
        e("s_lshl_b32 s68, s55, %d\ns_lshl_b32 s50, s85, 18\ns_add_u32 s68, s68, s50\ns_add_u32 s68, s68, 0x%x" % (self.o["fs2"] + 5, F2_OFF))
        e("s_lshl_b32 s76, s55, 15\ns_lshl_b32 s50, s46, 7\ns_add_u32 s76, s76, s50\ns_lshl_b32 s50, s54, 6\ns_add_u32 s76, s76, s50")
    def p2lanes(self, t):
        e = lambda x: self.a.e(x.replace("vA", "v%d" % t).replace("vB", "v%d" % (t + 1)))
        e("s_bfe_u32 s51, s40, 0x10001")
        e("v_bfe_u32 vA, v0, 2, 2\nv_lshrrev_b32 vB, 5, v0\nv_lshl_add_u32 vA, vB, 2, vA\nv_lshlrev_b32 vA, 7, vA")
        e("v_bfe_u32 vB, v0, 3, 1\nv_xor_b32 vB, s51, vB\nv_lshl_add_u32 vA, vB, 6, vA")
        e("v_bfe_u32 vB, v0, 4, 1\nv_lshl_add_u32 vA, vB, 5, vA\nv_and_b32 vB, 3, v0\nv_lshl_add_u32 v112, vB, 3, vA")
        e("s_lshr_b32 s50, s40, 1\ns_lshl_b32 s50, s50, 15\nv_add_u32 v112, s50, v112\nv_xor_b32 v113, 64, v112")
    def p2lanesA(self):
        e = self.a.e
        EX, BD = 16 * SLOT, 8 * SLOT
        e("s_bfe_u32 s51, s40, 0x10001\ns_lshl_b32 s50, s51, 3")
        e("v_and_b32 v114, 6, v0\nv_add_u32 v114, s50, v114\nv_lshlrev_b32 v114, %d, v114" % self.o["fs2"])
        e("s_and_b32 s50, s40, 1\ns_lshl_b32 s50, s50, 1\ns_add_u32 s50, s50, s51\ns_lshl_b32 s50, s50, 12\nv_add_u32 v115, s50, v13")
        e("v_add_u32 v119, 0x%x, v115\nv_xor_b32 v118, 0x1000, v119\nv_add_u32 v115, 0x%x, v115" % (EX, BD))
        e("v_and_b32 v120, 31, v0\nv_lshlrev_b32 v120, 2, v120\ns_and_b32 s50, s40, 1\ns_lshl_b32 s50, s50, 7\ns_add_u32 s50, s50, 0x%x\nv_add_u32 v120, s50, v120" % GEX)
        e("v_and_b32 v121, 16, v0\nv_and_b32 v123, 7, v0\nv_lshl_add_u32 v121, v123, 1, v121\nv_bfe_u32 v123, v0, 3, 1\nv_add_u32 v121, v121, v123\nv_lshlrev_b32 v121, 10, v121")
        e("v_lshrrev_b32 v123, 5, v0\nv_lshl_add_u32 v121, v123, 4, v121")

    def pollB_issue(self):
        e = self.a.e
        e("v_and_b32 v11, 7, v0\ns_lshl_b32 s50, s54, 3\nv_add_u32 v11, s50, v11\nv_and_b32 v12, 1, v0\nv_add_u32 v12, 16, v12")
        e("v_cmp_gt_u32 vcc, 32, v0\nv_cndmask_b32 v11, v12, v11, vcc\nv_lshlrev_b32 v11, %d, v11" % self.o["fs2"])
        self.poll_issue(12, 11, 68, "p2")
        e("v_and_b32 v5, 31, v0\nv_lshlrev_b32 v5, 2, v5\ns_lshl_b32 s69, s55, 7\ns_add_u32 s69, s69, 0x%x" % GP_OFF)

    def ol(self, i): return "buffer_load_dwordx4 %s, v13, s[16:19], s%d offen offset:%d sc1" % (vr(48 + 4 * i, 4), 72 + i // 4, (i % 4) * 1024)
    def bearly(self):
        e = self.a.e; l = self.lab("be")
        e("v_cmp_ne_u32 vcc, s%d, v12\ns_mov_b32 s70, 0\ns_cbranch_vccnz %s\ns_mov_b32 s70, 1" % (sTAG, l))
        self.stamp("p2poll")
        e("buffer_load_dword v6, v5, s[16:19], s69 offen sc1")
        for i in range(16): e(self.ol(i))
        self.a.label(l)

    def phase2(self):
        a = self.a; e = a.e
        a.vm = []; a.lg = []
        OFR = 48
        EX, BD = 16 * SLOT, 8 * SLOT
        ol = self.ol
        def oloads():
            for i in range(16): a.vmem(ol(i), ("of", i))
        def preread():
            for i in range(16):
                for t in range(2):
                    for tt in range(2):
                        a.lds("ds_read_b64_tr_b16 %s, v%d offset:%d" % (vr(XR + 8 * i + 4 * t + 2 * tt, 2), 112 + t, (16 * i + 8 * tt) * 128))
        def mfmas(check=False):
            for i in range(16):
                if check and i % 4 == 0: self.verify(OFR + 4 * i, 16, [ol(q) for q in range(i, i + 4)], ("of", i + 3), 12)
                a.wait(vm=("of", i))
                for t in range(2): e(MF32(ACK + 16 * t, XR + 8 * i + 4 * t, OFR + 4 * i, (ACK + 16 * t) if i else None))
        a.label("L_P2B")
        preread()
        a.wait(vm=0, lg=0)
        self.msig(6)
        self.stamp("p1")
        e("s_cmp_eq_u32 s70, 1\ns_cbranch_scc1 L_P2B_go")
        self.poll_check(12, 11, 68, None, self.o["sl2"])
        self.stamp("p2poll")
        a.vmem("buffer_load_dword v6, v5, s[16:19], s69 offen sc1", "g")
        oloads()
        a.label("L_P2B_go")
        self.mread(6)
        mfmas(True)
        e("s_lshl_b32 s50, s84, 7\ns_add_u32 s50, s50, 0x%x\nv_add_u32 v5, s50, v5\nv_sub_f32 v8, 1.0, v6" % GEX)
        self.mcheck(6, 8, 1)
        a.lds("ds_write_b32 v5, v6")
        e("s_lshl_b32 s50, s54, 1\ns_add_u32 s50, s50, s84\ns_lshl_b32 s50, s50, 1\ns_add_u32 s50, s50, s54\ns_lshl_b32 s50, s50, 12\ns_add_u32 s50, s50, 0x%x" % BD)
        e("v_add_u32 v5, s50, v13\nv_xor_b32 v7, 0x1000, v5")
        for t in range(2):
            for i in range(16): e("v_mul_f32 v%d, v%d, v8" % (ACK + 16 * t + i, ACK + 16 * t + i))
            for i in range(4): a.lds("ds_write_b128 v%d, %s offset:%d" % (5 + 2 * t, vr(ACK + 16 * t + 4 * i, 4), 1024 * i))
        self.stamp("bdump")
        self.barrier()
        self.stamp("p3")
        e("s_branch L_fin")
        a.vm = []; a.lg = []
        a.label("L_P2A")
        self.p2lanesA()
        e("s_waitcnt vmcnt(0)")
        a.label("L_P2A2")
        self.poll_issue(12, 114, 68, "p2")
        self.msig(6)
        if self.o["ae"]:
            a.wait(vm="p2")
            e("v_cmp_ne_u32 vcc, s%d, v12\ns_mov_b32 s70, 0\ns_cbranch_vccnz L_P2A_w\ns_mov_b32 s70, 1" % sTAG)
            self.stamp("p2poll")
            oloads(); a.vm = []
            a.label("L_P2A_w")
        else: e("s_mov_b32 s70, 0")
        self.mread(6); self.mcheck(6, 8, 1)
        self.stamp("p1")
        preread()
        e("s_cmp_eq_u32 s70, 1\ns_cbranch_scc1 L_P2A_go")
        self.poll_check(12, 114, 68, "p2", self.o["sl2"])
        self.stamp("p2poll")
        oloads()
        a.label("L_P2A_go")
        a.wait(lg=0)
        mfmas(True)
        for i in range(4): a.lds("ds_write_b128 v118, %s offset:%d" % (vr(ACV + 4 * i, 4), 1024 * i))
        self.stamp("bdump")
        self.barrier()
        self.stamp("p3")
        a.lds("ds_read_b32 v10, v120", "g")
        for i in range(4):
            a.lds("ds_read_b128 %s, v119 offset:%d" % (vr(48 + 4 * i, 4), 1024 * i), ("x", i))
            a.lds("ds_read_b128 %s, v115 offset:%d" % (vr(64 + 4 * i, 4), 1024 * i), ("x", i))
            a.lds("ds_read_b128 %s, v115 offset:%d" % (vr(80 + 4 * i, 4), 16384 + 1024 * i), ("x", i))
        for i in range(4):
            a.wait(lg=("x", i))
            for h in (0, 2):
                r = 4 * i + h
                e("v_pk_add_f32 %s, %s, %s" % (vr(ACK + r, 2), vr(ACK + r, 2), vr(48 + r, 2)))
                e("v_pk_add_f32 %s, %s, %s" % (vr(64 + r, 2), vr(64 + r, 2), vr(80 + r, 2)))
            for h in (0, 2):
                r = 4 * i + h
                e("v_pk_fma_f32 %s, %s, v[10:11], %s op_sel_hi:[1,0,1]" % (vr(ACK + r, 2), vr(ACK + r, 2), vr(64 + r, 2)))
            for h in (0, 1): e(CVT(96 + 2 * i + h, ACK + 4 * i + 2 * h))
            if i & 1:
                b = 96 + 4 * (i >> 1)
                e("v_permlane32_swap_b32 v%d, v%d\nv_permlane32_swap_b32 v%d, v%d" % (b, b + 2, b + 1, b + 3))
                a.vmem("buffer_store_dwordx4 %s, v121, s[28:31], s76 offen offset:%d" % (vr(b, 4), 32 * (i >> 1)))
        self.stamp("outst")
        a.label("L_fin")
        if self.stamps:
            e("s_waitcnt vmcnt(0)")
            self.stamp("end")
            e("s_waitcnt lgkmcnt(0)")
            if self.o.get("skew"):
                t0 = STAMPS[0]
                e("s_cmp_eq_u32 s40, 0\ns_cbranch_scc0 L_end")
                e("s_not_b32 s50, s%d\nv_mov_b32 v16, s50\ns_mov_b64 exec, 1\nbuffer_atomic_umax v16, off, s[36:39], 0 offset:8\ns_waitcnt vmcnt(0)" % t0)
                a.label("L_sk0")
                e("s_memrealtime s[52:53]\ns_waitcnt lgkmcnt(0)\ns_sub_u32 s51, s52, s%d\ns_cmp_lt_u32 s51, 2500\ns_cbranch_scc1 L_sk0" % t0)
                e("buffer_load_dword v16, off, s[36:39], 0 offset:8 sc1\ns_waitcnt vmcnt(0)\nv_readfirstlane_b32 s50, v16\ns_not_b32 s50, s50")
                e("s_lshr_b32 s51, s2, %d\ns_and_b32 s51, s51, %d\ns_cmp_eq_u32 s51, %d\ns_cbranch_scc0 L_end" % (self.o["sks"], self.o["skm"], self.o["skv"]))
                e("s_sub_u32 s51, s%d, s50\ns_mul_i32 s51, s51, 20\ns_add_u32 s51, s51, 3000\ns_min_u32 s51, s51, 100000" % t0)
                a.label("L_sk1")
                e("s_memrealtime s[52:53]\ns_waitcnt lgkmcnt(0)\ns_sub_u32 s54, s52, s50\ns_cmp_lt_u32 s54, s51\ns_cbranch_scc1 L_sk1\ns_branch L_end")
            if self.o.get("amp"):
                t0, t1 = STAMPS[0], STAMPS[1]
                e("s_cmp_eq_u32 s%d, 0\ns_cbranch_scc1 L_end" % t1)
                e("s_sub_u32 s50, s%d, s%d\ns_mul_i32 s50, s50, %d\ns_min_u32 s50, s50, 100000" % (t1, t0, self.o["amp"]))
                a.label("L_amp")
                e("s_memrealtime s[52:53]\ns_waitcnt lgkmcnt(0)\ns_sub_u32 s51, s52, s%d\ns_cmp_lt_u32 s51, s50\ns_cbranch_scc1 L_amp\ns_branch L_end" % t0)
            e("s_lshl_b32 s50, s2, 3\ns_add_u32 s50, s50, s40\ns_lshl_b32 s50, s50, 6\ns_add_u32 s50, s50, 0x%x" % STAMP_OFF)
            for i in range(12): e("v_mov_b32 v%d, s%d" % (16 + i, STAMPS[i]))
            e("s_mov_b64 exec, 1")
            for i in range(3): e("buffer_store_dwordx4 %s, off, s[16:19], s50 offset:%d" % (vr(16 + 4 * i, 4), 16 * i))
            if self.dbgout:
                e("s_cmp_eq_u32 s40, 4\ns_cbranch_scc0 L_end")
                e("v_not_b32 v28, v16\nbuffer_atomic_umax v28, off, s[36:39], 0 offset:8")
                for i in range(12): e("buffer_atomic_umax v%d, off, s[36:39], 0 offset:%d" % (16 + i, 12 + 4 * i))
        a.label("L_end")
        e("s_endpgm")

    def build(self):
        self.a.label("L_start")
        if self.stamps:
            for r in STAMPS: self.a.e("s_mov_b64 %s, 0" % sr(r, 2))
        self.setup()
        self.typeA()
        self.typeB()
        self.phase2()
        lines, added = fix_hazards(self.a.lines)
        hdr = open("cdna_kernels/%s.s.ref" % KNAME).read().split("; Override launch")[0]
        out = hdr + "; @launch grid=(256,1,1) block=(512,1,1) lds=163840\n"
        out += '.amdgcn_target "amdgcn-amd-amdhsa--gfx950"\n.text\n.globl %s_kernel\n.p2align 8\n.type %s_kernel,@function\n%s_kernel:\n' % ((KNAME,) * 3)
        out += "\n".join(("" if l.endswith(":") else "    ") + l for l in lines) + "\n"
        out += '.section .rodata,"a"\n.p2align 6\n.amdhsa_kernel %s_kernel\n' % KNAME
        out += "  .amdhsa_next_free_vgpr 256\n  .amdhsa_next_free_sgpr 102\n  .amdhsa_accum_offset 256\n  .amdhsa_group_segment_fixed_size 0\n  .amdhsa_kernarg_size 88\n"
        out += "  .amdhsa_user_sgpr_count 2\n  .amdhsa_user_sgpr_kernarg_segment_ptr 1\n  .amdhsa_system_sgpr_workgroup_id_x 1\n.end_amdhsa_kernel\n"
        return out

if __name__ == "__main__":
    stamps = 2 if "--cyc" in sys.argv else ("--stamps" in sys.argv)
    outp = [x for x in sys.argv[1:] if not x.startswith("--")][0]
    sset = [x[7:].split(",") for x in sys.argv if x.startswith("--sset=")]
    opt = dict((x[2:].split("=")[0], int(x.split("=")[1])) for x in sys.argv if x.startswith("--") and "=" in x and not x.startswith("--sset"))
    open(outp, "w").write(Gen(stamps, sset[0] if sset else None, opt).build())
```
